```python
import torch

def _softmax(x, axis=-1):
    return torch.softmax(x, dim=axis)
def _gelu(x):
    return torch.nn.functional.gelu(x, approximate="tanh")
def _silu(x):
    return torch.nn.functional.silu(x)
def _sigmoid(x):
    return torch.sigmoid(x)
def _layernorm(x, axis=-1, eps=1e-5):
    m = x.mean(dim=axis, keepdim=True)
    v = x.var(dim=axis, keepdim=True, unbiased=False)
    return (x - m) / torch.sqrt(v + eps)
def _scatter_add(tgt, idx, src, axis=0):
    return tgt.clone().index_add_(axis, idx, src)
def _segment_sum(src, seg, n):
    out = torch.zeros((n,) + src.shape[1:], dtype=src.dtype)
    return out.index_add_(0, seg, src)
def _pad(x, pw):
    flat = tuple(v for pair in reversed(pw) for v in pair)
    return torch.nn.functional.pad(x, flat)

kernel_name = 'concat_heads__gqa_block_cached__mha_block_cached__near_ridge'

def setup_inputs():

    _w = (lambda a: (lambda t: t.to(torch.bfloat16) if t.is_floating_point() else t)(torch.as_tensor(a)))
    def _A_setup():
        B, Sq, D = 16, 32, 512
        Hq, Hkv, Sk, Dh = 32, 8, 32, 128
        assert Hq % Hkv == 0, (Hq, Hkv)
        return {
            "x": _w((lambda *s: torch.randn(*s, dtype=torch.bfloat16) * 0.8)(B, Sq, D)),
            "k_cache": _w((lambda *s: torch.randn(*s, dtype=torch.bfloat16) * 0.8)(B, Hkv, Sk, Dh)),
            "v_cache": _w((lambda *s: torch.randn(*s, dtype=torch.bfloat16) * 0.05)(B, Hkv, Sk, Dh)),
            "wq": _w((lambda *s: torch.randn(*s, dtype=torch.bfloat16) * 0.8)(D, Hq * Dh) * (D ** -0.5)),
            "wo": _w((lambda *s: torch.randn(*s, dtype=torch.bfloat16) * 0.05)(Hq * Dh, D) * ((Hq * Dh) ** -0.5)),
        }
    _A_in = _A_setup()

    def _B_setup():
        B, Sq, D = 16, 32, 512
        H, Sk, Dh = 32, 32, 128
        return {
            "x": _w((lambda *s: torch.randn(*s, dtype=torch.bfloat16) * 0.8)(B, Sq, D)),
            "k_cache": _w((lambda *s: torch.randn(*s, dtype=torch.bfloat16) * 0.8)(B, H, Sk, Dh)),
            "v_cache": _w((lambda *s: torch.randn(*s, dtype=torch.bfloat16) * 0.05)(B, H, Sk, Dh)),
            "wq": _w((lambda *s: torch.randn(*s, dtype=torch.bfloat16) * 0.8)(D, H * Dh) * (D ** -0.5)),
            "wo": _w((lambda *s: torch.randn(*s, dtype=torch.bfloat16) * 0.05)(H * Dh, D) * ((H * Dh) ** -0.5)),
        }
    _B_in = _B_setup()

    return {
        "A_x": _A_in["x"],
        "A_k_cache": _A_in["k_cache"],
        "A_v_cache": _A_in["v_cache"],
        "A_wq": _A_in["wq"],
        "A_wo": _A_in["wo"],
        "B_x": _B_in["x"],
        "B_k_cache": _B_in["k_cache"],
        "B_v_cache": _B_in["v_cache"],
        "B_wq": _B_in["wq"],
        "B_wo": _B_in["wo"],
    }

def reference(A_x, A_k_cache, A_v_cache, A_wq, A_wo, B_x, B_k_cache, B_v_cache, B_wq, B_wo):
    def _A_ref(x, k_cache, v_cache, wq, wo):
        B, Sq, D = x.shape
        Hq, Dh = 32, 128
        Hkv = k_cache.shape[1]
        rep = Hq // Hkv
        q = (lambda x, *d: x.permute(*d))((x @ wq).reshape(B, Sq, Hq, Dh), 0, 2, 1, 3)
        k = (lambda x, n, axis: torch.repeat_interleave(x, n, dim=axis))(k_cache, rep, axis=1)
        v = (lambda x, n, axis: torch.repeat_interleave(x, n, dim=axis))(v_cache, rep, axis=1)
        scores = torch.einsum("bhqd,bhkd->bhqk", q, k) * (Dh ** -0.5)
        p = _softmax(scores, axis=-1)
        o = torch.einsum("bhqk,bhkd->bhqd", p, v)
        return (lambda x, *d: x.permute(*d))(o, 0, 2, 1, 3).reshape(B, Sq, Hq * Dh) @ wo

    def _B_ref(x, k_cache, v_cache, wq, wo):
        B, Sq, D = x.shape
        H, Dh = 32, 128
        q = (lambda x, *d: x.permute(*d))((x @ wq).reshape(B, Sq, H, Dh), 0, 2, 1, 3)
        scores = torch.einsum("bhqd,bhkd->bhqk", q, k_cache) * (Dh ** -0.5)
        p = _softmax(scores, axis=-1)
        o = torch.einsum("bhqk,bhkd->bhqd", p, v_cache)
        return (lambda x, *d: x.permute(*d))(o, 0, 2, 1, 3).reshape(B, Sq, H * Dh) @ wo

    a = _A_ref(A_x, A_k_cache, A_v_cache, A_wq, A_wo)
    b = _B_ref(B_x, B_k_cache, B_v_cache, B_wq, B_wo)
    return torch.concatenate([a, b], axis=-1)
```

```python
import sys

NAME = "concat_heads__gqa_block_cached__mha_block_cached__near_ridge"
HDR = open("cdna_kernels/%s.s.ref" % NAME).read().split("; Override launch")[0]

WS_O = 0
WS_P = 8 << 20
WS_DIAG = 24 << 20
WS_BYTES = 32 << 20

S_WG = 2
SRD_X, SRD_WQ, SRD_K, SRD_V, SRD_WO, SRD_WS, SRD_OUT, SRD_DBG = 32, 36, 40, 44, 48, 52, 56, 60
S_BR, S_HG, S_LO, S_TG, S_W, S_B, S_HEAD = 64, 65, 66, 67, 68, 69, 70
S_T0, S_T1, S_T2, S_T3 = 71, 72, 73, 74
S_OWQ, S_OX, S_OKV, S_OWO, S_OO, S_OP = 75, 76, 77, 78, 79, 80
S_MW, S_MX, S_M8 = 81, 82, 83
S_C = 84
S_STAMP = 86
SLOT = 32768


def srd(r):
    return "s[%d:%d]" % (r, r + 3)


def vr(b, n=1, a=False):
    p = "a" if a else "v"
    return "%s%d" % (p, b) if n == 1 else "%s[%d:%d]" % (p, b, b + n - 1)


class K:
    def __init__(self, diag=False):
        self.l = []
        self.vm = []
        self.lg = []
        self.diag = diag
        self.nstamp = 0

    def e(self, s):
        self.l.append("    " + s)

    def lab(self, s):
        self.l.append(s + ":")

    def c(self, s):
        self.l.append("    ; " + s)

    def vmem(self, s, tag):
        self.e(s)
        self.vm.append(tag)

    def ds(self, s, tag):
        self.e(s)
        self.lg.append(tag)

    def _cnt(self, q, tags, cap):
        idx = [i for i, t in enumerate(q) if t in tags]
        if not idx:
            return None
        n = len(q) - 1 - max(idx)
        n = min(n, cap)
        del q[: len(q) - n]
        return n

    def wait(self, vm=(), lg=(), vm0=False, lg0=False):
        p = []
        if vm0:
            self.vm = []
            p.append("vmcnt(0)")
        else:
            n = self._cnt(self.vm, vm, 63)
            if n is not None:
                p.append("vmcnt(%d)" % n)
        if lg0:
            self.lg = []
            p.append("lgkmcnt(0)")
        else:
            n = self._cnt(self.lg, lg, 15)
            if n is not None:
                p.append("lgkmcnt(%d)" % n)
        if p:
            self.e("s_waitcnt " + " ".join(p))

    def stamp(self):
        if not self.diag:
            return
        r = S_STAMP + 2 * self.nstamp
        assert r + 1 <= 101
        self.nstamp += 1
        self.e("s_memrealtime s[%d:%d]" % (r, r + 1))
        self.wait(lg0=True)

    def dump_stamps(self, kidx):
        if not self.diag:
            return
        self.e("s_lshl_b32 s%d, s2, 2" % S_T0)
        self.e("s_add_u32 s%d, s%d, s%d" % (S_T0, S_T0, S_W))
        self.e("s_lshl_b32 s%d, s%d, 5" % (S_T0, S_T0))
        self.e("s_add_u32 s%d, s%d, %d" % (S_T0, S_T0, WS_DIAG + kidx * 65536))
        self.e("v_mov_b32 v1, 0")
        for i in range(self.nstamp):
            self.e("v_mov_b32 v2, s%d" % (S_STAMP + 2 * i))
            self.e("buffer_store_dword v2, v1, %s, s%d offen offset:%d" % (srd(SRD_WS), S_T0, 4 * i))
            self.e("s_nop 1")


def prologue(k, endlab):
    k.e("s_cmp_ge_u32 s2, 256")
    k.e("s_cbranch_scc1 %s" % endlab)
    k.e("s_load_dwordx16 s[4:19], s[0:1], 0")
    k.e("s_load_dwordx8 s[20:27], s[0:1], 64")
    k.e("s_load_dwordx2 s[28:29], s[0:1], 96")
    if k.diag:
        k.e("s_memrealtime s[%d:%d]" % (S_STAMP, S_STAMP + 1))
        k.nstamp = 1
    k.e("v_lshrrev_b32 v1, 6, v0")
    k.e("v_and_b32 v0, 63, v0")
    k.e("s_and_b32 s%d, s2, 3" % S_HG)
    k.e("v_readfirstlane_b32 s%d, v1" % S_W)
    k.e("s_bfe_u32 s%d, s2, 0x10002" % S_BR)
    k.e("s_bfe_u32 s%d, s2, 0x30003" % S_LO)
    k.e("s_bfe_u32 s%d, s2, 0x20006" % S_TG)
    k.e("s_lshl_b32 s%d, s%d, 3" % (S_HEAD, S_HG))
    k.e("s_add_u32 s%d, s%d, s%d" % (S_HEAD, S_HEAD, S_LO))
    k.e("s_lshl_b32 s%d, s%d, 2" % (S_B, S_TG))
    k.e("s_add_u32 s%d, s%d, s%d" % (S_B, S_B, S_W))
    k.e("s_lshl_b32 s%d, s%d, 12" % (S_MW, S_W))
    k.e("s_add_u32 s%d, s%d, 16384" % (S_MX, S_MW))
    k.e("s_lshl_b32 s%d, s%d, 13" % (S_M8, S_W))


def build_srds(k, which):
    k.e("s_waitcnt lgkmcnt(0)")
    k.e("s_cmp_eq_u32 s%d, 0" % S_BR)
    src = {"X": (4, 14), "K": (6, 16), "V": (8, 18), "WQ": (10, 20), "WO": (12, 22)}
    reg = {"X": SRD_X, "K": SRD_K, "V": SRD_V, "WQ": SRD_WQ, "WO": SRD_WO}
    size = {"X": (1 << 19,) * 2, "K": (1 << 20, 1 << 22), "V": (1 << 20, 1 << 22), "WQ": (1 << 22,) * 2, "WO": (1 << 22,) * 2}
    for n in which:
        if n in src:
            a, b = src[n]
            r = reg[n]
            k.e("s_cselect_b64 s[%d:%d], s[%d:%d], s[%d:%d]" % (r, r + 1, a, a + 1, b, b + 1))
            if size[n][0] == size[n][1]:
                k.e("s_mov_b32 s%d, 0x%x" % (r + 2, size[n][0]))
            else:
                k.e("s_mov_b32 s%d, 0x%x" % (r + 3, size[n][0]))
                k.e("s_cselect_b32 s%d, s%d, 0x%x" % (r + 2, r + 3, size[n][1]))
            k.e("s_mov_b32 s%d, 0x20000" % (r + 3))
        else:
            r, p, sz = {"WS": (SRD_WS, 28, WS_BYTES), "OUT": (SRD_OUT, 24, 1 << 20), "DBG": (SRD_DBG, 26, 256)}[n]
            k.e("s_mov_b64 s[%d:%d], s[%d:%d]" % (r, r + 1, p, p + 1))
            k.e("s_mov_b32 s%d, 0x%x" % (r + 2, sz))
            k.e("s_mov_b32 s%d, 0x20000" % (r + 3))


V_DWQ, V_DX, V_DK, V_DV, V_DWO = 4, 8, 12, 16, 20
V_RA, V_RB = 24, 28
V_L16 = 17
V_T = 32
V_FA = 40
V_FB = 72
V_ACC = 80
V_QB = 144
V_S = 176
V_KF = 192
V_PB = 224


def p1_dma_addrs(k):
    t = V_T
    k.e("v_lshrrev_b32 v%d, 4, v0" % t)
    k.e("v_and_b32 v%d, 15, v0" % (t + 1))
    k.e("v_lshlrev_b32 v%d, 2, v%d" % (t + 2, t))
    k.e("v_xor_b32 v%d, v%d, v%d" % (t + 2, t + 2, t + 1))
    k.e("v_lshlrev_b32 v%d, 4, v%d" % (t + 2, t + 2))
    k.e("v_lshl_add_u32 v%d, v%d, 13, v%d" % (V_DWQ, t, t + 2))
    k.e("s_lshl_b32 s%d, s%d, 17" % (S_T0, S_W))
    k.e("v_add_u32 v%d, s%d, v%d" % (V_DWQ, S_T0, V_DWQ))
    for i in range(1, 4):
        k.e("v_add_u32 v%d, %d, v%d" % (V_DWQ + i, i * (32768 - 1024), V_DWQ))
    k.e("v_lshl_add_u32 v%d, v%d, 8, v%d" % (V_DV, t, t + 2))
    k.e("v_xor_b32 v%d, v%d, v%d" % (t + 2, t, t + 1))
    k.e("v_lshlrev_b32 v%d, 4, v%d" % (t + 2, t + 2))
    k.e("v_lshl_add_u32 v%d, v%d, 8, v%d" % (V_DK, t, t + 2))
    for i in range(1, 4):
        k.e("v_xor_b32 v%d, %d, v%d" % (V_DK + i, i << 6, V_DK))
    k.e("v_lshrrev_b32 v%d, 3, v0" % t)
    k.e("v_and_b32 v%d, 7, v0" % (t + 1))
    k.e("v_lshrrev_b32 v%d, 1, v%d" % (t + 2, t))
    k.e("v_xor_b32 v%d, v%d, v%d" % (t + 2, t + 2, t + 1))
    k.e("v_lshlrev_b32 v%d, 4, v%d" % (t + 2, t + 2))
    k.e("v_lshl_add_u32 v%d, v%d, 10, v%d" % (V_DX, t, t + 2))
    k.e("v_xor_b32 v%d, 64, v%d" % (V_DX + 1, V_DX))
    k.e("v_add_u32 v%d, %d, v%d" % (V_DX + 2, 2 * 7168, V_DX))
    k.e("v_add_u32 v%d, %d, v%d" % (V_DX + 3, 3 * 7168, V_DX + 1))
    k.e("v_add_u32 v%d, %d, v%d" % (V_DX + 1, 7168, V_DX + 1))
    k.e("s_lshl_b32 s%d, s%d, 8" % (S_OWQ, S_HEAD))
    k.e("s_lshl_b32 s%d, s%d, 15" % (S_OX, S_B))
    k.e("s_lshr_b32 s%d, s%d, 2" % (S_T0, S_HEAD))
    k.e("s_lshl_b32 s%d, s%d, 3" % (S_T1, S_B))
    k.e("s_add_u32 s%d, s%d, s%d" % (S_T0, S_T0, S_T1))
    k.e("s_lshl_b32 s%d, s%d, 5" % (S_T1, S_B))
    k.e("s_add_u32 s%d, s%d, s%d" % (S_T1, S_T1, S_HEAD))
    k.e("s_cmp_eq_u32 s%d, 0" % S_BR)
    k.e("s_cselect_b32 s%d, s%d, s%d" % (S_OKV, S_T0, S_T1))
    k.e("s_lshl_b32 s%d, s%d, 13" % (S_OKV, S_OKV))


def p2_dma_addrs(k):
    t = V_T
    k.e("v_lshrrev_b32 v%d, 3, v0" % t)
    k.e("v_and_b32 v%d, 7, v0" % (t + 1))
    k.e("v_lshlrev_b32 v%d, 1, v%d" % (t + 2, t))
    k.e("v_and_b32 v%d, 4, v%d" % (t + 2, t + 2))
    k.e("v_xor_b32 v%d, v%d, v%d" % (t + 2, t + 2, t + 1))
    k.e("v_lshlrev_b32 v%d, 4, v%d" % (t + 2, t + 2))
    k.e("v_lshl_add_u32 v%d, v%d, 10, v%d" % (V_DWO, t, t + 2))
    k.e("s_lshl_b32 s%d, s%d, 16" % (S_T0, S_W))
    k.e("v_add_u32 v%d, s%d, v%d" % (V_DWO, S_T0, V_DWO))
    for i in range(1, 4):
        k.e("v_add_u32 v%d, %d, v%d" % (V_DWO + i, i * 7168, V_DWO))
    k.e("s_lshl_b32 s%d, s%d, 20" % (S_OWO, S_HG))
    k.e("s_lshl_b32 s%d, s%d, 7" % (S_T0, S_LO))
    k.e("s_add_u32 s%d, s%d, s%d" % (S_OWO, S_OWO, S_T0))


def dma_stage(k, st, nslot, pol=""):
    base = (st % nslot) * SLOT
    tag = "st%d" % st
    ops = []

    def grp(m_sreg, m_add, sr, voffs, soff, adv):
        def first():
            k.e("s_add_u32 m0, s%d, %d" % (m_sreg, base + m_add))
            k.e("s_nop 0")
            k.vmem("buffer_load_dwordx4 v%d, %s, s%d offen%s lds" % (voffs[0], srd(sr), soff, pol), tag)
        ops.append(first)
        for i in range(1, 4):
            def nxt(i=i):
                k.vmem("buffer_load_dwordx4 v%d, %s, s%d offen offset:%d%s lds" % (voffs[i], srd(sr), soff, i * 1024, pol), tag)
                if i == 3 and adv:
                    k.e("s_add_u32 s%d, s%d, %d" % (soff, soff, adv))
            ops.append(nxt)

    if st < 8:
        grp(S_MW, 0, SRD_WQ, [V_DWQ + i for i in range(4)], S_OWQ, 64 * 8192)
        grp(S_MX, 0, SRD_X, [V_DX + i for i in range(4)], S_OX, 128)
    elif st == 8:
        grp(S_M8, 0, SRD_K, [V_DK + i for i in range(4)], S_OKV, 4096)
        grp(S_M8, 4096, SRD_K, [V_DK + i for i in range(4)], S_OKV, -4096 & 0xffffffff)
    elif st == 9:
        grp(S_M8, 0, SRD_V, [V_DV] * 4, S_OKV, 4096)
        grp(S_M8, 4096, SRD_V, [V_DV] * 4, S_OKV, 0)
    else:
        grp(S_M8, 0, SRD_WO, [V_DWO + i for i in range(4)], S_OWO, 4 * 8192)
        grp(S_M8, 4096, SRD_WO, [V_DWO + i for i in range(4)], S_OWO, 256 * 1024 - 4 * 8192)
    return ops


def tr_lane_terms(k, t):
    k.e("v_lshrrev_b32 v%d, 5, v0" % t)
    k.e("v_bfe_u32 v%d, v0, 2, 2" % (t + 1))
    k.e("v_bfe_u32 v%d, v0, 4, 1" % (t + 2))
    k.e("v_and_b32 v%d, 3, v0" % (t + 3))


def pi_term(k, dst, t):
    k.e("v_and_b32 v%d, 1, v0" % dst)
    k.e("v_lshlrev_b32 v%d, 4, v%d" % (dst, dst))
    k.e("v_and_b32 v%d, 2, v0" % (t + 4))
    k.e("v_lshl_add_u32 v%d, v%d, 2, v%d" % (dst, t + 4, dst))
    k.e("v_lshl_add_u32 v%d, v%d, 5, v%d" % (dst, t + 2, dst))


def p1_read_addrs(k):
    t = V_T
    tr_lane_terms(k, t)
    pi_term(k, V_RA, t)
    k.e("v_lshl_add_u32 v%d, v%d, 3, v%d" % (t + 4, t, t + 1))
    k.e("v_lshl_add_u32 v%d, v%d, 8, v%d" % (V_RA, t + 4, V_RA))
    k.e("v_lshl_add_u32 v%d, v%d, 6, v%d" % (V_RA, t + 1, V_RA))
    for dt in range(1, 4):
        k.e("v_xor_b32 v%d, %d, v%d" % (V_RA + dt, dt << 6, V_RA))
    k.e("v_and_b32 v%d, 31, v0" % (t + 4))
    k.e("v_bfe_u32 v%d, v0, 1, 3" % (t + 5))
    k.e("v_xor_b32 v%d, v%d, v%d" % (t + 5, t + 5, t))
    k.e("v_lshlrev_b32 v%d, 4, v%d" % (t + 5, t + 5))
    k.e("v_lshl_add_u32 v%d, v%d, 7, v%d" % (V_RB, t + 4, t + 5))
    k.e("v_add_u32 v%d, s%d, v%d" % (V_RB, S_MX, V_RB))
    for s in range(1, 4):
        k.e("v_xor_b32 v%d, %d, v%d" % (V_RB + s, s << 5, V_RB))


def mfma(k, d, a, b, first, aa=False, ba=False):
    k.e("v_mfma_f32_32x32x16_bf16 %s, %s, %s, %s" % (vr(d, 16), vr(a, 4, aa), vr(b, 4, ba), "0" if first else vr(d, 16)))


def p1_reads(k, g, nslot):
    st, s = g // 4, g % 4
    fa, fb = V_FA + 16 * (g & 1), V_FB + 4 * (g & 1)
    ops = [lambda: k.ds("ds_read_b128 %s, v%d" % (vr(fb, 4), V_RB + s), "b%d" % g)]
    for dt in range(4):
        for e in range(2):
            ops.append(lambda dt=dt, e=e: k.ds("ds_read_b64_tr_b16 %s, v%d offset:%d" % (vr(fa + 4 * dt + 2 * e, 2), V_RA + dt, s * 4096 + e * 1024), "a%d_%d" % (g, dt)))
    return ops


def adv_read_addrs(k, regs, st_from, st_to, nslot):
    d = ((st_to % nslot) - (st_from % nslot)) * SLOT
    return [lambda r=r: k.e("v_add_u32 v%d, 0x%x, v%d" % (r, d & 0xffffffff, r)) for r in regs]


def phase1(k, nslot, last_stage, pol=""):
    p1_dma_addrs(k)
    build_srds(k, ["WQ", "X", "K", "V", "WS"] + (["WO", "OUT", "DBG"] if last_stage >= 10 else []))
    for st in range(nslot):
        for op in dma_stage(k, st, nslot, pol):
            op()
    p1_read_addrs(k)
    if last_stage >= 10:
        p2_dma_addrs(k)
    k.e("v_lshlrev_b32 v%d, 4, v0" % V_L16)
    k.wait(vm=("st0",))
    k.e("s_barrier")
    k.stamp()
    for op in p1_reads(k, 0, nslot):
        op()
    for g in range(32):
        st, s = g // 4, g % 4
        fa, fb = V_FA + 16 * (g & 1), V_FB + 4 * (g & 1)
        pre, fill = [], []
        if s == 3:
            k.wait(vm=("st%d" % (st + 1),), lg0=True)
            k.e("s_barrier")
            if st < 7:
                pre += adv_read_addrs(k, list(range(V_RB, V_RB + 4)) + list(range(V_RA, V_RA + 4)), st, st + 1, nslot)
            if st + nslot <= last_stage:
                fill += dma_stage(k, st + nslot, nslot, pol)
        rd = p1_reads(k, g + 1, nslot) if g < 31 else []
        if s == 3 and st < 7:
            seq = [pre[0], rd[0], pre[4], rd[1], rd[2], pre[5], rd[3], rd[4], pre[6], rd[5], rd[6], pre[7], rd[7], rd[8]] + pre[1:4]
            split = [5, 3, 3, 6]
        else:
            seq = rd
            split = [4, 3, 2, 0]
        pos = 0
        for dt in range(4):
            k.wait(lg=("b%d" % g, "a%d_%d" % (g, dt)))
            mfma(k, V_ACC + 16 * dt, fa + 4 * dt, fb, g == 0)
            for op in seq[pos:pos + split[dt]]:
                op()
            pos += split[dt]
            for op in fill[2 * dt:2 * dt + 2]:
                op()


def attention(k, nslot, last_stage, pol="", opol=""):
    t = V_T
    kb, vb = (8 % nslot) * SLOT, (9 % nslot) * SLOT
    k.e("v_lshrrev_b32 v%d, 5, v0" % t)
    k.e("v_and_b32 v%d, 15, v0" % (t + 1))
    k.e("v_xor_b32 v%d, v%d, v%d" % (t + 1, t + 1, t))
    k.e("v_lshlrev_b32 v%d, 4, v%d" % (t + 1, t + 1))
    k.e("v_and_b32 v%d, 31, v0" % (t + 2))
    k.e("v_lshl_add_u32 v%d, v%d, 8, v%d" % (t + 1, t + 2, t + 1))
    k.e("s_add_u32 s%d, s%d, %d" % (S_T0, S_M8, kb))
    k.e("v_add_u32 v%d, s%d, v%d" % (t + 1, S_T0, t + 1))
    k.wait(vm=("st8",))
    for i in range(8):
        if i:
            k.e("v_xor_b32 v%d, %d, v%d" % (t + 2, i << 5, t + 1))
        k.ds("ds_read_b128 %s, v%d" % (vr(V_KF + 4 * i, 4), t + 2 if i else t + 1), "k%d" % i)
    tr_lane_terms(k, t)
    k.e("v_lshlrev_b32 v%d, 3, v%d" % (V_RA, t + 3))
    k.e("v_lshl_add_u32 v%d, v%d, 5, v%d" % (V_RA, t + 2, V_RA))
    k.e("v_lshl_add_u32 v%d, v%d, 2, v%d" % (t + 4, t, t + 1))
    k.e("v_lshl_add_u32 v%d, v%d, 8, v%d" % (V_RA, t + 4, V_RA))
    k.e("v_lshl_add_u32 v%d, v%d, 6, v%d" % (V_RA, t + 1, V_RA))
    k.e("s_add_u32 s%d, s%d, %d" % (S_T0, S_M8, vb))
    k.e("v_add_u32 v%d, s%d, v%d" % (V_RA, S_T0, V_RA))
    for dt in range(1, 4):
        k.e("v_xor_b32 v%d, %d, v%d" % (V_RA + dt, dt << 6, V_RA))
    k.e("s_mov_b32 s%d, 0x3e0293ee" % S_C)
    for i in range(8):
        for j in range(4):
            k.e("v_cvt_pk_bf16_f32 v%d, v%d, v%d" % (V_QB + 4 * i + j, V_ACC + 8 * i + 2 * j, V_ACC + 8 * i + 2 * j + 1))
        if i >= 1:
            k.wait(lg=("k%d" % (i - 1),))
            mfma(k, V_S, V_KF + 4 * (i - 1), V_QB + 4 * (i - 1), i == 1)
    k.wait(lg=("k7",), vm=("st9",))
    k.e("s_nop 0")
    mfma(k, V_S, V_KF + 28, V_QB + 28, False)
    for dt in range(4):
        for u in range(2):
            for e in range(2):
                k.ds("ds_read_b64_tr_b16 %s, v%d offset:%d" % (vr(V_FA + 8 * dt + 4 * u + 2 * e, 2), V_RA + dt, (16 * u + 8 * e) * 256), "v%d" % dt)
    m, m2 = t, t + 1
    k.e("v_max3_f32 v%d, v%d, v%d, v%d" % (m, V_S, V_S + 1, V_S + 2))
    k.e("v_max3_f32 v%d, v%d, v%d, v%d" % (m2, V_S + 3, V_S + 4, V_S + 5))
    for i in range(6, 14, 4):
        k.e("v_max3_f32 v%d, v%d, v%d, v%d" % (m, m, V_S + i, V_S + i + 1))
        k.e("v_max3_f32 v%d, v%d, v%d, v%d" % (m2, m2, V_S + i + 2, V_S + i + 3))
    k.e("v_max3_f32 v%d, v%d, v%d, v%d" % (m, m, V_S + 14, V_S + 15))
    k.e("v_max_f32 v%d, v%d, v%d" % (m, m, m2))
    k.e("v_mov_b32 v%d, v%d" % (m2, m))
    k.e("s_nop 1")
    k.e("v_permlane32_swap_b32 v%d, v%d" % (m, m2))
    k.e("v_max_f32 v%d, v%d, v%d" % (m, m, m2))
    k.e("v_mul_f32 v%d, s%d, v%d" % (m, S_C, m))
    for i in range(16):
        k.e("v_fma_f32 v%d, v%d, s%d, -v%d" % (V_S + i, V_S + i, S_C, m))
    for i in range(16):
        k.e("v_exp_f32 v%d, v%d" % (V_S + i, V_S + i))
    k.e("v_add_f32 v%d, v%d, v%d" % (m, V_S, V_S + 1))
    k.e("v_add_f32 v%d, v%d, v%d" % (m2, V_S + 2, V_S + 3))
    for i in range(4, 16, 2):
        k.e("v_add_f32 v%d, v%d, v%d" % (m, m, V_S + i))
        k.e("v_add_f32 v%d, v%d, v%d" % (m2, m2, V_S + i + 1))
    k.e("v_add_f32 v%d, v%d, v%d" % (m, m, m2))
    k.e("v_mov_b32 v%d, v%d" % (m2, m))
    k.e("s_nop 1")
    k.e("v_permlane32_swap_b32 v%d, v%d" % (m, m2))
    k.e("v_add_f32 v%d, v%d, v%d" % (m, m, m2))
    k.e("v_rcp_f32 v%d, v%d" % (m, m))
    k.e("s_nop 0")
    for i in range(16):
        k.e("v_mul_f32 v%d, v%d, v%d" % (V_S + i, V_S + i, m))
    for j in range(8):
        k.e("v_cvt_pk_bf16_f32 v%d, v%d, v%d" % (V_PB + j, V_S + 2 * j, V_S + 2 * j + 1))
    k.e("s_lshl_b32 s%d, s%d, 4" % (S_T0, S_BR))
    k.e("s_add_u32 s%d, s%d, s%d" % (S_T0, S_T0, S_B))
    k.e("s_lshl_b32 s%d, s%d, 5" % (S_T0, S_T0))
    k.e("s_add_u32 s%d, s%d, s%d" % (S_T1, S_T0, S_HEAD))
    k.e("s_lshl_b32 s%d, s%d, 13" % (S_OO, S_T1))
    k.e("s_add_u32 s%d, s%d, 4096" % (S_T2, S_OO))
    for dt in range(4):
        k.wait(lg=("v%d" % dt,))
        mfma(k, V_ACC + 16 * dt, V_FA + 8 * dt, V_PB, True)
        mfma(k, V_ACC + 16 * dt, V_FA + 8 * dt + 4, V_PB + 4, False)
    k.e("s_nop 5")
    for i in range(8):
        if i == 6:
            k.e("s_nop 1")
        for j in range(4):
            k.e("v_cvt_pk_bf16_f32 v%d, v%d, v%d" % (V_QB + 4 * i + j, V_ACC + 8 * i + 2 * j, V_ACC + 8 * i + 2 * j + 1))
        k.vmem("buffer_store_dwordx4 %s, v%d, %s, s%d offen offset:%d%s" % (vr(V_QB + 4 * i, 4), V_L16, srd(SRD_WS), S_OO if i < 4 else S_T2, (i & 3) * 1024, opol), "ost")


def p2_read_addrs(k, first_stage, nslot):
    t = V_T
    tr_lane_terms(k, t)
    pi_term(k, V_RA, t)
    k.e("v_lshl_add_u32 v%d, v%d, 2, v%d" % (t + 4, t, t + 1))
    k.e("v_lshl_add_u32 v%d, v%d, 7, v%d" % (V_RA, t + 4, V_RA))
    k.e("v_lshrrev_b32 v%d, 1, v%d" % (t + 4, t + 1))
    k.e("v_lshl_add_u32 v%d, v%d, 6, v%d" % (V_RA, t + 4, V_RA))
    b = (first_stage % nslot) * SLOT
    if b:
        k.e("v_add_u32 v%d, 0x%x, v%d" % (V_RA, b, V_RA))
    k.e("v_xor_b32 v%d, 64, v%d" % (V_RA + 1, V_RA))


def o_loads(k, lo, hi, opol):
    for ks in range(lo, hi):
        k.vmem("buffer_load_dwordx4 %s, v%d, %s, s%d offen offset:%d%s" % (vr(4 * ks, 4, True), V_L16, srd(SRD_WS), S_OO, (ks & 3) * 1024, opol), "o%d" % ks)
        if ks & 3 == 3:
            k.e("s_add_u32 s%d, s%d, 4096" % (S_OO, S_OO))


def o_load_base(k):
    k.e("s_lshl_b32 s%d, s%d, 4" % (S_T0, S_BR))
    k.e("s_add_u32 s%d, s%d, s%d" % (S_T0, S_T0, S_B))
    k.e("s_lshl_b32 s%d, s%d, 2" % (S_T0, S_T0))
    k.e("s_add_u32 s%d, s%d, s%d" % (S_T0, S_T0, S_HG))
    k.e("s_lshl_b32 s%d, s%d, 16" % (S_OO, S_T0))


def phase2_compute(k, nslot, all_landed):
    NSET = 4

    def reads(ks):
        fa = V_FA + 8 * (ks % NSET)
        for nt in range(2):
            for e in range(2):
                k.ds("ds_read_b64_tr_b16 %s, v%d offset:%d" % (vr(fa + 4 * nt + 2 * e, 2), V_RA + nt, ((ks % 16) * 16 + 8 * e) * 128), "w%d" % ks)

    def enter(ks):
        if ks % 16 == 0:
            st = 10 + ks // 16
            if ks:
                for op in adv_read_addrs(k, [V_RA, V_RA + 1], st - 1, st, nslot):
                    op()
            if not all_landed:
                k.wait(vm=("st%d" % st,))
                k.e("s_barrier")
    for ks in range(NSET - 1):
        enter(ks)
        reads(ks)
    for ks in range(64):
        k.wait(vm=("o%d" % ks,), lg=("w%d" % ks,))
        fa = V_FA + 8 * (ks % NSET)
        mfma(k, V_ACC, fa, 4 * ks, ks == 0, ba=True)
        mfma(k, V_ACC + 16, fa + 4, 4 * ks, ks == 0, ba=True)
        n = ks + NSET - 1
        if n < 64:
            enter(n)
            reads(n)


def part_base(k, j_sreg, hg_sreg):
    k.e("s_lshl_b32 s%d, s%d, 2" % (S_T0, S_BR))
    k.e("s_add_u32 s%d, s%d, s%d" % (S_T0, S_T0, S_TG))
    k.e("s_lshl_b32 s%d, s%d, 3" % (S_T0, S_T0))
    k.e("s_add_u32 s%d, s%d, s%d" % (S_T0, S_T0, S_LO))
    k.e("s_lshl_b32 s%d, s%d, 2" % (S_T0, S_T0))
    k.e("s_add_u32 s%d, s%d, s%d" % (S_T0, S_T0, j_sreg))
    k.e("s_lshl_b32 s%d, s%d, 2" % (S_T0, S_T0))
    if hg_sreg is not None:
        k.e("s_add_u32 s%d, s%d, s%d" % (S_T0, S_T0, hg_sreg))
    k.e("s_lshl_b32 s%d, s%d, 13" % (S_T0, S_T0))
    k.e("s_add_u32 s%d, s%d, 0x%x" % (S_OP, S_T0, WS_P))


def part_store(k, opol):
    part_base(k, S_W, S_HG)
    k.e("s_add_u32 s%d, s%d, 4096" % (S_T2, S_OP))
    k.e("s_nop 3")
    for i in range(8):
        k.vmem("buffer_store_dwordx4 %s, v%d, %s, s%d offen offset:%d%s" % (vr(V_ACC + 4 * i, 4), V_L16, srd(SRD_WS), S_OP if i < 4 else S_T2, (i & 3) * 1024, opol), "pst")


def reduce_store(k, opol):
    part_base(k, S_HG, None)
    k.e("s_lshl_b32 s%d, s%d, 11" % (S_T0, S_W))
    k.e("s_add_u32 s%d, s%d, s%d" % (S_OP, S_OP, S_T0))
    for q in range(4):
        for i in range(2):
            k.vmem("buffer_load_dwordx4 %s, v%d, %s, s%d offen offset:%d%s" % (vr(V_KF + 8 * q + 4 * i, 4), V_L16, srd(SRD_WS), S_OP, i * 1024, opol), "p%d" % q)
        if q < 3:
            k.e("s_add_u32 s%d, s%d, 8192" % (S_OP, S_OP))
    t = V_T
    k.e("v_and_b32 v%d, 31, v0" % t)
    k.e("v_lshrrev_b32 v%d, 5, v0" % (t + 1))
    k.e("v_lshlrev_b32 v%d, 11, v%d" % (t, t))
    k.e("v_lshl_add_u32 v%d, v%d, 4, v%d" % (t, t + 1, t))
    k.e("s_lshl_b32 s%d, s%d, 2" % (S_T0, S_TG))
    k.e("s_add_u32 s%d, s%d, s%d" % (S_T0, S_T0, S_HG))
    k.e("s_lshl_b32 s%d, s%d, 16" % (S_T0, S_T0))
    k.e("s_lshl_b32 s%d, s%d, 10" % (S_T1, S_BR))
    k.e("s_add_u32 s%d, s%d, s%d" % (S_T0, S_T0, S_T1))
    k.e("s_lshl_b32 s%d, s%d, 7" % (S_T1, S_LO))
    k.e("s_add_u32 s%d, s%d, s%d" % (S_T0, S_T0, S_T1))
    k.e("s_lshl_b32 s%d, s%d, 5" % (S_T1, S_W))
    k.e("s_add_u32 s%d, s%d, s%d" % (S_T0, S_T0, S_T1))
    k.wait(vm=("p1",))
    for i in range(8):
        k.e("v_add_f32 v%d, v%d, v%d" % (V_KF + i, V_KF + i, V_KF + 8 + i))
    k.wait(vm=("p3",))
    for i in range(8):
        k.e("v_add_f32 v%d, v%d, v%d" % (V_KF + 16 + i, V_KF + 16 + i, V_KF + 24 + i))
    for i in range(8):
        k.e("v_add_f32 v%d, v%d, v%d" % (V_KF + i, V_KF + i, V_KF + 16 + i))
    for j in range(4):
        k.e("v_cvt_pk_bf16_f32 v%d, v%d, v%d" % (V_PB + j, V_KF + 2 * j, V_KF + 2 * j + 1))
    k.vmem("buffer_store_dwordx4 %s, v%d, %s, s%d offen" % (vr(V_PB, 4), t, srd(SRD_OUT), S_T0), "out")


def kernel_text(name, k, nv=256, acc=256):
    return ("\n.globl %s\n.p2align 8\n.type %s,@function\n%s:\n" % (name, name, name)) + "\n".join(k.l) + "\n", \
        (".p2align 6\n.amdhsa_kernel %s\n  .amdhsa_next_free_vgpr %d\n  .amdhsa_next_free_sgpr 102\n  .amdhsa_accum_offset %d\n"
         "  .amdhsa_group_segment_fixed_size 0\n  .amdhsa_kernarg_size 104\n  .amdhsa_user_sgpr_count 2\n"
         "  .amdhsa_user_sgpr_kernarg_segment_ptr 1\n  .amdhsa_system_sgpr_workgroup_id_x 1\n.end_amdhsa_kernel\n" % (name, nv, acc))


def finish(launches, kernels):
    s = HDR
    for l in launches:
        s += l + "\n"
    s += '.amdgcn_target "amdgcn-amd-amdhsa--gfx950"\n.text\n'
    s += "".join(t for t, _ in kernels)
    s += '.section .rodata,"a"\n'
    s += "".join(d for _, d in kernels)
    return s


def gen_three(diag=False, extra_empty=0):
    ks = []
    k = K(diag)
    prologue(k, "L1_end")
    phase1(k, 5, 9)
    k.stamp()
    attention(k, 5, 9)
    k.stamp()
    k.dump_stamps(0)
    k.lab("L1_end")
    k.e("s_endpgm")
    ks.append(kernel_text("p1_kernel", k))
    k = K(diag)
    prologue(k, "L2_end")
    p2_dma_addrs(k)
    k.e("v_lshlrev_b32 v%d, 4, v0" % V_L16)
    o_load_base(k)
    build_srds(k, ["WO", "WS"])
    for q in range(4):
        for op in dma_stage(k, 10 + q, 5):
            op()
        o_loads(k, 16 * q, 16 * q + 16 if q < 3 else 56, "")
    p2_read_addrs(k, 10, 5)
    k.wait(vm=("st10",))
    o_loads(k, 56, 64, "")
    k.stamp()
    phase2_compute(k, 5, False)
    k.stamp()
    part_store(k, "")
    k.dump_stamps(1)
    k.lab("L2_end")
    k.e("s_endpgm")
    ks.append(kernel_text("p2_kernel", k, 512, 256))
    k = K(diag)
    prologue(k, "L3_end")
    k.e("v_lshlrev_b32 v%d, 4, v0" % V_L16)
    build_srds(k, ["WS", "OUT"])
    reduce_store(k, "")
    k.stamp()
    k.dump_stamps(2)
    k.lab("L3_end")
    k.e("s_endpgm")
    ks.append(kernel_text("p3_kernel", k))
    L = ["; @launch kernel=p1_kernel grid=(256,1,1) block=(256,1,1) lds=163840",
         "; @launch kernel=p2_kernel grid=(256,1,1) block=(256,1,1) lds=163840",
         "; @launch kernel=p3_kernel grid=(256,1,1) block=(256,1,1) lds=0"]
    if extra_empty:
        k = K()
        k.e("s_endpgm")
        ks.append(kernel_text("nop_kernel", k, 8, 8))
        L += ["; @launch kernel=nop_kernel grid=(256,1,1) block=(256,1,1) lds=0"] * extra_empty
    return finish(L, ks)


if __name__ == "__main__":
    mode, out = sys.argv[1], sys.argv[2]
    kw = dict(a.split("=") for a in sys.argv[3:])
    kw = {a: int(b) for a, b in kw.items()}
    open(out, "w").write(globals()["gen_" + mode](**kw))
```

```python
import sys

NAME = "concat_heads__gqa_block_cached__mha_block_cached__near_ridge"
HDR = open("cdna_kernels/%s.s.ref" % NAME).read().split("; Override launch")[0]

WS_O = 0
WS_P = 8 << 20
WS_DIAG = 24 << 20
WS_BYTES = 32 << 20

S_WG = 2
SRD_X, SRD_WQ, SRD_K, SRD_V, SRD_WO, SRD_WS, SRD_OUT, SRD_DBG = 32, 36, 40, 44, 48, 52, 56, 60
S_BR, S_HG, S_LO, S_TG, S_W, S_B, S_HEAD = 64, 65, 66, 67, 68, 69, 70
S_T0, S_T1, S_T2, S_T3 = 71, 72, 73, 74
S_OWQ, S_OX, S_OKV, S_OWO, S_OO, S_OP = 75, 76, 77, 78, 79, 80
S_MW, S_MX, S_M8 = 81, 82, 83
S_C = 84
S_STAMP = 86
SLOT = 32768


def srd(r):
    return "s[%d:%d]" % (r, r + 3)


def vr(b, n=1, a=False):
    p = "a" if a else "v"
    return "%s%d" % (p, b) if n == 1 else "%s[%d:%d]" % (p, b, b + n - 1)


class K:
    def __init__(self, diag=False):
        self.l = []
        self.vm = []
        self.lg = []
        self.diag = diag
        self.nstamp = 0

    def e(self, s):
        self.l.append("    " + s)

    def lab(self, s):
        self.l.append(s + ":")

    def c(self, s):
        self.l.append("    ; " + s)

    def vmem(self, s, tag):
        self.e(s)
        self.vm.append(tag)

    def ds(self, s, tag):
        self.e(s)
        self.lg.append(tag)

    def _cnt(self, q, tags, cap):
        idx = [i for i, t in enumerate(q) if t in tags]
        if not idx:
            return None
        n = len(q) - 1 - max(idx)
        n = min(n, cap)
        del q[: len(q) - n]
        return n

    def wait(self, vm=(), lg=(), vm0=False, lg0=False):
        p = []
        if vm0:
            self.vm = []
            p.append("vmcnt(0)")
        else:
            n = self._cnt(self.vm, vm, 63)
            if n is not None:
                p.append("vmcnt(%d)" % n)
        if lg0:
            self.lg = []
            p.append("lgkmcnt(0)")
        else:
            n = self._cnt(self.lg, lg, 15)
            if n is not None:
                p.append("lgkmcnt(%d)" % n)
        if p:
            self.e("s_waitcnt " + " ".join(p))

    def stamp(self):
        if not self.diag:
            return
        r = S_STAMP + self.nstamp
        assert r <= 100
        self.nstamp += 1
        self.e("s_memrealtime s[30:31]" if self.diag == 1 else "s_memtime s[30:31]")
        self.wait(lg0=True)
        self.e("s_mov_b32 s%d, s30" % r)

    def dump_stamps(self, kidx):
        if not self.diag:
            return
        self.e("s_lshl_b32 s%d, s2, 2" % S_T0)
        self.e("s_add_u32 s%d, s%d, s%d" % (S_T0, S_T0, S_W))
        self.e("s_lshl_b32 s%d, s%d, 6" % (S_T0, S_T0))
        self.e("s_add_u32 s%d, s%d, %d" % (S_T0, S_T0, WS_DIAG + kidx * 131072))
        self.e("v_mov_b32 v1, 0")
        self.e("s_memtime s[30:31]")
        self.wait(lg0=True)
        self.e("s_sub_u32 s101, s30, s101")
        for i in list(range(self.nstamp)) + [15]:
            self.e("v_mov_b32 v2, s%d" % (S_STAMP + i))
            self.e("buffer_store_dword v2, v1, %s, s%d offen offset:%d" % (srd(SRD_WS), S_T0, 4 * i))
            self.e("s_nop 1")


def prologue(k, endlab):
    k.e("s_cmp_ge_u32 s2, 256")
    k.e("s_cbranch_scc1 %s" % endlab)
    k.e("s_load_dwordx16 s[4:19], s[0:1], 0")
    k.e("s_load_dwordx8 s[20:27], s[0:1], 64")
    k.e("s_load_dwordx2 s[28:29], s[0:1], 96")
    if k.diag:
        k.e("%s s[%d:%d]" % ("s_memrealtime" if k.diag == 1 else "s_memtime", S_STAMP, S_STAMP + 1))
        k.e("s_memtime s[100:101]")
        k.nstamp = 1
    k.e("v_lshrrev_b32 v1, 6, v0")
    k.e("v_and_b32 v0, 63, v0")
    k.e("s_and_b32 s%d, s2, 3" % S_HG)
    k.e("v_readfirstlane_b32 s%d, v1" % S_W)
    k.e("s_bfe_u32 s%d, s2, 0x10002" % S_BR)
    k.e("s_bfe_u32 s%d, s2, 0x30003" % S_LO)
    k.e("s_bfe_u32 s%d, s2, 0x20006" % S_TG)
    k.e("s_lshl_b32 s%d, s%d, 3" % (S_HEAD, S_HG))
    k.e("s_add_u32 s%d, s%d, s%d" % (S_HEAD, S_HEAD, S_LO))
    k.e("s_lshl_b32 s%d, s%d, 2" % (S_B, S_TG))
    k.e("s_add_u32 s%d, s%d, s%d" % (S_B, S_B, S_W))
    k.e("s_lshl_b32 s%d, s%d, 12" % (S_MW, S_W))
    k.e("s_add_u32 s%d, s%d, 16384" % (S_MX, S_MW))
    k.e("s_lshl_b32 s%d, s%d, 13" % (S_M8, S_W))


def build_srds(k, which):
    k.e("s_waitcnt lgkmcnt(0)")
    if k.diag:
        k.e("s_mov_b32 s101, s100")
    k.stamp()
    k.e("s_cmp_eq_u32 s%d, 0" % S_BR)
    src = {"X": (4, 14), "K": (6, 16), "V": (8, 18), "WQ": (10, 20), "WO": (12, 22)}
    reg = {"X": SRD_X, "K": SRD_K, "V": SRD_V, "WQ": SRD_WQ, "WO": SRD_WO}
    size = {"X": (1 << 19,) * 2, "K": (1 << 20, 1 << 22), "V": (1 << 20, 1 << 22), "WQ": (1 << 22,) * 2, "WO": (1 << 22,) * 2}
    for n in which:
        if n in src:
            a, b = src[n]
            r = reg[n]
            k.e("s_cselect_b64 s[%d:%d], s[%d:%d], s[%d:%d]" % (r, r + 1, a, a + 1, b, b + 1))
            if size[n][0] == size[n][1]:
                k.e("s_mov_b32 s%d, 0x%x" % (r + 2, size[n][0]))
            else:
                k.e("s_mov_b32 s%d, 0x%x" % (r + 3, size[n][0]))
                k.e("s_cselect_b32 s%d, s%d, 0x%x" % (r + 2, r + 3, size[n][1]))
            k.e("s_mov_b32 s%d, 0x20000" % (r + 3))
        else:
            r, p, sz = {"WS": (SRD_WS, 28, WS_BYTES), "OUT": (SRD_OUT, 24, 1 << 20), "DBG": (SRD_DBG, 26, 256)}[n]
            k.e("s_mov_b64 s[%d:%d], s[%d:%d]" % (r, r + 1, p, p + 1))
            k.e("s_mov_b32 s%d, 0x%x" % (r + 2, sz))
            k.e("s_mov_b32 s%d, 0x20000" % (r + 3))


V_DWQ, V_DX, V_DK, V_DV, V_DWO = 4, 8, 12, 16, 20
V_RA, V_RB = 24, 28
V_L16 = 17
V_T = 32
V_FA = 40
V_FB = 72
V_ACC = 80
V_QB = 144
V_S = 176
V_KF = 192
V_PB = 224


def p1_dma_addrs(k):
    t = V_T
    k.e("v_lshrrev_b32 v%d, 4, v0" % t)
    k.e("v_and_b32 v%d, 15, v0" % (t + 1))
    k.e("v_lshlrev_b32 v%d, 2, v%d" % (t + 2, t))
    k.e("v_xor_b32 v%d, v%d, v%d" % (t + 2, t + 2, t + 1))
    k.e("v_lshlrev_b32 v%d, 4, v%d" % (t + 2, t + 2))
    k.e("v_lshl_add_u32 v%d, v%d, 13, v%d" % (V_DWQ, t, t + 2))
    k.e("s_lshl_b32 s%d, s%d, 17" % (S_T0, S_W))
    k.e("v_add_u32 v%d, s%d, v%d" % (V_DWQ, S_T0, V_DWQ))
    for i in range(1, 4):
        k.e("v_add_u32 v%d, %d, v%d" % (V_DWQ + i, i * (32768 - 1024), V_DWQ))
    k.e("v_lshl_add_u32 v%d, v%d, 8, v%d" % (V_DV, t, t + 2))
    k.e("v_xor_b32 v%d, v%d, v%d" % (t + 2, t, t + 1))
    k.e("v_lshlrev_b32 v%d, 4, v%d" % (t + 2, t + 2))
    k.e("v_lshl_add_u32 v%d, v%d, 8, v%d" % (V_DK, t, t + 2))
    for i in range(1, 4):
        k.e("v_xor_b32 v%d, %d, v%d" % (V_DK + i, i << 6, V_DK))
    k.e("v_lshrrev_b32 v%d, 3, v0" % t)
    k.e("v_and_b32 v%d, 7, v0" % (t + 1))
    k.e("v_lshrrev_b32 v%d, 1, v%d" % (t + 2, t))
    k.e("v_xor_b32 v%d, v%d, v%d" % (t + 2, t + 2, t + 1))
    k.e("v_lshlrev_b32 v%d, 4, v%d" % (t + 2, t + 2))
    k.e("v_lshl_add_u32 v%d, v%d, 10, v%d" % (V_DX, t, t + 2))
    k.e("v_xor_b32 v%d, 64, v%d" % (V_DX + 1, V_DX))
    k.e("v_add_u32 v%d, %d, v%d" % (V_DX + 2, 2 * 7168, V_DX))
    k.e("v_add_u32 v%d, %d, v%d" % (V_DX + 3, 3 * 7168, V_DX + 1))
    k.e("v_add_u32 v%d, %d, v%d" % (V_DX + 1, 7168, V_DX + 1))
    k.e("s_lshl_b32 s%d, s%d, 8" % (S_OWQ, S_HEAD))
    k.e("s_lshl_b32 s%d, s%d, 15" % (S_OX, S_B))
    k.e("s_lshr_b32 s%d, s%d, 2" % (S_T0, S_HEAD))
    k.e("s_lshl_b32 s%d, s%d, 3" % (S_T1, S_B))
    k.e("s_add_u32 s%d, s%d, s%d" % (S_T0, S_T0, S_T1))
    k.e("s_lshl_b32 s%d, s%d, 5" % (S_T1, S_B))
    k.e("s_add_u32 s%d, s%d, s%d" % (S_T1, S_T1, S_HEAD))
    k.e("s_cmp_eq_u32 s%d, 0" % S_BR)
    k.e("s_cselect_b32 s%d, s%d, s%d" % (S_OKV, S_T0, S_T1))
    k.e("s_lshl_b32 s%d, s%d, 13" % (S_OKV, S_OKV))


def p2_dma_addrs(k):
    t = V_T
    k.e("v_lshrrev_b32 v%d, 3, v0" % t)
    k.e("v_and_b32 v%d, 7, v0" % (t + 1))
    k.e("v_lshlrev_b32 v%d, 1, v%d" % (t + 2, t))
    k.e("v_and_b32 v%d, 4, v%d" % (t + 2, t + 2))
    k.e("v_xor_b32 v%d, v%d, v%d" % (t + 2, t + 2, t + 1))
    k.e("v_lshlrev_b32 v%d, 4, v%d" % (t + 2, t + 2))
    k.e("v_lshl_add_u32 v%d, v%d, 10, v%d" % (V_DWO, t, t + 2))
    k.e("s_lshl_b32 s%d, s%d, 16" % (S_T0, S_W))
    k.e("v_add_u32 v%d, s%d, v%d" % (V_DWO, S_T0, V_DWO))
    for i in range(1, 4):
        k.e("v_add_u32 v%d, %d, v%d" % (V_DWO + i, i * 7168, V_DWO))
    k.e("s_lshl_b32 s%d, s%d, 20" % (S_OWO, S_HG))
    k.e("s_lshl_b32 s%d, s%d, 7" % (S_T0, S_LO))
    k.e("s_add_u32 s%d, s%d, s%d" % (S_OWO, S_OWO, S_T0))


def dma_stage(k, st, nslot, pol=""):
    base = (st % nslot) * SLOT
    tag = "st%d" % st
    ops = []

    def grp(m_sreg, m_add, sr, voffs, soff, adv):
        def first():
            k.e("s_add_u32 m0, s%d, %d" % (m_sreg, base + m_add))
            k.e("s_nop 0")
            k.vmem("buffer_load_dwordx4 v%d, %s, s%d offen%s lds" % (voffs[0], srd(sr), soff, pol), tag)
        ops.append(first)
        for i in range(1, 4):
            def nxt(i=i):
                k.vmem("buffer_load_dwordx4 v%d, %s, s%d offen offset:%d%s lds" % (voffs[i], srd(sr), soff, i * 1024, pol), tag)
                if i == 3 and adv:
                    k.e("s_add_u32 s%d, s%d, %d" % (soff, soff, adv))
            ops.append(nxt)

    if st < 8:
        grp(S_MW, 0, SRD_WQ, [V_DWQ + i for i in range(4)], S_OWQ, 64 * 8192)
        grp(S_MX, 0, SRD_X, [V_DX + i for i in range(4)], S_OX, 128)
    elif st == 8:
        grp(S_M8, 0, SRD_K, [V_DK + i for i in range(4)], S_OKV, 4096)
        grp(S_M8, 4096, SRD_K, [V_DK + i for i in range(4)], S_OKV, -4096 & 0xffffffff)
    elif st == 9:
        grp(S_M8, 0, SRD_V, [V_DV] * 4, S_OKV, 4096)
        grp(S_M8, 4096, SRD_V, [V_DV] * 4, S_OKV, 0)
    else:
        grp(S_M8, 0, SRD_WO, [V_DWO + i for i in range(4)], S_OWO, 4 * 8192)
        grp(S_M8, 4096, SRD_WO, [V_DWO + i for i in range(4)], S_OWO, 256 * 1024 - 4 * 8192)
    return ops


def tr_lane_terms(k, t):
    k.e("v_lshrrev_b32 v%d, 5, v0" % t)
    k.e("v_bfe_u32 v%d, v0, 2, 2" % (t + 1))
    k.e("v_bfe_u32 v%d, v0, 4, 1" % (t + 2))
    k.e("v_and_b32 v%d, 3, v0" % (t + 3))


def pi_term(k, dst, t):
    k.e("v_and_b32 v%d, 1, v0" % dst)
    k.e("v_lshlrev_b32 v%d, 4, v%d" % (dst, dst))
    k.e("v_and_b32 v%d, 2, v0" % (t + 4))
    k.e("v_lshl_add_u32 v%d, v%d, 2, v%d" % (dst, t + 4, dst))
    k.e("v_lshl_add_u32 v%d, v%d, 5, v%d" % (dst, t + 2, dst))


def p1_read_addrs(k):
    t = V_T
    tr_lane_terms(k, t)
    pi_term(k, V_RA, t)
    k.e("v_lshl_add_u32 v%d, v%d, 3, v%d" % (t + 4, t, t + 1))
    k.e("v_lshl_add_u32 v%d, v%d, 8, v%d" % (V_RA, t + 4, V_RA))
    k.e("v_lshl_add_u32 v%d, v%d, 6, v%d" % (V_RA, t + 1, V_RA))
    for dt in range(1, 4):
        k.e("v_xor_b32 v%d, %d, v%d" % (V_RA + dt, dt << 6, V_RA))
    k.e("v_and_b32 v%d, 31, v0" % (t + 4))
    k.e("v_bfe_u32 v%d, v0, 1, 3" % (t + 5))
    k.e("v_xor_b32 v%d, v%d, v%d" % (t + 5, t + 5, t))
    k.e("v_lshlrev_b32 v%d, 4, v%d" % (t + 5, t + 5))
    k.e("v_lshl_add_u32 v%d, v%d, 7, v%d" % (V_RB, t + 4, t + 5))
    k.e("v_add_u32 v%d, s%d, v%d" % (V_RB, S_MX, V_RB))
    for s in range(1, 4):
        k.e("v_xor_b32 v%d, %d, v%d" % (V_RB + s, s << 5, V_RB))


def mfma(k, d, a, b, first, aa=False, ba=False):
    k.e("v_mfma_f32_32x32x16_bf16 %s, %s, %s, %s" % (vr(d, 16), vr(a, 4, aa), vr(b, 4, ba), "0" if first else vr(d, 16)))


def p1_reads(k, g, nslot):
    st, s = g // 4, g % 4
    fa, fb = V_FA + 16 * (g & 1), V_FB + 4 * (g & 1)
    ops = [lambda: k.ds("ds_read_b128 %s, v%d" % (vr(fb, 4), V_RB + s), "b%d" % g)]
    for dt in range(4):
        for e in range(2):
            ops.append(lambda dt=dt, e=e: k.ds("ds_read_b64_tr_b16 %s, v%d offset:%d" % (vr(fa + 4 * dt + 2 * e, 2), V_RA + dt, s * 4096 + e * 1024), "a%d_%d" % (g, dt)))
    return ops


def adv_read_addrs(k, regs, st_from, st_to, nslot):
    d = ((st_to % nslot) - (st_from % nslot)) * SLOT
    return [lambda r=r: k.e("v_add_u32 v%d, 0x%x, v%d" % (r, d & 0xffffffff, r)) for r in regs]


def phase1(k, nslot, last_stage, pol=""):
    p1_dma_addrs(k)
    build_srds(k, ["WQ", "X", "K", "V", "WS"] + (["WO", "OUT", "DBG"] if last_stage >= 10 else []))
    for st in range(nslot):
        for op in dma_stage(k, st, nslot, pol):
            op()
    p1_read_addrs(k)
    if last_stage >= 10:
        p2_dma_addrs(k)
    k.e("v_lshlrev_b32 v%d, 4, v0" % V_L16)
    k.wait(vm=("st0",))
    k.e("s_barrier")
    k.stamp()
    for op in p1_reads(k, 0, nslot):
        op()
    for g in range(32):
        st, s = g // 4, g % 4
        fa, fb = V_FA + 16 * (g & 1), V_FB + 4 * (g & 1)
        pre, fill = [], []
        if s == 3:
            k.wait(vm=("st%d" % (st + 1),), lg0=True)
            k.e("s_barrier")
            k.stamp()
            if st < 7:
                pre += adv_read_addrs(k, list(range(V_RB, V_RB + 4)) + list(range(V_RA, V_RA + 4)), st, st + 1, nslot)
            if st + nslot <= last_stage:
                fill += dma_stage(k, st + nslot, nslot, pol)
        rd = p1_reads(k, g + 1, nslot) if g < 31 else []
        if s == 3 and st < 7:
            seq = [pre[0], rd[0], pre[4], rd[1], rd[2], pre[5], rd[3], rd[4], pre[6], rd[5], rd[6], pre[7], rd[7], rd[8]] + pre[1:4]
            split = [5, 3, 3, 6]
        else:
            seq = rd
            split = [4, 3, 2, 0]
        pos = 0
        for dt in range(4):
            k.wait(lg=("b%d" % g, "a%d_%d" % (g, dt)))
            mfma(k, V_ACC + 16 * dt, fa + 4 * dt, fb, g == 0)
            for op in seq[pos:pos + split[dt]]:
                op()
            pos += split[dt]
            for op in fill[2 * dt:2 * dt + 2]:
                op()


def attention(k, nslot, last_stage, pol="", opol=""):
    t = V_T
    kb, vb = (8 % nslot) * SLOT, (9 % nslot) * SLOT
    k.e("v_lshrrev_b32 v%d, 5, v0" % t)
    k.e("v_and_b32 v%d, 15, v0" % (t + 1))
    k.e("v_xor_b32 v%d, v%d, v%d" % (t + 1, t + 1, t))
    k.e("v_lshlrev_b32 v%d, 4, v%d" % (t + 1, t + 1))
    k.e("v_and_b32 v%d, 31, v0" % (t + 2))
    k.e("v_lshl_add_u32 v%d, v%d, 8, v%d" % (t + 1, t + 2, t + 1))
    k.e("s_add_u32 s%d, s%d, %d" % (S_T0, S_M8, kb))
    k.e("v_add_u32 v%d, s%d, v%d" % (t + 1, S_T0, t + 1))
    k.wait(vm=("st8",))
    for i in range(8):
        if i:
            k.e("v_xor_b32 v%d, %d, v%d" % (t + 2, i << 5, t + 1))
        k.ds("ds_read_b128 %s, v%d" % (vr(V_KF + 4 * i, 4), t + 2 if i else t + 1), "k%d" % i)
    tr_lane_terms(k, t)
    k.e("v_lshlrev_b32 v%d, 3, v%d" % (V_RA, t + 3))
    k.e("v_lshl_add_u32 v%d, v%d, 5, v%d" % (V_RA, t + 2, V_RA))
    k.e("v_lshl_add_u32 v%d, v%d, 2, v%d" % (t + 4, t, t + 1))
    k.e("v_lshl_add_u32 v%d, v%d, 8, v%d" % (V_RA, t + 4, V_RA))
    k.e("v_lshl_add_u32 v%d, v%d, 6, v%d" % (V_RA, t + 1, V_RA))
    k.e("s_add_u32 s%d, s%d, %d" % (S_T0, S_M8, vb))
    k.e("v_add_u32 v%d, s%d, v%d" % (V_RA, S_T0, V_RA))
    for dt in range(1, 4):
        k.e("v_xor_b32 v%d, %d, v%d" % (V_RA + dt, dt << 6, V_RA))
    k.e("s_mov_b32 s%d, 0x3e0293ee" % S_C)
    for i in range(8):
        for j in range(4):
            k.e("v_cvt_pk_bf16_f32 v%d, v%d, v%d" % (V_QB + 4 * i + j, V_ACC + 8 * i + 2 * j, V_ACC + 8 * i + 2 * j + 1))
        if i >= 1:
            k.wait(lg=("k%d" % (i - 1),))
            mfma(k, V_S, V_KF + 4 * (i - 1), V_QB + 4 * (i - 1), i == 1)
    k.wait(lg=("k7",), vm=("st9",))
    k.e("s_nop 0")
    mfma(k, V_S, V_KF + 28, V_QB + 28, False)
    for dt in range(4):
        for u in range(2):
            for e in range(2):
                k.ds("ds_read_b64_tr_b16 %s, v%d offset:%d" % (vr(V_FA + 8 * dt + 4 * u + 2 * e, 2), V_RA + dt, (16 * u + 8 * e) * 256), "v%d" % dt)
    m, m2 = t, t + 1
    k.e("v_max3_f32 v%d, v%d, v%d, v%d" % (m, V_S, V_S + 1, V_S + 2))
    k.e("v_max3_f32 v%d, v%d, v%d, v%d" % (m2, V_S + 3, V_S + 4, V_S + 5))
    for i in range(6, 14, 4):
        k.e("v_max3_f32 v%d, v%d, v%d, v%d" % (m, m, V_S + i, V_S + i + 1))
        k.e("v_max3_f32 v%d, v%d, v%d, v%d" % (m2, m2, V_S + i + 2, V_S + i + 3))
    k.e("v_max3_f32 v%d, v%d, v%d, v%d" % (m, m, V_S + 14, V_S + 15))
    k.e("v_max_f32 v%d, v%d, v%d" % (m, m, m2))
    k.e("v_mov_b32 v%d, v%d" % (m2, m))
    k.e("s_nop 1")
    k.e("v_permlane32_swap_b32 v%d, v%d" % (m, m2))
    k.e("v_max_f32 v%d, v%d, v%d" % (m, m, m2))
    k.e("v_mul_f32 v%d, s%d, v%d" % (m, S_C, m))
    for i in range(16):
        k.e("v_fma_f32 v%d, v%d, s%d, -v%d" % (V_S + i, V_S + i, S_C, m))
    for i in range(16):
        k.e("v_exp_f32 v%d, v%d" % (V_S + i, V_S + i))
    k.e("v_add_f32 v%d, v%d, v%d" % (m, V_S, V_S + 1))
    k.e("v_add_f32 v%d, v%d, v%d" % (m2, V_S + 2, V_S + 3))
    for i in range(4, 16, 2):
        k.e("v_add_f32 v%d, v%d, v%d" % (m, m, V_S + i))
        k.e("v_add_f32 v%d, v%d, v%d" % (m2, m2, V_S + i + 1))
    k.e("v_add_f32 v%d, v%d, v%d" % (m, m, m2))
    k.e("v_mov_b32 v%d, v%d" % (m2, m))
    k.e("s_nop 1")
    k.e("v_permlane32_swap_b32 v%d, v%d" % (m, m2))
    k.e("v_add_f32 v%d, v%d, v%d" % (m, m, m2))
    k.e("v_rcp_f32 v%d, v%d" % (m, m))
    k.e("s_nop 0")
    for i in range(16):
        k.e("v_mul_f32 v%d, v%d, v%d" % (V_S + i, V_S + i, m))
    for j in range(8):
        k.e("v_cvt_pk_bf16_f32 v%d, v%d, v%d" % (V_PB + j, V_S + 2 * j, V_S + 2 * j + 1))
    k.e("s_lshl_b32 s%d, s%d, 4" % (S_T0, S_BR))
    k.e("s_add_u32 s%d, s%d, s%d" % (S_T0, S_T0, S_B))
    k.e("s_lshl_b32 s%d, s%d, 5" % (S_T0, S_T0))
    k.e("s_add_u32 s%d, s%d, s%d" % (S_T1, S_T0, S_HEAD))
    k.e("s_lshl_b32 s%d, s%d, 13" % (S_OO, S_T1))
    k.e("s_add_u32 s%d, s%d, 4096" % (S_T2, S_OO))
    for dt in range(4):
        k.wait(lg=("v%d" % dt,))
        mfma(k, V_ACC + 16 * dt, V_FA + 8 * dt, V_PB, True)
        mfma(k, V_ACC + 16 * dt, V_FA + 8 * dt + 4, V_PB + 4, False)
    k.e("s_nop 5")
    for i in range(8):
        if i == 6:
            k.e("s_nop 1")
        for j in range(4):
            k.e("v_cvt_pk_bf16_f32 v%d, v%d, v%d" % (V_QB + 4 * i + j, V_ACC + 8 * i + 2 * j, V_ACC + 8 * i + 2 * j + 1))
        k.vmem("buffer_store_dwordx4 %s, v%d, %s, s%d offen offset:%d%s" % (vr(V_QB + 4 * i, 4), V_L16, srd(SRD_WS), S_OO if i < 4 else S_T2, (i & 3) * 1024, opol), "ost")


def p2_read_addrs(k, first_stage, nslot):
    t = V_T
    tr_lane_terms(k, t)
    pi_term(k, V_RA, t)
    k.e("v_lshl_add_u32 v%d, v%d, 2, v%d" % (t + 4, t, t + 1))
    k.e("v_lshl_add_u32 v%d, v%d, 7, v%d" % (V_RA, t + 4, V_RA))
    k.e("v_lshrrev_b32 v%d, 1, v%d" % (t + 4, t + 1))
    k.e("v_lshl_add_u32 v%d, v%d, 6, v%d" % (V_RA, t + 4, V_RA))
    b = (first_stage % nslot) * SLOT
    if b:
        k.e("v_add_u32 v%d, 0x%x, v%d" % (V_RA, b, V_RA))
    k.e("v_xor_b32 v%d, 64, v%d" % (V_RA + 1, V_RA))


def o_loads(k, lo, hi, opol):
    for ks in range(lo, hi):
        k.vmem("buffer_load_dwordx4 %s, v%d, %s, s%d offen offset:%d%s" % (vr(4 * ks, 4, True), V_L16, srd(SRD_WS), S_OO, (ks & 3) * 1024, opol), "o%d" % ks)
        if ks & 3 == 3:
            k.e("s_add_u32 s%d, s%d, 4096" % (S_OO, S_OO))


def o_load_base(k):
    k.e("s_lshl_b32 s%d, s%d, 4" % (S_T0, S_BR))
    k.e("s_add_u32 s%d, s%d, s%d" % (S_T0, S_T0, S_B))
    k.e("s_lshl_b32 s%d, s%d, 2" % (S_T0, S_T0))
    k.e("s_add_u32 s%d, s%d, s%d" % (S_T0, S_T0, S_HG))
    k.e("s_lshl_b32 s%d, s%d, 16" % (S_OO, S_T0))


def phase2_compute(k, nslot, all_landed):
    NSET = 4

    def reads(ks):
        fa = V_FA + 8 * (ks % NSET)
        for nt in range(2):
            for e in range(2):
                k.ds("ds_read_b64_tr_b16 %s, v%d offset:%d" % (vr(fa + 4 * nt + 2 * e, 2), V_RA + nt, ((ks % 16) * 16 + 8 * e) * 128), "w%d" % ks)

    def enter(ks):
        if ks % 16 == 0:
            st = 10 + ks // 16
            if ks:
                for op in adv_read_addrs(k, [V_RA, V_RA + 1], st - 1, st, nslot):
                    op()
            if not all_landed:
                k.wait(vm=("st%d" % st,))
                k.e("s_barrier")
                k.stamp()
    for ks in range(NSET - 1):
        enter(ks)
        reads(ks)
    for ks in range(64):
        k.wait(vm=("o%d" % ks,), lg=("w%d" % ks,))
        fa = V_FA + 8 * (ks % NSET)
        mfma(k, V_ACC, fa, 4 * ks, ks == 0, ba=True)
        mfma(k, V_ACC + 16, fa + 4, 4 * ks, ks == 0, ba=True)
        n = ks + NSET - 1
        if n < 64:
            enter(n)
            reads(n)


def part_base(k, j_sreg, hg_sreg):
    k.e("s_lshl_b32 s%d, s%d, 2" % (S_T0, S_BR))
    k.e("s_add_u32 s%d, s%d, s%d" % (S_T0, S_T0, S_TG))
    k.e("s_lshl_b32 s%d, s%d, 3" % (S_T0, S_T0))
    k.e("s_add_u32 s%d, s%d, s%d" % (S_T0, S_T0, S_LO))
    k.e("s_lshl_b32 s%d, s%d, 2" % (S_T0, S_T0))
    k.e("s_add_u32 s%d, s%d, s%d" % (S_T0, S_T0, j_sreg))
    k.e("s_lshl_b32 s%d, s%d, 2" % (S_T0, S_T0))
    if hg_sreg is not None:
        k.e("s_add_u32 s%d, s%d, s%d" % (S_T0, S_T0, hg_sreg))
    k.e("s_lshl_b32 s%d, s%d, 13" % (S_T0, S_T0))
    k.e("s_add_u32 s%d, s%d, 0x%x" % (S_OP, S_T0, WS_P))


def part_store(k, opol):
    part_base(k, S_W, S_HG)
    k.e("s_add_u32 s%d, s%d, 4096" % (S_T2, S_OP))
    k.e("s_nop 3")
    for i in range(8):
        k.vmem("buffer_store_dwordx4 %s, v%d, %s, s%d offen offset:%d%s" % (vr(V_ACC + 4 * i, 4), V_L16, srd(SRD_WS), S_OP if i < 4 else S_T2, (i & 3) * 1024, opol), "pst")


def reduce_store(k, opol):
    part_base(k, S_HG, None)
    k.e("s_lshl_b32 s%d, s%d, 11" % (S_T0, S_W))
    k.e("s_add_u32 s%d, s%d, s%d" % (S_OP, S_OP, S_T0))
    for q in range(4):
        for i in range(2):
            k.vmem("buffer_load_dwordx4 %s, v%d, %s, s%d offen offset:%d%s" % (vr(V_KF + 8 * q + 4 * i, 4), V_L16, srd(SRD_WS), S_OP, i * 1024, opol), "p%d" % q)
        if q < 3:
            k.e("s_add_u32 s%d, s%d, 8192" % (S_OP, S_OP))
    t = V_T
    k.e("v_and_b32 v%d, 31, v0" % t)
    k.e("v_lshrrev_b32 v%d, 5, v0" % (t + 1))
    k.e("v_lshlrev_b32 v%d, 11, v%d" % (t, t))
    k.e("v_lshl_add_u32 v%d, v%d, 4, v%d" % (t, t + 1, t))
    k.e("s_lshl_b32 s%d, s%d, 2" % (S_T0, S_TG))
    k.e("s_add_u32 s%d, s%d, s%d" % (S_T0, S_T0, S_HG))
    k.e("s_lshl_b32 s%d, s%d, 16" % (S_T0, S_T0))
    k.e("s_lshl_b32 s%d, s%d, 10" % (S_T1, S_BR))
    k.e("s_add_u32 s%d, s%d, s%d" % (S_T0, S_T0, S_T1))
    k.e("s_lshl_b32 s%d, s%d, 7" % (S_T1, S_LO))
    k.e("s_add_u32 s%d, s%d, s%d" % (S_T0, S_T0, S_T1))
    k.e("s_lshl_b32 s%d, s%d, 5" % (S_T1, S_W))
    k.e("s_add_u32 s%d, s%d, s%d" % (S_T0, S_T0, S_T1))
    k.wait(vm=("p1",))
    for i in range(8):
        k.e("v_add_f32 v%d, v%d, v%d" % (V_KF + i, V_KF + i, V_KF + 8 + i))
    k.wait(vm=("p3",))
    for i in range(8):
        k.e("v_add_f32 v%d, v%d, v%d" % (V_KF + 16 + i, V_KF + 16 + i, V_KF + 24 + i))
    for i in range(8):
        k.e("v_add_f32 v%d, v%d, v%d" % (V_KF + i, V_KF + i, V_KF + 16 + i))
    for j in range(4):
        k.e("v_cvt_pk_bf16_f32 v%d, v%d, v%d" % (V_PB + j, V_KF + 2 * j, V_KF + 2 * j + 1))
    k.vmem("buffer_store_dwordx4 %s, v%d, %s, s%d offen" % (vr(V_PB, 4), t, srd(SRD_OUT), S_T0), "out")


def kernel_text(name, k, nv=256, acc=256):
    return ("\n.globl %s\n.p2align 8\n.type %s,@function\n%s:\n" % (name, name, name)) + "\n".join(k.l) + "\n", \
        (".p2align 6\n.amdhsa_kernel %s\n  .amdhsa_next_free_vgpr %d\n  .amdhsa_next_free_sgpr 102\n  .amdhsa_accum_offset %d\n"
         "  .amdhsa_group_segment_fixed_size 0\n  .amdhsa_kernarg_size 104\n  .amdhsa_user_sgpr_count 2\n"
         "  .amdhsa_user_sgpr_kernarg_segment_ptr 1\n  .amdhsa_system_sgpr_workgroup_id_x 1\n.end_amdhsa_kernel\n" % (name, nv, acc))


def finish(launches, kernels):
    s = HDR
    for l in launches:
        s += l + "\n"
    s += '.amdgcn_target "amdgcn-amd-amdhsa--gfx950"\n.text\n'
    s += "".join(t for t, _ in kernels)
    s += '.section .rodata,"a"\n'
    s += "".join(d for _, d in kernels)
    return s


def gen_three(diag=False, extra_empty=0):
    ks = []
    k = K(diag)
    prologue(k, "L1_end")
    phase1(k, 5, 9)
    k.stamp()
    attention(k, 5, 9)
    k.stamp()
    k.dump_stamps(0)
    k.lab("L1_end")
    k.e("s_endpgm")
    ks.append(kernel_text("p1_kernel", k))
    k = K(diag)
    prologue(k, "L2_end")
    p2_dma_addrs(k)
    k.e("v_lshlrev_b32 v%d, 4, v0" % V_L16)
    o_load_base(k)
    build_srds(k, ["WO", "WS"])
    for q in range(4):
        for op in dma_stage(k, 10 + q, 5):
            op()
        o_loads(k, 16 * q, 16 * q + 16 if q < 3 else 56, "")
    p2_read_addrs(k, 10, 5)
    k.wait(vm=("st10",))
    o_loads(k, 56, 64, "")
    k.stamp()
    phase2_compute(k, 5, False)
    k.stamp()
    part_store(k, "")
    k.dump_stamps(1)
    k.lab("L2_end")
    k.e("s_endpgm")
    ks.append(kernel_text("p2_kernel", k, 512, 256))
    k = K(diag)
    prologue(k, "L3_end")
    k.e("v_lshlrev_b32 v%d, 4, v0" % V_L16)
    build_srds(k, ["WS", "OUT"])
    reduce_store(k, "")
    k.stamp()
    k.dump_stamps(2)
    k.lab("L3_end")
    k.e("s_endpgm")
    ks.append(kernel_text("p3_kernel", k))
    L = ["; @launch kernel=p1_kernel grid=(256,1,1) block=(256,1,1) lds=163840",
         "; @launch kernel=p2_kernel grid=(256,1,1) block=(256,1,1) lds=163840",
         "; @launch kernel=p3_kernel grid=(256,1,1) block=(256,1,1) lds=0"]
    if extra_empty:
        k = K()
        k.e("s_endpgm")
        ks.append(kernel_text("nop_kernel", k, 8, 8))
        L += ["; @launch kernel=nop_kernel grid=(256,1,1) block=(256,1,1) lds=0"] * extra_empty
    return finish(L, ks)


WS_F = 16 << 20
V_KA, V_VA, V_WA = 18, 19, 240
V_FL1, V_FL2, V_PL1, V_PL2, V_GO, V_ONE, V_OUT = 244, 245, 246, 247, 248, 249, 250
V_GOA, V_GOD = 251, 252
V_AC2 = 176
S_NB, S_KQ, S_OWO2, S_GO, S_SPIN, S_OI = 85, 3, 78, 30, 31, 79


def one_addrs(k):
    t = V_T
    k.e("s_and_b32 s%d, s%d, 3" % (S_NB, S_LO))
    k.e("s_lshr_b32 s%d, s%d, 2" % (S_KQ, S_HEAD))
    k.e("v_lshrrev_b32 v%d, 4, v0" % t)
    k.e("v_and_b32 v%d, 15, v0" % (t + 1))
    k.e("v_lshlrev_b32 v%d, 2, v%d" % (t + 2, t))
    k.e("v_xor_b32 v%d, v%d, v%d" % (t + 2, t + 2, t + 1))
    k.e("v_lshlrev_b32 v%d, 4, v%d" % (t + 2, t + 2))
    k.e("v_lshl_add_u32 v%d, v%d, 10, v%d" % (V_DWO, t, t + 2))
    k.e("s_lshl_b32 s%d, s%d, 15" % (S_T0, S_W))
    k.e("v_add_u32 v%d, s%d, v%d" % (V_DWO, S_T0, V_DWO))
    for i in range(1, 4):
        k.e("v_add_u32 v%d, %d, v%d" % (V_DWO + i, i * 3072, V_DWO))
    k.e("v_lshrrev_b32 v%d, 5, v0" % t)
    k.e("v_and_b32 v%d, 15, v0" % (t + 1))
    k.e("v_xor_b32 v%d, v%d, v%d" % (t + 1, t + 1, t))
    k.e("v_lshlrev_b32 v%d, 4, v%d" % (t + 1, t + 1))
    k.e("v_and_b32 v%d, 31, v0" % (t + 2))
    k.e("v_lshl_add_u32 v%d, v%d, 8, v%d" % (V_KA, t + 2, t + 1))
    k.e("s_add_u32 s%d, s%d, %d" % (S_T0, S_M8, 3 * SLOT))
    k.e("v_add_u32 v%d, s%d, v%d" % (V_KA, S_T0, V_KA))
    k.e("v_lshlrev_b32 v%d, 11, v%d" % (V_OUT, t + 2))
    k.e("v_lshl_add_u32 v%d, v%d, 4, v%d" % (V_OUT, t, V_OUT))
    tr_lane_terms(k, t)
    k.e("v_lshl_add_u32 v%d, v%d, 2, v%d" % (t + 5, t, t + 1))
    k.e("v_lshlrev_b32 v%d, 8, v%d" % (t + 5, t + 5))
    k.e("v_lshl_add_u32 v%d, v%d, 6, v%d" % (t + 5, t + 1, t + 5))
    k.e("v_lshl_add_u32 v%d, v%d, 3, v%d" % (V_VA, t + 3, t + 5))
    k.e("v_lshl_add_u32 v%d, v%d, 5, v%d" % (V_VA, t + 2, V_VA))
    k.e("s_add_u32 s%d, s%d, %d" % (S_T0, S_M8, 4 * SLOT))
    k.e("v_add_u32 v%d, s%d, v%d" % (V_VA, S_T0, V_VA))
    pi_term(k, V_WA, t)
    k.e("v_add_u32 v%d, v%d, v%d" % (V_WA, V_WA, t + 5))
    for nt in range(1, 4):
        k.e("v_xor_b32 v%d, %d, v%d" % (V_WA + nt, nt << 6, V_WA))
    k.e("s_and_b32 s%d, s2, 0xe7" % S_T0)
    k.e("s_lshl_b32 s%d, s%d, 8" % (S_T0, S_T0))
    k.e("s_lshl_b32 s%d, s%d, 4" % (S_T1, S_W))
    k.e("s_add_u32 s%d, s%d, s%d" % (S_T0, S_T0, S_T1))
    k.e("s_lshl_b32 s%d, s%d, 2" % (S_T2, S_NB))
    k.e("s_add_u32 s%d, s%d, s%d" % (S_T0, S_T0, S_T2))
    k.e("v_and_b32 v%d, 3, v0" % t)
    k.e("v_lshlrev_b32 v%d, 11, v%d" % (V_FL1, t))
    k.e("v_add_u32 v%d, s%d, v%d" % (V_FL1, S_T0, V_FL1))
    k.e("s_lshl_b32 s%d, s2, 8" % S_T0)
    k.e("s_add_u32 s%d, s%d, s%d" % (S_T1, S_T0, S_T1))
    k.e("v_lshlrev_b32 v%d, 2, v%d" % (V_PL1, t))
    k.e("v_add_u32 v%d, s%d, v%d" % (V_PL1, S_T1, V_PL1))
    k.e("v_and_b32 v%d, 7, v0" % t)
    k.e("v_lshlrev_b32 v%d, 2, v%d" % (V_PL2, t))
    k.e("s_add_u32 s%d, s%d, 128" % (S_T1, S_T0))
    k.e("v_add_u32 v%d, s%d, v%d" % (V_PL2, S_T1, V_PL2))
    k.e("s_and_b32 s%d, s2, 0xdc" % S_T0)
    k.e("s_or_b32 s%d, s%d, s%d" % (S_T0, S_T0, S_W))
    k.e("s_lshl_b32 s%d, s%d, 8" % (S_T0, S_T0))
    k.e("s_lshl_b32 s%d, s%d, 2" % (S_T1, S_KQ))
    k.e("s_add_u32 s%d, s%d, s%d" % (S_T0, S_T0, S_T1))
    k.e("s_add_u32 s%d, s%d, 128" % (S_T0, S_T0))
    k.e("v_and_b32 v%d, 1, v0" % t)
    k.e("v_lshlrev_b32 v%d, 13, v%d" % (V_FL2, t))
    k.e("v_add_u32 v%d, s%d, v%d" % (V_FL2, S_T0, V_FL2))
    k.e("v_mov_b32 v%d, 1" % V_ONE)
    k.e("s_lshl_b32 s%d, s%d, 1" % (S_GO, S_TG))
    k.e("s_add_u32 s%d, s%d, s%d" % (S_GO, S_GO, S_BR))
    k.e("s_lshl_b32 s%d, s%d, 5" % (S_GO, S_GO))
    k.e("v_mov_b32 v%d, s%d" % (V_GOA, S_GO))


def wo_stage(k, st, pol):
    j = st - 10
    base = (st % 5) * SLOT
    tag = "st%d" % st
    ops = []
    for g in range(2):
        for i in range(4):
            def op(g=g, i=i):
                if i == 0:
                    if g == 0:
                        k.e("s_add_u32 s%d, s%d, %d" % (S_T3, S_NB, j))
                        k.e("s_and_b32 s%d, s%d, 3" % (S_T3, S_T3))
                        k.e("s_lshl2_add_u32 s%d, s%d, s%d" % (S_T3, S_KQ, S_T3))
                        k.e("s_lshl_b32 s%d, s%d, 9" % (S_T3, S_T3))
                        k.e("s_add_u32 s%d, s%d, s%d" % (S_T3, S_T3, S_NB))
                        k.e("s_lshl_b32 s%d, s%d, 8" % (S_OWO2, S_T3))
                    else:
                        k.e("s_add_u32 s%d, s%d, 16384" % (S_OWO2, S_OWO2))
                    k.e("s_add_u32 m0, s%d, %d" % (S_M8, base + 4096 * g))
                    k.e("s_nop 0")
                k.vmem("buffer_load_dwordx4 v%d, %s, s%d offen offset:%d%s lds" % (V_DWO + i, srd(SRD_WO), S_OWO2, i * 1024, pol), tag)
            ops.append(op)
    return ops


def spin(k, name, addr, sr, soff, expect):
    k.e("s_mov_b32 s%d, 0x40000" % S_SPIN)
    k.lab(name)
    k.e("buffer_load_dword v%d, v%d, %s, %s offen sc1" % (V_GO, addr, srd(sr), soff))
    k.e("s_sub_u32 s%d, s%d, 1" % (S_SPIN, S_SPIN))
    k.e("s_cbranch_scc1 %s_x" % name)
    k.wait(vm0=True)
    k.e("v_cmp_ne_u32 vcc, %s, v%d" % (expect, V_GO))
    k.e("s_cbranch_vccnz %s" % name)
    k.lab(name + "_x")


def gen_one(diag=0, L=4, nt=0):
    k = K(diag)
    pol = " nt" if nt else ""
    t = V_T

    def stage(st):
        return dma_stage(k, st, 5, pol if st >= 8 else "") if st < 10 else wo_stage(k, st, "")
    prologue(k, "L_end")
    p1_dma_addrs(k)
    p1_read_addrs(k)
    one_addrs(k)
    k.e("v_lshlrev_b32 v%d, 4, v0" % V_L16)
    k.e("v_lshlrev_b32 v1, 2, v0")
    k.e("v_mov_b32 v2, 0")
    k.e("s_lshl_b32 s%d, s2, 8" % S_T2)
    k.e("s_add_u32 s%d, s%d, 0x%x" % (S_T2, S_T2, WS_F))
    build_srds(k, ["WQ", "X"])
    for op in stage(0):
        op()
    k.e("s_cmp_eq_u32 s%d, 0" % S_BR)
    sv, k.diag = k.diag, 0
    n0 = len(k.l)
    build_srds(k, ["WS", "K", "V", "WO", "OUT", "DBG"])
    del k.l[n0]
    k.diag = sv
    k.vmem("buffer_store_dword v2, v1, %s, s%d offen sc1" % (srd(SRD_WS), S_T2), "zero")
    for st in range(1, L):
        for op in stage(st):
            op()
    k.e("s_mov_b32 s%d, 0x%x" % (S_OI, WS_F))
    k.wait(vm=("st0",))
    k.e("s_barrier")
    k.stamp()
    for op in p1_reads(k, 0, 5):
        op()
    pend = stage(L)
    for g in range(32):
        st, s = g // 4, g % 4
        fa, fb = V_FA + 16 * (g & 1), V_FB + 4 * (g & 1)
        pre = []
        if s == 3:
            assert not pend
            k.wait(vm=("st%d" % (st + 1),), lg0=True)
            k.e("s_barrier")
            if st in (1, 4, 7):
                k.stamp()
            if st == 0:
                k.e("s_cmp_lg_u32 s%d, 0" % S_W)
                k.e("s_cbranch_scc1 L_noann")
                k.e("s_mov_b64 exec, 1")
                k.e("buffer_atomic_add v%d, v%d, %s, 0 offen sc1" % (V_ONE, V_GOA, srd(SRD_DBG)))
                k.e("s_mov_b64 exec, -1")
                k.lab("L_noann")
            if st == 5:
                k.vmem("buffer_load_dword v%d, v%d, %s, 0 offen sc1" % (V_GOD, V_GOA, srd(SRD_DBG)), "go")
            if st < 7:
                pre = adv_read_addrs(k, list(range(V_RB, V_RB + 4)) + list(range(V_RA, V_RA + 4)), st, st + 1, 5)
                pend = stage(st + 1 + L)
            else:
                pend = sum((stage(x) for x in range(8 + L, 13)), [])
        if g < 31:
            rd = p1_reads(k, g + 1, 5)
        else:
            rd = []
            for i in range(8):
                def kr(i=i):
                    if i:
                        k.e("v_xor_b32 v%d, %d, v%d" % (t + (i & 1), i << 5, V_KA))
                    k.ds("ds_read_b128 %s, v%d" % (vr(V_KF + 4 * i, 4), t + (i & 1) if i else V_KA), "k%d" % i)
                rd.append(kr)
        if s == 3 and st < 7:
            seq = [pre[0], rd[0], pre[4], rd[1], rd[2], pre[5], rd[3], rd[4], pre[6], rd[5], rd[6], pre[7], rd[7], rd[8]] + pre[1:4]
            split = [5, 3, 3, 6]
        elif g == 31:
            seq, split = rd, [2, 2, 2, 2]
        else:
            seq = rd
            split = [4, 3, 2, 0]
        nd = [1, 1, 1, 0] if g < 2 else ([1, 0, 1, 0] if g < 31 else [1, 1, 1, 1])
        pos = 0
        for dt in range(4):
            k.wait(lg=("b%d" % g, "a%d_%d" % (g, dt)))
            mfma(k, V_ACC + 16 * dt, fa + 4 * dt, fb, g == 0)
            for op in seq[pos:pos + split[dt]]:
                op()
            pos += split[dt]
            for _ in range(nd[dt]):
                if pend:
                    pend.pop(0)()
    k.e("s_mov_b32 s%d, 0x3e0293ee" % S_C)
    for dt in range(1, 4):
        k.e("v_xor_b32 v%d, %d, v%d" % (V_RA + dt, dt << 6, V_VA))
    for i in range(8):
        if i == 6:
            k.e("s_nop 1")
        for j in range(4):
            k.e("v_cvt_pk_bf16_f32 v%d, v%d, v%d" % (V_QB + 4 * i + j, V_ACC + 8 * i + 2 * j, V_ACC + 8 * i + 2 * j + 1))
        if i >= 1:
            k.wait(lg=("k%d" % (i - 1),))
            mfma(k, V_S, V_KF + 4 * (i - 1), V_QB + 4 * (i - 1), i == 1)
        if pend:
            pend.pop(0)()
    k.wait(lg=("k7",), vm=("st9",))
    k.e("s_nop 0")
    mfma(k, V_S, V_KF + 28, V_QB + 28, False)
    for dt in range(4):
        for u in range(2):
            for e in range(2):
                k.ds("ds_read_b64_tr_b16 %s, v%d offset:%d" % (vr(V_FA + 8 * dt + 4 * u + 2 * e, 2), V_RA + dt if dt else V_VA, (16 * u + 8 * e) * 256), "v%d" % dt)
    pend += stage(13)
    m, m2 = t, t + 1

    def dm():
        if pend:
            pend.pop(0)()
    dm()
    k.e("v_max3_f32 v%d, v%d, v%d, v%d" % (m, V_S, V_S + 1, V_S + 2))
    k.e("v_max3_f32 v%d, v%d, v%d, v%d" % (m2, V_S + 3, V_S + 4, V_S + 5))
    for i in range(6, 14, 4):
        k.e("v_max3_f32 v%d, v%d, v%d, v%d" % (m, m, V_S + i, V_S + i + 1))
        k.e("v_max3_f32 v%d, v%d, v%d, v%d" % (m2, m2, V_S + i + 2, V_S + i + 3))
    k.e("v_max3_f32 v%d, v%d, v%d, v%d" % (m, m, V_S + 14, V_S + 15))
    k.e("v_max_f32 v%d, v%d, v%d" % (m, m, m2))
    k.e("v_mov_b32 v%d, v%d" % (m2, m))
    dm()
    k.e("s_nop 1")
    k.e("v_permlane32_swap_b32 v%d, v%d" % (m, m2))
    k.e("v_max_f32 v%d, v%d, v%d" % (m, m, m2))
    k.e("v_mul_f32 v%d, s%d, v%d" % (m, S_C, m))
    for i in range(16):
        k.e("v_fma_f32 v%d, v%d, s%d, -v%d" % (V_S + i, V_S + i, S_C, m))
    for i in range(16):
        k.e("v_exp_f32 v%d, v%d" % (V_S + i, V_S + i))
        if i & 1:
            dm()
    k.e("v_add_f32 v%d, v%d, v%d" % (m, V_S, V_S + 1))
    k.e("v_add_f32 v%d, v%d, v%d" % (m2, V_S + 2, V_S + 3))
    for i in range(4, 16, 2):
        k.e("v_add_f32 v%d, v%d, v%d" % (m, m, V_S + i))
        k.e("v_add_f32 v%d, v%d, v%d" % (m2, m2, V_S + i + 1))
    k.e("v_add_f32 v%d, v%d, v%d" % (m, m, m2))
    k.e("v_mov_b32 v%d, v%d" % (m2, m))
    while pend:
        dm()
    k.e("s_nop 1")
    k.e("v_permlane32_swap_b32 v%d, v%d" % (m, m2))
    k.e("v_add_f32 v%d, v%d, v%d" % (m, m, m2))
    k.e("v_rcp_f32 v%d, v%d" % (m, m))
    k.e("s_lshl_b32 s%d, s%d, 4" % (S_T0, S_BR))
    k.e("s_add_u32 s%d, s%d, s%d" % (S_T0, S_T0, S_B))
    k.e("s_lshl_b32 s%d, s%d, 5" % (S_T0, S_T0))
    k.e("s_add_u32 s%d, s%d, s%d" % (S_T1, S_T0, S_HEAD))
    k.e("s_lshl_b32 s%d, s%d, 13" % (S_OX, S_T1))
    k.e("s_add_u32 s%d, s%d, 4096" % (S_T2, S_OX))
    for i in range(16):
        k.e("v_mul_f32 v%d, v%d, v%d" % (V_S + i, V_S + i, m))
    for j in range(8):
        k.e("v_cvt_pk_bf16_f32 v%d, v%d, v%d" % (V_PB + j, V_S + 2 * j, V_S + 2 * j + 1))
    k.wait(vm=("st10",))
    k.e("s_barrier")
    k.stamp()
    for dt in range(4):
        k.wait(lg=("v%d" % dt,))
        mfma(k, V_ACC + 16 * dt, V_FA + 8 * dt, V_PB, True)
        mfma(k, V_ACC + 16 * dt, V_FA + 8 * dt + 4, V_PB + 4, False)

    def wreads(ks):
        fa = V_FA + 16 * (ks & 1)
        return [lambda nt=nt, e=e: k.ds("ds_read_b64_tr_b16 %s, v%d offset:%d" % (vr(fa + 4 * nt + 2 * e, 2), V_WA + nt, (ks % 8) * 4096 + e * 2048), "w%d_%d" % (ks, nt))
                for nt in range(4) for e in range(2)]

    def ocvt(i):
        ops = [lambda j=j: k.e("v_cvt_pk_bf16_f32 v%d, v%d, v%d" % (V_QB + 4 * i + j, V_ACC + 8 * i + 2 * j, V_ACC + 8 * i + 2 * j + 1)) for j in range(4)]
        ops.append(lambda: k.vmem("buffer_store_dwordx4 %s, v%d, %s, s%d offen offset:%d sc1" % (vr(V_QB + 4 * i, 4), V_L16, srd(SRD_WS), S_OX if i < 4 else S_T2, (i & 3) * 1024), "ost"))
        return ops
    for op in wreads(0):
        op()
    for i in range(8):
        for op in ocvt(i):
            op()

    def p2step(ks, extra=()):
        fa = V_FA + 16 * (ks & 1)
        rd = []
        if ks < 31:
            rd = wreads(ks + 1)
            if ks % 8 == 7:
                adv = adv_read_addrs(k, list(range(V_WA, V_WA + 4)), 10 + ks // 8, 11 + ks // 8, 5)
                rd = [adv[0], rd[0], rd[1], adv[1], rd[2], rd[3], adv[2], rd[4], rd[5], adv[3], rd[6], rd[7]]
        n = len(rd) // 4
        for nt in range(4):
            k.wait(lg=("w%d_%d" % (ks, nt),), vm=("o%d" % ks,))
            if ks < 8:
                mfma(k, V_AC2 + 16 * nt, fa + 4 * nt, V_QB + 4 * ks, ks == 0)
            else:
                mfma(k, V_AC2 + 16 * nt, fa + 4 * nt, 4 * (ks - 8), False, ba=True)
            lo, hi = ([0, 3, 6, 8, 8] if n == 2 else [0, 3, 6, 9, 12])[nt:nt + 2]
            for op in rd[lo:hi]:
                op()
    for ks in range(7):
        p2step(ks)
    k.wait(vm0=True)
    k.e("v_cmp_ne_u32 vcc, 32, v%d" % (V_GOD))
    k.e("s_cbranch_vccz L_go_x")
    spin(k, "L_go", V_GOA, SRD_DBG, "0", "32")
    k.e("s_mov_b64 exec, 15")
    k.e("buffer_store_dword v%d, v%d, %s, s%d offen sc1" % (V_ONE, V_FL1, srd(SRD_WS), S_OI))
    k.e("s_mov_b64 exec, -1")
    k.e("s_barrier")
    k.stamp()
    p2step(7)
    k.e("s_and_b32 s%d, s%d, 0x%x" % (S_OX, S_OX, 0xffffffff ^ (3 << 13)))
    spin(k, "L_s1", V_PL1, SRD_WS, "s%d" % S_OI, "1")
    k.stamp()
    for j in range(1, 4):
        k.e("s_add_u32 s%d, s%d, %d" % (S_T0, S_NB, j))
        k.e("s_and_b32 s%d, s%d, 3" % (S_T0, S_T0))
        k.e("s_lshl_b32 s%d, s%d, 13" % (S_T0, S_T0))
        k.e("s_add_u32 s%d, s%d, s%d" % (S_T0, S_T0, S_OX))
        k.e("s_add_u32 s%d, s%d, 4096" % (S_T1, S_T0))
        for i in range(8):
            ks = 8 * j + i
            k.vmem("buffer_load_dwordx4 %s, v%d, %s, s%d offen offset:%d sc1" % (vr(4 * (ks - 8), 4, True), V_L16, srd(SRD_WS), S_T0 if i < 4 else S_T1, (i & 3) * 1024), "o%d" % ks)
    k.e("s_lshl2_add_u32 s%d, s%d, s%d" % (S_T0, S_BR, S_TG))
    k.e("s_lshl2_add_u32 s%d, s%d, s%d" % (S_T0, S_T0, S_NB))
    k.e("s_lshl2_add_u32 s%d, s%d, s%d" % (S_T1, S_T0, S_W))
    k.e("s_lshl_b32 s%d, s%d, 6" % (S_T1, S_T1))
    k.e("s_add_u32 s%d, s%d, s%d" % (S_T1, S_T1, S_KQ))
    k.e("s_lshl_b32 s%d, s%d, 10" % (S_T1, S_T1))
    k.e("s_add_u32 s%d, s%d, 0x%x" % (S_OP, S_T1, WS_P))
    k.e("s_lshl_b32 s%d, s%d, 3" % (S_T0, S_T0))
    k.e("s_add_u32 s%d, s%d, s%d" % (S_T0, S_T0, S_KQ))
    k.e("s_lshl2_add_u32 s%d, s%d, s%d" % (S_T0, S_T0, S_W))
    k.e("s_lshl_b32 s%d, s%d, 13" % (S_T0, S_T0))
    k.e("s_add_u32 s%d, s%d, 0x%x" % (S_OWQ, S_T0, WS_P))
    k.e("s_add_u32 s%d, s%d, 4096" % (S_OKV, S_OWQ))
    for ks in range(8, 32):
        p2step(ks)
        if ks == 8:
            k.stamp()
    k.stamp()
    k.e("s_nop 5")
    for pc in range(8):
        for j in range(4):
            k.e("v_cvt_pk_bf16_f32 v%d, v%d, v%d" % (V_QB + 4 * pc + j, V_AC2 + 8 * pc + 2 * j, V_AC2 + 8 * pc + 2 * j + 1))
        k.vmem("buffer_store_dwordx4 %s, v%d, %s, s%d offen sc1" % (vr(V_QB + 4 * pc, 4), V_L16, srd(SRD_WS), S_OP), "pst")
        if pc < 7:
            k.e("s_add_u32 s%d, s%d, 8192" % (S_OP, S_OP))
    k.e("s_lshr_b32 s%d, s%d, 1" % (S_T0, S_KQ))
    k.e("s_lshl2_add_u32 s%d, s%d, s%d" % (S_T0, S_TG, S_T0))
    k.e("s_lshl_b32 s%d, s%d, 6" % (S_T0, S_T0))
    k.e("s_add_u32 s%d, s%d, s%d" % (S_T0, S_T0, S_BR))
    k.e("s_lshl2_add_u32 s%d, s%d, s%d" % (S_T0, S_T0, S_NB))
    k.e("s_and_b32 s%d, s%d, 1" % (S_T1, S_KQ))
    k.e("s_lshl1_add_u32 s%d, s%d, s%d" % (S_T0, S_T0, S_T1))
    k.e("s_lshl2_add_u32 s%d, s%d, s%d" % (S_T0, S_T0, S_W))
    k.e("s_lshl_b32 s%d, s%d, 5" % (S_T3, S_T0))
    k.e("s_mov_b32 s%d, 0x3f80" % S_T0)
    k.e("s_mov_b32 s%d, 0x3f800000" % S_T1)
    k.wait(vm0=True)
    k.e("s_mov_b64 exec, 3")
    k.e("buffer_store_dword v%d, v%d, %s, s%d offen sc1" % (V_ONE, V_FL2, srd(SRD_WS), S_OI))
    k.e("s_mov_b64 exec, -1")
    k.stamp()
    spin(k, "L_s2", V_PL2, SRD_WS, "s%d" % S_OI, "1")
    k.stamp()
    for q in range(8):
        k.vmem("buffer_load_dwordx4 %s, v%d, %s, s%d offen offset:%d sc1" % (vr(V_ACC + 4 * q, 4), V_L16, srd(SRD_WS), S_OWQ if q < 4 else S_OKV, (q & 3) * 1024), "p%d" % q)
    for q in range(8):
        k.wait(vm=("p%d" % q,))
        for j in range(4):
            if q == 0:
                k.e("v_lshlrev_b32 v%d, 16, v%d" % (V_FA + 2 * j, V_ACC + j))
                k.e("v_and_b32 v%d, 0xffff0000, v%d" % (V_FA + 2 * j + 1, V_ACC + j))
            else:
                k.e("v_dot2_f32_bf16 v%d, v%d, s%d, v%d" % (V_FA + 2 * j, V_ACC + 4 * q + j, S_T0, V_FA + 2 * j))
                k.e("v_dot2_f32_bf16 v%d, v%d, s%d, v%d" % (V_FA + 2 * j + 1, V_ACC + 4 * q + j, S_T1, V_FA + 2 * j + 1))
    k.e("s_nop 2")
    for j in range(4):
        k.e("v_cvt_pk_bf16_f32 v%d, v%d, v%d" % (V_QB + j, V_FA + 2 * j, V_FA + 2 * j + 1))
    k.vmem("buffer_store_dwordx4 %s, v%d, %s, s%d offen" % (vr(V_QB, 4), V_OUT, srd(SRD_OUT), S_T3), "out")
    k.stamp()
    k.dump_stamps(0)
    k.lab("L_end")
    k.e("s_endpgm")
    kt = kernel_text(NAME + "_kernel", k, 512, 256)
    return finish(["; @launch grid=(256,1,1) block=(256,1,1) lds=163840"], [kt])


if __name__ == "__main__":
    mode, out = sys.argv[1], sys.argv[2]
    kw = dict(a.split("=") for a in sys.argv[3:])
    kw = {a: int(b) for a, b in kw.items()}
    open(out, "w").write(globals()["gen_" + mode](**kw))
```

```python
import sys

NAME = "concat_heads__gqa_block_cached__mha_block_cached__near_ridge"
HDR = open("cdna_kernels/%s.s.ref" % NAME).read().split("; Override launch")[0]

WS_O = 0
WS_P = 8 << 20
WS_DIAG = 24 << 20
WS_BYTES = 32 << 20

S_WG = 2
SRD_X, SRD_WQ, SRD_K, SRD_V, SRD_WO, SRD_WS, SRD_OUT, SRD_DBG = 32, 36, 40, 44, 48, 52, 56, 60
S_BR, S_HG, S_LO, S_TG, S_W, S_B, S_HEAD = 64, 65, 66, 67, 68, 69, 70
S_T0, S_T1, S_T2, S_T3 = 71, 72, 73, 74
S_OWQ, S_OX, S_OKV, S_OWO, S_OO, S_OP = 75, 76, 77, 78, 79, 80
S_MW, S_MX, S_M8 = 81, 82, 83
S_C = 84
S_STAMP = 86
SLOT = 32768


def srd(r):
    return "s[%d:%d]" % (r, r + 3)


def vr(b, n=1, a=False):
    p = "a" if a else "v"
    return "%s%d" % (p, b) if n == 1 else "%s[%d:%d]" % (p, b, b + n - 1)


class K:
    def __init__(self, diag=False):
        self.l = []
        self.vm = []
        self.lg = []
        self.diag = diag
        self.nstamp = 0

    def e(self, s):
        self.l.append("    " + s)

    def lab(self, s):
        self.l.append(s + ":")

    def c(self, s):
        self.l.append("    ; " + s)

    def vmem(self, s, tag):
        self.e(s)
        self.vm.append(tag)

    def ds(self, s, tag):
        self.e(s)
        self.lg.append(tag)

    def _cnt(self, q, tags, cap):
        idx = [i for i, t in enumerate(q) if t in tags]
        if not idx:
            return None
        n = len(q) - 1 - max(idx)
        n = min(n, cap)
        del q[: len(q) - n]
        return n

    def wait(self, vm=(), lg=(), vm0=False, lg0=False):
        p = []
        if vm0:
            self.vm = []
            p.append("vmcnt(0)")
        else:
            n = self._cnt(self.vm, vm, 63)
            if n is not None:
                p.append("vmcnt(%d)" % n)
        if lg0:
            self.lg = []
            p.append("lgkmcnt(0)")
        else:
            n = self._cnt(self.lg, lg, 15)
            if n is not None:
                p.append("lgkmcnt(%d)" % n)
        if p:
            self.e("s_waitcnt " + " ".join(p))

    def stamp(self):
        if not self.diag:
            return
        r = S_STAMP + self.nstamp
        assert r <= 100
        self.nstamp += 1
        self.e("s_memrealtime s[30:31]" if self.diag == 1 else "s_memtime s[30:31]")
        self.wait(lg0=True)
        self.e("s_mov_b32 s%d, s30" % r)

    def dump_stamps(self, kidx):
        if not self.diag:
            return
        self.e("s_lshl_b32 s%d, s2, 2" % S_T0)
        self.e("s_add_u32 s%d, s%d, s%d" % (S_T0, S_T0, S_W))
        self.e("s_lshl_b32 s%d, s%d, 6" % (S_T0, S_T0))
        self.e("s_add_u32 s%d, s%d, %d" % (S_T0, S_T0, WS_DIAG + kidx * 131072))
        self.e("v_mov_b32 v1, 0")
        self.e("s_memtime s[30:31]")
        self.wait(lg0=True)
        self.e("s_sub_u32 s101, s30, s101")
        for i in list(range(self.nstamp)) + [15]:
            self.e("v_mov_b32 v2, s%d" % (S_STAMP + i))
            self.e("buffer_store_dword v2, v1, %s, s%d offen offset:%d" % (srd(SRD_WS), S_T0, 4 * i))
            self.e("s_nop 1")


def prologue(k, endlab):
    k.e("s_cmp_ge_u32 s2, 256")
    k.e("s_cbranch_scc1 %s" % endlab)
    k.e("s_load_dwordx16 s[4:19], s[0:1], 0")
    k.e("s_load_dwordx8 s[20:27], s[0:1], 64")
    k.e("s_load_dwordx2 s[28:29], s[0:1], 96")
    if k.diag:
        k.e("%s s[%d:%d]" % ("s_memrealtime" if k.diag == 1 else "s_memtime", S_STAMP, S_STAMP + 1))
        k.e("s_memtime s[100:101]")
        k.nstamp = 1
    k.e("v_lshrrev_b32 v1, 6, v0")
    k.e("v_and_b32 v0, 63, v0")
    k.e("s_and_b32 s%d, s2, 3" % S_HG)
    k.e("v_readfirstlane_b32 s%d, v1" % S_W)
    k.e("s_bfe_u32 s%d, s2, 0x10002" % S_BR)
    k.e("s_bfe_u32 s%d, s2, 0x30003" % S_LO)
    k.e("s_bfe_u32 s%d, s2, 0x20006" % S_TG)
    k.e("s_lshl_b32 s%d, s%d, 3" % (S_HEAD, S_HG))
    k.e("s_add_u32 s%d, s%d, s%d" % (S_HEAD, S_HEAD, S_LO))
    k.e("s_lshl_b32 s%d, s%d, 2" % (S_B, S_TG))
    k.e("s_add_u32 s%d, s%d, s%d" % (S_B, S_B, S_W))
    k.e("s_lshl_b32 s%d, s%d, 12" % (S_MW, S_W))
    k.e("s_add_u32 s%d, s%d, 16384" % (S_MX, S_MW))
    k.e("s_lshl_b32 s%d, s%d, 13" % (S_M8, S_W))


def build_srds(k, which):
    k.e("s_waitcnt lgkmcnt(0)")
    if k.diag:
        k.e("s_mov_b32 s101, s100")
    k.stamp()
    k.e("s_cmp_eq_u32 s%d, 0" % S_BR)
    src = {"X": (4, 14), "K": (6, 16), "V": (8, 18), "WQ": (10, 20), "WO": (12, 22)}
    reg = {"X": SRD_X, "K": SRD_K, "V": SRD_V, "WQ": SRD_WQ, "WO": SRD_WO}
    size = {"X": (1 << 19,) * 2, "K": (1 << 20, 1 << 22), "V": (1 << 20, 1 << 22), "WQ": (1 << 22,) * 2, "WO": (1 << 22,) * 2}
    for n in which:
        if n in src:
            a, b = src[n]
            r = reg[n]
            k.e("s_cselect_b64 s[%d:%d], s[%d:%d], s[%d:%d]" % (r, r + 1, a, a + 1, b, b + 1))
            if size[n][0] == size[n][1]:
                k.e("s_mov_b32 s%d, 0x%x" % (r + 2, size[n][0]))
            else:
                k.e("s_mov_b32 s%d, 0x%x" % (r + 3, size[n][0]))
                k.e("s_cselect_b32 s%d, s%d, 0x%x" % (r + 2, r + 3, size[n][1]))
            k.e("s_mov_b32 s%d, 0x20000" % (r + 3))
        else:
            r, p, sz = {"WS": (SRD_WS, 28, WS_BYTES), "OUT": (SRD_OUT, 24, 1 << 20), "DBG": (SRD_DBG, 26, 256)}[n]
            k.e("s_mov_b64 s[%d:%d], s[%d:%d]" % (r, r + 1, p, p + 1))
            k.e("s_mov_b32 s%d, 0x%x" % (r + 2, sz))
            k.e("s_mov_b32 s%d, 0x20000" % (r + 3))


V_DWQ, V_DX, V_DK, V_DV, V_DWO = 4, 8, 12, 16, 20
V_RA, V_RB = 24, 28
V_L16 = 17
V_T = 32
V_FA = 40
V_FB = 72
V_ACC = 80
V_QB = 144
V_S = 176
V_KF = 192
V_PB = 224


def p1_dma_addrs(k):
    t = V_T
    k.e("v_lshrrev_b32 v%d, 4, v0" % t)
    k.e("v_and_b32 v%d, 15, v0" % (t + 1))
    k.e("v_lshlrev_b32 v%d, 2, v%d" % (t + 2, t))
    k.e("v_xor_b32 v%d, v%d, v%d" % (t + 2, t + 2, t + 1))
    k.e("v_lshlrev_b32 v%d, 4, v%d" % (t + 2, t + 2))
    k.e("v_lshl_add_u32 v%d, v%d, 13, v%d" % (V_DWQ, t, t + 2))
    k.e("s_lshl_b32 s%d, s%d, 17" % (S_T0, S_W))
    k.e("v_add_u32 v%d, s%d, v%d" % (V_DWQ, S_T0, V_DWQ))
    for i in range(1, 4):
        k.e("v_add_u32 v%d, %d, v%d" % (V_DWQ + i, i * (32768 - 1024), V_DWQ))
    k.e("v_lshl_add_u32 v%d, v%d, 8, v%d" % (V_DV, t, t + 2))
    k.e("v_xor_b32 v%d, v%d, v%d" % (t + 2, t, t + 1))
    k.e("v_lshlrev_b32 v%d, 4, v%d" % (t + 2, t + 2))
    k.e("v_lshl_add_u32 v%d, v%d, 8, v%d" % (V_DK, t, t + 2))
    for i in range(1, 4):
        k.e("v_xor_b32 v%d, %d, v%d" % (V_DK + i, i << 6, V_DK))
    k.e("v_lshrrev_b32 v%d, 3, v0" % t)
    k.e("v_and_b32 v%d, 7, v0" % (t + 1))
    k.e("v_lshrrev_b32 v%d, 1, v%d" % (t + 2, t))
    k.e("v_xor_b32 v%d, v%d, v%d" % (t + 2, t + 2, t + 1))
    k.e("v_lshlrev_b32 v%d, 4, v%d" % (t + 2, t + 2))
    k.e("v_lshl_add_u32 v%d, v%d, 10, v%d" % (V_DX, t, t + 2))
    k.e("v_xor_b32 v%d, 64, v%d" % (V_DX + 1, V_DX))
    k.e("v_add_u32 v%d, %d, v%d" % (V_DX + 2, 2 * 7168, V_DX))
    k.e("v_add_u32 v%d, %d, v%d" % (V_DX + 3, 3 * 7168, V_DX + 1))
    k.e("v_add_u32 v%d, %d, v%d" % (V_DX + 1, 7168, V_DX + 1))
    k.e("s_lshl_b32 s%d, s%d, 8" % (S_OWQ, S_HEAD))
    k.e("s_lshl_b32 s%d, s%d, 15" % (S_OX, S_B))
    k.e("s_lshr_b32 s%d, s%d, 2" % (S_T0, S_HEAD))
    k.e("s_lshl_b32 s%d, s%d, 3" % (S_T1, S_B))
    k.e("s_add_u32 s%d, s%d, s%d" % (S_T0, S_T0, S_T1))
    k.e("s_lshl_b32 s%d, s%d, 5" % (S_T1, S_B))
    k.e("s_add_u32 s%d, s%d, s%d" % (S_T1, S_T1, S_HEAD))
    k.e("s_cmp_eq_u32 s%d, 0" % S_BR)
    k.e("s_cselect_b32 s%d, s%d, s%d" % (S_OKV, S_T0, S_T1))
    k.e("s_lshl_b32 s%d, s%d, 13" % (S_OKV, S_OKV))


def p2_dma_addrs(k):
    t = V_T
    k.e("v_lshrrev_b32 v%d, 3, v0" % t)
    k.e("v_and_b32 v%d, 7, v0" % (t + 1))
    k.e("v_lshlrev_b32 v%d, 1, v%d" % (t + 2, t))
    k.e("v_and_b32 v%d, 4, v%d" % (t + 2, t + 2))
    k.e("v_xor_b32 v%d, v%d, v%d" % (t + 2, t + 2, t + 1))
    k.e("v_lshlrev_b32 v%d, 4, v%d" % (t + 2, t + 2))
    k.e("v_lshl_add_u32 v%d, v%d, 10, v%d" % (V_DWO, t, t + 2))
    k.e("s_lshl_b32 s%d, s%d, 16" % (S_T0, S_W))
    k.e("v_add_u32 v%d, s%d, v%d" % (V_DWO, S_T0, V_DWO))
    for i in range(1, 4):
        k.e("v_add_u32 v%d, %d, v%d" % (V_DWO + i, i * 7168, V_DWO))
    k.e("s_lshl_b32 s%d, s%d, 20" % (S_OWO, S_HG))
    k.e("s_lshl_b32 s%d, s%d, 7" % (S_T0, S_LO))
    k.e("s_add_u32 s%d, s%d, s%d" % (S_OWO, S_OWO, S_T0))


def dma_stage(k, st, nslot, pol=""):
    base = (st % nslot) * SLOT
    tag = "st%d" % st
    ops = []

    def grp(m_sreg, m_add, sr, voffs, soff, adv):
        def first():
            k.e("s_add_u32 m0, s%d, %d" % (m_sreg, base + m_add))
            k.e("s_nop 0")
            k.vmem("buffer_load_dwordx4 v%d, %s, s%d offen%s lds" % (voffs[0], srd(sr), soff, pol), tag)
        ops.append(first)
        for i in range(1, 4):
            def nxt(i=i):
                k.vmem("buffer_load_dwordx4 v%d, %s, s%d offen offset:%d%s lds" % (voffs[i], srd(sr), soff, i * 1024, pol), tag)
                if i == 3 and adv:
                    k.e("s_add_u32 s%d, s%d, %d" % (soff, soff, adv))
            ops.append(nxt)

    if st < 8:
        grp(S_MW, 0, SRD_WQ, [V_DWQ + i for i in range(4)], S_OWQ, 64 * 8192)
        grp(S_MX, 0, SRD_X, [V_DX + i for i in range(4)], S_OX, 128)
    elif st == 8:
        grp(S_M8, 0, SRD_K, [V_DK + i for i in range(4)], S_OKV, 4096)
        grp(S_M8, 4096, SRD_K, [V_DK + i for i in range(4)], S_OKV, -4096 & 0xffffffff)
    elif st == 9:
        grp(S_M8, 0, SRD_V, [V_DV] * 4, S_OKV, 4096)
        grp(S_M8, 4096, SRD_V, [V_DV] * 4, S_OKV, 0)
    else:
        grp(S_M8, 0, SRD_WO, [V_DWO + i for i in range(4)], S_OWO, 4 * 8192)
        grp(S_M8, 4096, SRD_WO, [V_DWO + i for i in range(4)], S_OWO, 256 * 1024 - 4 * 8192)
    return ops


def tr_lane_terms(k, t):
    k.e("v_lshrrev_b32 v%d, 5, v0" % t)
    k.e("v_bfe_u32 v%d, v0, 2, 2" % (t + 1))
    k.e("v_bfe_u32 v%d, v0, 4, 1" % (t + 2))
    k.e("v_and_b32 v%d, 3, v0" % (t + 3))


def pi_term(k, dst, t):
    k.e("v_and_b32 v%d, 1, v0" % dst)
    k.e("v_lshlrev_b32 v%d, 4, v%d" % (dst, dst))
    k.e("v_and_b32 v%d, 2, v0" % (t + 4))
    k.e("v_lshl_add_u32 v%d, v%d, 2, v%d" % (dst, t + 4, dst))
    k.e("v_lshl_add_u32 v%d, v%d, 5, v%d" % (dst, t + 2, dst))


def p1_read_addrs(k):
    t = V_T
    tr_lane_terms(k, t)
    pi_term(k, V_RA, t)
    k.e("v_lshl_add_u32 v%d, v%d, 3, v%d" % (t + 4, t, t + 1))
    k.e("v_lshl_add_u32 v%d, v%d, 8, v%d" % (V_RA, t + 4, V_RA))
    k.e("v_lshl_add_u32 v%d, v%d, 6, v%d" % (V_RA, t + 1, V_RA))
    for dt in range(1, 4):
        k.e("v_xor_b32 v%d, %d, v%d" % (V_RA + dt, dt << 6, V_RA))
    k.e("v_and_b32 v%d, 31, v0" % (t + 4))
    k.e("v_bfe_u32 v%d, v0, 1, 3" % (t + 5))
    k.e("v_xor_b32 v%d, v%d, v%d" % (t + 5, t + 5, t))
    k.e("v_lshlrev_b32 v%d, 4, v%d" % (t + 5, t + 5))
    k.e("v_lshl_add_u32 v%d, v%d, 7, v%d" % (V_RB, t + 4, t + 5))
    k.e("v_add_u32 v%d, s%d, v%d" % (V_RB, S_MX, V_RB))
    for s in range(1, 4):
        k.e("v_xor_b32 v%d, %d, v%d" % (V_RB + s, s << 5, V_RB))


def mfma(k, d, a, b, first, aa=False, ba=False):
    k.e("v_mfma_f32_32x32x16_bf16 %s, %s, %s, %s" % (vr(d, 16), vr(a, 4, aa), vr(b, 4, ba), "0" if first else vr(d, 16)))


def p1_reads(k, g, nslot):
    st, s = g // 4, g % 4
    fa, fb = V_FA + 16 * (g & 1), V_FB + 4 * (g & 1)
    ops = [lambda: k.ds("ds_read_b128 %s, v%d" % (vr(fb, 4), V_RB + s), "b%d" % g)]
    for dt in range(4):
        for e in range(2):
            ops.append(lambda dt=dt, e=e: k.ds("ds_read_b64_tr_b16 %s, v%d offset:%d" % (vr(fa + 4 * dt + 2 * e, 2), V_RA + dt, s * 4096 + e * 1024), "a%d_%d" % (g, dt)))
    return ops


def adv_read_addrs(k, regs, st_from, st_to, nslot):
    d = ((st_to % nslot) - (st_from % nslot)) * SLOT
    return [lambda r=r: k.e("v_add_u32 v%d, 0x%x, v%d" % (r, d & 0xffffffff, r)) for r in regs]


def phase1(k, nslot, last_stage, pol=""):
    p1_dma_addrs(k)
    build_srds(k, ["WQ", "X", "K", "V", "WS"] + (["WO", "OUT", "DBG"] if last_stage >= 10 else []))
    for st in range(nslot):
        for op in dma_stage(k, st, nslot, pol):
            op()
    p1_read_addrs(k)
    if last_stage >= 10:
        p2_dma_addrs(k)
    k.e("v_lshlrev_b32 v%d, 4, v0" % V_L16)
    k.wait(vm=("st0",))
    k.e("s_barrier")
    k.stamp()
    for op in p1_reads(k, 0, nslot):
        op()
    for g in range(32):
        st, s = g // 4, g % 4
        fa, fb = V_FA + 16 * (g & 1), V_FB + 4 * (g & 1)
        pre, fill = [], []
        if s == 3:
            k.wait(vm=("st%d" % (st + 1),), lg0=True)
            k.e("s_barrier")
            k.stamp()
            if st < 7:
                pre += adv_read_addrs(k, list(range(V_RB, V_RB + 4)) + list(range(V_RA, V_RA + 4)), st, st + 1, nslot)
            if st + nslot <= last_stage:
                fill += dma_stage(k, st + nslot, nslot, pol)
        rd = p1_reads(k, g + 1, nslot) if g < 31 else []
        if s == 3 and st < 7:
            seq = [pre[0], rd[0], pre[4], rd[1], rd[2], pre[5], rd[3], rd[4], pre[6], rd[5], rd[6], pre[7], rd[7], rd[8]] + pre[1:4]
            split = [5, 3, 3, 6]
        else:
            seq = rd
            split = [4, 3, 2, 0]
        pos = 0
        for dt in range(4):
            k.wait(lg=("b%d" % g, "a%d_%d" % (g, dt)))
            mfma(k, V_ACC + 16 * dt, fa + 4 * dt, fb, g == 0)
            for op in seq[pos:pos + split[dt]]:
                op()
            pos += split[dt]
            for op in fill[2 * dt:2 * dt + 2]:
                op()


def attention(k, nslot, last_stage, pol="", opol=""):
    t = V_T
    kb, vb = (8 % nslot) * SLOT, (9 % nslot) * SLOT
    k.e("v_lshrrev_b32 v%d, 5, v0" % t)
    k.e("v_and_b32 v%d, 15, v0" % (t + 1))
    k.e("v_xor_b32 v%d, v%d, v%d" % (t + 1, t + 1, t))
    k.e("v_lshlrev_b32 v%d, 4, v%d" % (t + 1, t + 1))
    k.e("v_and_b32 v%d, 31, v0" % (t + 2))
    k.e("v_lshl_add_u32 v%d, v%d, 8, v%d" % (t + 1, t + 2, t + 1))
    k.e("s_add_u32 s%d, s%d, %d" % (S_T0, S_M8, kb))
    k.e("v_add_u32 v%d, s%d, v%d" % (t + 1, S_T0, t + 1))
    k.wait(vm=("st8",))
    for i in range(8):
        if i:
            k.e("v_xor_b32 v%d, %d, v%d" % (t + 2, i << 5, t + 1))
        k.ds("ds_read_b128 %s, v%d" % (vr(V_KF + 4 * i, 4), t + 2 if i else t + 1), "k%d" % i)
    tr_lane_terms(k, t)
    k.e("v_lshlrev_b32 v%d, 3, v%d" % (V_RA, t + 3))
    k.e("v_lshl_add_u32 v%d, v%d, 5, v%d" % (V_RA, t + 2, V_RA))
    k.e("v_lshl_add_u32 v%d, v%d, 2, v%d" % (t + 4, t, t + 1))
    k.e("v_lshl_add_u32 v%d, v%d, 8, v%d" % (V_RA, t + 4, V_RA))
    k.e("v_lshl_add_u32 v%d, v%d, 6, v%d" % (V_RA, t + 1, V_RA))
    k.e("s_add_u32 s%d, s%d, %d" % (S_T0, S_M8, vb))
    k.e("v_add_u32 v%d, s%d, v%d" % (V_RA, S_T0, V_RA))
    for dt in range(1, 4):
        k.e("v_xor_b32 v%d, %d, v%d" % (V_RA + dt, dt << 6, V_RA))
    k.e("s_mov_b32 s%d, 0x3e0293ee" % S_C)
    for i in range(8):
        for j in range(4):
            k.e("v_cvt_pk_bf16_f32 v%d, v%d, v%d" % (V_QB + 4 * i + j, V_ACC + 8 * i + 2 * j, V_ACC + 8 * i + 2 * j + 1))
        if i >= 1:
            k.wait(lg=("k%d" % (i - 1),))
            mfma(k, V_S, V_KF + 4 * (i - 1), V_QB + 4 * (i - 1), i == 1)
    k.wait(lg=("k7",), vm=("st9",))
    k.e("s_nop 0")
    mfma(k, V_S, V_KF + 28, V_QB + 28, False)
    for dt in range(4):
        for u in range(2):
            for e in range(2):
                k.ds("ds_read_b64_tr_b16 %s, v%d offset:%d" % (vr(V_FA + 8 * dt + 4 * u + 2 * e, 2), V_RA + dt, (16 * u + 8 * e) * 256), "v%d" % dt)
    m, m2 = t, t + 1
    k.e("v_max3_f32 v%d, v%d, v%d, v%d" % (m, V_S, V_S + 1, V_S + 2))
    k.e("v_max3_f32 v%d, v%d, v%d, v%d" % (m2, V_S + 3, V_S + 4, V_S + 5))
    for i in range(6, 14, 4):
        k.e("v_max3_f32 v%d, v%d, v%d, v%d" % (m, m, V_S + i, V_S + i + 1))
        k.e("v_max3_f32 v%d, v%d, v%d, v%d" % (m2, m2, V_S + i + 2, V_S + i + 3))
    k.e("v_max3_f32 v%d, v%d, v%d, v%d" % (m, m, V_S + 14, V_S + 15))
    k.e("v_max_f32 v%d, v%d, v%d" % (m, m, m2))
    k.e("v_mov_b32 v%d, v%d" % (m2, m))
    k.e("s_nop 1")
    k.e("v_permlane32_swap_b32 v%d, v%d" % (m, m2))
    k.e("v_max_f32 v%d, v%d, v%d" % (m, m, m2))
    k.e("v_mul_f32 v%d, s%d, v%d" % (m, S_C, m))
    for i in range(16):
        k.e("v_fma_f32 v%d, v%d, s%d, -v%d" % (V_S + i, V_S + i, S_C, m))
    for i in range(16):
        k.e("v_exp_f32 v%d, v%d" % (V_S + i, V_S + i))
    k.e("v_add_f32 v%d, v%d, v%d" % (m, V_S, V_S + 1))
    k.e("v_add_f32 v%d, v%d, v%d" % (m2, V_S + 2, V_S + 3))
    for i in range(4, 16, 2):
        k.e("v_add_f32 v%d, v%d, v%d" % (m, m, V_S + i))
        k.e("v_add_f32 v%d, v%d, v%d" % (m2, m2, V_S + i + 1))
    k.e("v_add_f32 v%d, v%d, v%d" % (m, m, m2))
    k.e("v_mov_b32 v%d, v%d" % (m2, m))
    k.e("s_nop 1")
    k.e("v_permlane32_swap_b32 v%d, v%d" % (m, m2))
    k.e("v_add_f32 v%d, v%d, v%d" % (m, m, m2))
    k.e("v_rcp_f32 v%d, v%d" % (m, m))
    k.e("s_nop 0")
    for i in range(16):
        k.e("v_mul_f32 v%d, v%d, v%d" % (V_S + i, V_S + i, m))
    for j in range(8):
        k.e("v_cvt_pk_bf16_f32 v%d, v%d, v%d" % (V_PB + j, V_S + 2 * j, V_S + 2 * j + 1))
    k.e("s_lshl_b32 s%d, s%d, 4" % (S_T0, S_BR))
    k.e("s_add_u32 s%d, s%d, s%d" % (S_T0, S_T0, S_B))
    k.e("s_lshl_b32 s%d, s%d, 5" % (S_T0, S_T0))
    k.e("s_add_u32 s%d, s%d, s%d" % (S_T1, S_T0, S_HEAD))
    k.e("s_lshl_b32 s%d, s%d, 13" % (S_OO, S_T1))
    k.e("s_add_u32 s%d, s%d, 4096" % (S_T2, S_OO))
    for dt in range(4):
        k.wait(lg=("v%d" % dt,))
        mfma(k, V_ACC + 16 * dt, V_FA + 8 * dt, V_PB, True)
        mfma(k, V_ACC + 16 * dt, V_FA + 8 * dt + 4, V_PB + 4, False)
    k.e("s_nop 5")
    for i in range(8):
        if i == 6:
            k.e("s_nop 1")
        for j in range(4):
            k.e("v_cvt_pk_bf16_f32 v%d, v%d, v%d" % (V_QB + 4 * i + j, V_ACC + 8 * i + 2 * j, V_ACC + 8 * i + 2 * j + 1))
        k.vmem("buffer_store_dwordx4 %s, v%d, %s, s%d offen offset:%d%s" % (vr(V_QB + 4 * i, 4), V_L16, srd(SRD_WS), S_OO if i < 4 else S_T2, (i & 3) * 1024, opol), "ost")


def p2_read_addrs(k, first_stage, nslot):
    t = V_T
    tr_lane_terms(k, t)
    pi_term(k, V_RA, t)
    k.e("v_lshl_add_u32 v%d, v%d, 2, v%d" % (t + 4, t, t + 1))
    k.e("v_lshl_add_u32 v%d, v%d, 7, v%d" % (V_RA, t + 4, V_RA))
    k.e("v_lshrrev_b32 v%d, 1, v%d" % (t + 4, t + 1))
    k.e("v_lshl_add_u32 v%d, v%d, 6, v%d" % (V_RA, t + 4, V_RA))
    b = (first_stage % nslot) * SLOT
    if b:
        k.e("v_add_u32 v%d, 0x%x, v%d" % (V_RA, b, V_RA))
    k.e("v_xor_b32 v%d, 64, v%d" % (V_RA + 1, V_RA))


def o_loads(k, lo, hi, opol):
    for ks in range(lo, hi):
        k.vmem("buffer_load_dwordx4 %s, v%d, %s, s%d offen offset:%d%s" % (vr(4 * ks, 4, True), V_L16, srd(SRD_WS), S_OO, (ks & 3) * 1024, opol), "o%d" % ks)
        if ks & 3 == 3:
            k.e("s_add_u32 s%d, s%d, 4096" % (S_OO, S_OO))


def o_load_base(k):
    k.e("s_lshl_b32 s%d, s%d, 4" % (S_T0, S_BR))
    k.e("s_add_u32 s%d, s%d, s%d" % (S_T0, S_T0, S_B))
    k.e("s_lshl_b32 s%d, s%d, 2" % (S_T0, S_T0))
    k.e("s_add_u32 s%d, s%d, s%d" % (S_T0, S_T0, S_HG))
    k.e("s_lshl_b32 s%d, s%d, 16" % (S_OO, S_T0))


def phase2_compute(k, nslot, all_landed):
    NSET = 4

    def reads(ks):
        fa = V_FA + 8 * (ks % NSET)
        for nt in range(2):
            for e in range(2):
                k.ds("ds_read_b64_tr_b16 %s, v%d offset:%d" % (vr(fa + 4 * nt + 2 * e, 2), V_RA + nt, ((ks % 16) * 16 + 8 * e) * 128), "w%d" % ks)

    def enter(ks):
        if ks % 16 == 0:
            st = 10 + ks // 16
            if ks:
                for op in adv_read_addrs(k, [V_RA, V_RA + 1], st - 1, st, nslot):
                    op()
            if not all_landed:
                k.wait(vm=("st%d" % st,))
                k.e("s_barrier")
                k.stamp()
    for ks in range(NSET - 1):
        enter(ks)
        reads(ks)
    for ks in range(64):
        k.wait(vm=("o%d" % ks,), lg=("w%d" % ks,))
        fa = V_FA + 8 * (ks % NSET)
        mfma(k, V_ACC, fa, 4 * ks, ks == 0, ba=True)
        mfma(k, V_ACC + 16, fa + 4, 4 * ks, ks == 0, ba=True)
        n = ks + NSET - 1
        if n < 64:
            enter(n)
            reads(n)


def part_base(k, j_sreg, hg_sreg):
    k.e("s_lshl_b32 s%d, s%d, 2" % (S_T0, S_BR))
    k.e("s_add_u32 s%d, s%d, s%d" % (S_T0, S_T0, S_TG))
    k.e("s_lshl_b32 s%d, s%d, 3" % (S_T0, S_T0))
    k.e("s_add_u32 s%d, s%d, s%d" % (S_T0, S_T0, S_LO))
    k.e("s_lshl_b32 s%d, s%d, 2" % (S_T0, S_T0))
    k.e("s_add_u32 s%d, s%d, s%d" % (S_T0, S_T0, j_sreg))
    k.e("s_lshl_b32 s%d, s%d, 2" % (S_T0, S_T0))
    if hg_sreg is not None:
        k.e("s_add_u32 s%d, s%d, s%d" % (S_T0, S_T0, hg_sreg))
    k.e("s_lshl_b32 s%d, s%d, 13" % (S_T0, S_T0))
    k.e("s_add_u32 s%d, s%d, 0x%x" % (S_OP, S_T0, WS_P))


def part_store(k, opol):
    part_base(k, S_W, S_HG)
    k.e("s_add_u32 s%d, s%d, 4096" % (S_T2, S_OP))
    k.e("s_nop 3")
    for i in range(8):
        k.vmem("buffer_store_dwordx4 %s, v%d, %s, s%d offen offset:%d%s" % (vr(V_ACC + 4 * i, 4), V_L16, srd(SRD_WS), S_OP if i < 4 else S_T2, (i & 3) * 1024, opol), "pst")


def reduce_store(k, opol):
    part_base(k, S_HG, None)
    k.e("s_lshl_b32 s%d, s%d, 11" % (S_T0, S_W))
    k.e("s_add_u32 s%d, s%d, s%d" % (S_OP, S_OP, S_T0))
    for q in range(4):
        for i in range(2):
            k.vmem("buffer_load_dwordx4 %s, v%d, %s, s%d offen offset:%d%s" % (vr(V_KF + 8 * q + 4 * i, 4), V_L16, srd(SRD_WS), S_OP, i * 1024, opol), "p%d" % q)
        if q < 3:
            k.e("s_add_u32 s%d, s%d, 8192" % (S_OP, S_OP))
    t = V_T
    k.e("v_and_b32 v%d, 31, v0" % t)
    k.e("v_lshrrev_b32 v%d, 5, v0" % (t + 1))
    k.e("v_lshlrev_b32 v%d, 11, v%d" % (t, t))
    k.e("v_lshl_add_u32 v%d, v%d, 4, v%d" % (t, t + 1, t))
    k.e("s_lshl_b32 s%d, s%d, 2" % (S_T0, S_TG))
    k.e("s_add_u32 s%d, s%d, s%d" % (S_T0, S_T0, S_HG))
    k.e("s_lshl_b32 s%d, s%d, 16" % (S_T0, S_T0))
    k.e("s_lshl_b32 s%d, s%d, 10" % (S_T1, S_BR))
    k.e("s_add_u32 s%d, s%d, s%d" % (S_T0, S_T0, S_T1))
    k.e("s_lshl_b32 s%d, s%d, 7" % (S_T1, S_LO))
    k.e("s_add_u32 s%d, s%d, s%d" % (S_T0, S_T0, S_T1))
    k.e("s_lshl_b32 s%d, s%d, 5" % (S_T1, S_W))
    k.e("s_add_u32 s%d, s%d, s%d" % (S_T0, S_T0, S_T1))
    k.wait(vm=("p1",))
    for i in range(8):
        k.e("v_add_f32 v%d, v%d, v%d" % (V_KF + i, V_KF + i, V_KF + 8 + i))
    k.wait(vm=("p3",))
    for i in range(8):
        k.e("v_add_f32 v%d, v%d, v%d" % (V_KF + 16 + i, V_KF + 16 + i, V_KF + 24 + i))
    for i in range(8):
        k.e("v_add_f32 v%d, v%d, v%d" % (V_KF + i, V_KF + i, V_KF + 16 + i))
    for j in range(4):
        k.e("v_cvt_pk_bf16_f32 v%d, v%d, v%d" % (V_PB + j, V_KF + 2 * j, V_KF + 2 * j + 1))
    k.vmem("buffer_store_dwordx4 %s, v%d, %s, s%d offen" % (vr(V_PB, 4), t, srd(SRD_OUT), S_T0), "out")


def kernel_text(name, k, nv=256, acc=256):
    return ("\n.globl %s\n.p2align 8\n.type %s,@function\n%s:\n" % (name, name, name)) + "\n".join(k.l) + "\n", \
        (".p2align 6\n.amdhsa_kernel %s\n  .amdhsa_next_free_vgpr %d\n  .amdhsa_next_free_sgpr 102\n  .amdhsa_accum_offset %d\n"
         "  .amdhsa_group_segment_fixed_size 0\n  .amdhsa_kernarg_size 104\n  .amdhsa_user_sgpr_count 2\n"
         "  .amdhsa_user_sgpr_kernarg_segment_ptr 1\n  .amdhsa_system_sgpr_workgroup_id_x 1\n.end_amdhsa_kernel\n" % (name, nv, acc))


def finish(launches, kernels):
    s = HDR
    for l in launches:
        s += l + "\n"
    s += '.amdgcn_target "amdgcn-amd-amdhsa--gfx950"\n.text\n'
    s += "".join(t for t, _ in kernels)
    s += '.section .rodata,"a"\n'
    s += "".join(d for _, d in kernels)
    return s


def gen_three(diag=False, extra_empty=0):
    ks = []
    k = K(diag)
    prologue(k, "L1_end")
    phase1(k, 5, 9)
    k.stamp()
    attention(k, 5, 9)
    k.stamp()
    k.dump_stamps(0)
    k.lab("L1_end")
    k.e("s_endpgm")
    ks.append(kernel_text("p1_kernel", k))
    k = K(diag)
    prologue(k, "L2_end")
    p2_dma_addrs(k)
    k.e("v_lshlrev_b32 v%d, 4, v0" % V_L16)
    o_load_base(k)
    build_srds(k, ["WO", "WS"])
    for q in range(4):
        for op in dma_stage(k, 10 + q, 5):
            op()
        o_loads(k, 16 * q, 16 * q + 16 if q < 3 else 56, "")
    p2_read_addrs(k, 10, 5)
    k.wait(vm=("st10",))
    o_loads(k, 56, 64, "")
    k.stamp()
    phase2_compute(k, 5, False)
    k.stamp()
    part_store(k, "")
    k.dump_stamps(1)
    k.lab("L2_end")
    k.e("s_endpgm")
    ks.append(kernel_text("p2_kernel", k, 512, 256))
    k = K(diag)
    prologue(k, "L3_end")
    k.e("v_lshlrev_b32 v%d, 4, v0" % V_L16)
    build_srds(k, ["WS", "OUT"])
    reduce_store(k, "")
    k.stamp()
    k.dump_stamps(2)
    k.lab("L3_end")
    k.e("s_endpgm")
    ks.append(kernel_text("p3_kernel", k))
    L = ["; @launch kernel=p1_kernel grid=(256,1,1) block=(256,1,1) lds=163840",
         "; @launch kernel=p2_kernel grid=(256,1,1) block=(256,1,1) lds=163840",
         "; @launch kernel=p3_kernel grid=(256,1,1) block=(256,1,1) lds=0"]
    if extra_empty:
        k = K()
        k.e("s_endpgm")
        ks.append(kernel_text("nop_kernel", k, 8, 8))
        L += ["; @launch kernel=nop_kernel grid=(256,1,1) block=(256,1,1) lds=0"] * extra_empty
    return finish(L, ks)


WS_F = 16 << 20
V_KA, V_VA, V_WA = 18, 19, 240
V_FL1, V_FL2, V_PL1, V_PL2, V_GO, V_ONE, V_OUT = 244, 245, 246, 247, 248, 249, 250
V_GOA, V_GOD = 251, 252
V_AC2 = 176
S_NB, S_KQ, S_OWO2, S_GO, S_SPIN, S_OI = 85, 3, 78, 30, 31, 79


def one_addrs(k):
    t = V_T
    k.e("s_and_b32 s%d, s%d, 3" % (S_NB, S_LO))
    k.e("s_lshr_b32 s%d, s%d, 2" % (S_KQ, S_HEAD))
    k.e("v_lshrrev_b32 v%d, 4, v0" % t)
    k.e("v_and_b32 v%d, 15, v0" % (t + 1))
    k.e("v_lshlrev_b32 v%d, 2, v%d" % (t + 2, t))
    k.e("v_xor_b32 v%d, v%d, v%d" % (t + 2, t + 2, t + 1))
    k.e("v_lshlrev_b32 v%d, 4, v%d" % (t + 2, t + 2))
    k.e("v_lshl_add_u32 v%d, v%d, 10, v%d" % (V_DWO, t, t + 2))
    k.e("s_lshl_b32 s%d, s%d, 15" % (S_T0, S_W))
    k.e("v_add_u32 v%d, s%d, v%d" % (V_DWO, S_T0, V_DWO))
    for i in range(1, 4):
        k.e("v_add_u32 v%d, %d, v%d" % (V_DWO + i, i * 3072, V_DWO))
    k.e("v_lshrrev_b32 v%d, 5, v0" % t)
    k.e("v_and_b32 v%d, 15, v0" % (t + 1))
    k.e("v_xor_b32 v%d, v%d, v%d" % (t + 1, t + 1, t))
    k.e("v_lshlrev_b32 v%d, 4, v%d" % (t + 1, t + 1))
    k.e("v_and_b32 v%d, 31, v0" % (t + 2))
    k.e("v_lshl_add_u32 v%d, v%d, 8, v%d" % (V_KA, t + 2, t + 1))
    k.e("s_add_u32 s%d, s%d, %d" % (S_T0, S_M8, 3 * SLOT))
    k.e("v_add_u32 v%d, s%d, v%d" % (V_KA, S_T0, V_KA))
    k.e("v_lshlrev_b32 v%d, 11, v%d" % (V_OUT, t + 2))
    k.e("v_lshl_add_u32 v%d, v%d, 4, v%d" % (V_OUT, t, V_OUT))
    tr_lane_terms(k, t)
    k.e("v_lshl_add_u32 v%d, v%d, 2, v%d" % (t + 5, t, t + 1))
    k.e("v_lshlrev_b32 v%d, 8, v%d" % (t + 5, t + 5))
    k.e("v_lshl_add_u32 v%d, v%d, 6, v%d" % (t + 5, t + 1, t + 5))
    k.e("v_lshl_add_u32 v%d, v%d, 3, v%d" % (V_VA, t + 3, t + 5))
    k.e("v_lshl_add_u32 v%d, v%d, 5, v%d" % (V_VA, t + 2, V_VA))
    k.e("s_add_u32 s%d, s%d, %d" % (S_T0, S_M8, 4 * SLOT))
    k.e("v_add_u32 v%d, s%d, v%d" % (V_VA, S_T0, V_VA))
    pi_term(k, V_WA, t)
    k.e("v_add_u32 v%d, v%d, v%d" % (V_WA, V_WA, t + 5))
    for nt in range(1, 4):
        k.e("v_xor_b32 v%d, %d, v%d" % (V_WA + nt, nt << 6, V_WA))
    k.e("s_and_b32 s%d, s2, 0xe7" % S_T0)
    k.e("s_lshl_b32 s%d, s%d, 8" % (S_T0, S_T0))
    k.e("s_lshl_b32 s%d, s%d, 4" % (S_T1, S_W))
    k.e("s_add_u32 s%d, s%d, s%d" % (S_T0, S_T0, S_T1))
    k.e("s_lshl_b32 s%d, s%d, 2" % (S_T2, S_NB))
    k.e("s_add_u32 s%d, s%d, s%d" % (S_T0, S_T0, S_T2))
    k.e("v_and_b32 v%d, 3, v0" % t)
    k.e("v_lshlrev_b32 v%d, 11, v%d" % (V_FL1, t))
    k.e("v_add_u32 v%d, s%d, v%d" % (V_FL1, S_T0, V_FL1))
    k.e("s_lshl_b32 s%d, s2, 8" % S_T0)
    k.e("s_add_u32 s%d, s%d, s%d" % (S_T1, S_T0, S_T1))
    k.e("v_lshlrev_b32 v%d, 2, v%d" % (V_PL1, t))
    k.e("v_add_u32 v%d, s%d, v%d" % (V_PL1, S_T1, V_PL1))
    k.e("v_and_b32 v%d, 7, v0" % t)
    k.e("v_lshlrev_b32 v%d, 2, v%d" % (V_PL2, t))
    k.e("s_add_u32 s%d, s%d, 128" % (S_T1, S_T0))
    k.e("v_add_u32 v%d, s%d, v%d" % (V_PL2, S_T1, V_PL2))
    k.e("s_and_b32 s%d, s2, 0xdc" % S_T0)
    k.e("s_or_b32 s%d, s%d, s%d" % (S_T0, S_T0, S_W))
    k.e("s_lshl_b32 s%d, s%d, 8" % (S_T0, S_T0))
    k.e("s_lshl_b32 s%d, s%d, 2" % (S_T1, S_KQ))
    k.e("s_add_u32 s%d, s%d, s%d" % (S_T0, S_T0, S_T1))
    k.e("s_add_u32 s%d, s%d, 128" % (S_T0, S_T0))
    k.e("v_and_b32 v%d, 1, v0" % t)
    k.e("v_lshlrev_b32 v%d, 13, v%d" % (V_FL2, t))
    k.e("v_add_u32 v%d, s%d, v%d" % (V_FL2, S_T0, V_FL2))
    k.e("v_mov_b32 v%d, 1" % V_ONE)
    k.e("s_lshl_b32 s%d, s%d, 1" % (S_GO, S_TG))
    k.e("s_add_u32 s%d, s%d, s%d" % (S_GO, S_GO, S_BR))
    k.e("s_lshl_b32 s%d, s%d, 5" % (S_GO, S_GO))
    k.e("v_mov_b32 v%d, s%d" % (V_GOA, S_GO))


def wo_stage(k, st, pol):
    j = st - 10
    base = (st % 5) * SLOT
    tag = "st%d" % st
    ops = []
    for g in range(2):
        for i in range(4):
            def op(g=g, i=i):
                if i == 0:
                    if g == 0:
                        k.e("s_add_u32 s%d, s%d, %d" % (S_T3, S_NB, j))
                        k.e("s_and_b32 s%d, s%d, 3" % (S_T3, S_T3))
                        k.e("s_lshl2_add_u32 s%d, s%d, s%d" % (S_T3, S_KQ, S_T3))
                        k.e("s_lshl_b32 s%d, s%d, 9" % (S_T3, S_T3))
                        k.e("s_add_u32 s%d, s%d, s%d" % (S_T3, S_T3, S_NB))
                        k.e("s_lshl_b32 s%d, s%d, 8" % (S_OWO2, S_T3))
                    else:
                        k.e("s_add_u32 s%d, s%d, 16384" % (S_OWO2, S_OWO2))
                    k.e("s_add_u32 m0, s%d, %d" % (S_M8, base + 4096 * g))
                    k.e("s_nop 0")
                k.vmem("buffer_load_dwordx4 v%d, %s, s%d offen offset:%d%s lds" % (V_DWO + i, srd(SRD_WO), S_OWO2, i * 1024, pol), tag)
            ops.append(op)
    return ops


def spin(k, name, addr, sr, soff, expect, cmp="ne"):
    k.e("s_mov_b32 s%d, 0x40000" % S_SPIN)
    k.lab(name)
    k.e("buffer_load_dword v%d, v%d, %s, %s offen sc1" % (V_GO, addr, srd(sr), soff))
    k.e("s_sub_u32 s%d, s%d, 1" % (S_SPIN, S_SPIN))
    k.e("s_cbranch_scc1 %s_x" % name)
    k.wait(vm0=True)
    k.e("v_cmp_%s_u32 vcc, %s, v%d" % (cmp, expect, V_GO))
    k.e("s_cbranch_vccnz %s" % name)
    k.lab(name + "_x")


def gen_one(diag=0, L=4, nt=0, pad=0):
    k = K(diag)
    pol = " nt" if nt else ""
    t = V_T

    def stage(st):
        return dma_stage(k, st, 5, pol if st >= 8 else "") if st < 10 else wo_stage(k, st, "")
    prologue(k, "L_end")
    if pad:
        k.e("s_memrealtime s[98:99]")
    p1_dma_addrs(k)
    p1_read_addrs(k)
    one_addrs(k)
    k.e("v_lshlrev_b32 v%d, 4, v0" % V_L16)
    k.e("v_lshlrev_b32 v1, 2, v0")
    k.e("v_mov_b32 v2, 0")
    k.e("s_lshl_b32 s%d, s2, 8" % S_T2)
    k.e("s_add_u32 s%d, s%d, 0x%x" % (S_T2, S_T2, WS_F))
    build_srds(k, ["WQ", "X"])
    for op in stage(0):
        op()
    k.e("s_cmp_eq_u32 s%d, 0" % S_BR)
    sv, k.diag = k.diag, 0
    n0 = len(k.l)
    build_srds(k, ["WS", "K", "V", "WO", "OUT", "DBG"])
    del k.l[n0]
    k.diag = sv
    k.vmem("buffer_store_dword v2, v1, %s, s%d offen sc1" % (srd(SRD_WS), S_T2), "zero")
    for st in range(1, L):
        for op in stage(st):
            op()
    k.e("s_mov_b32 s%d, 0x%x" % (S_OI, WS_F))
    k.wait(vm=("st0",))
    k.e("s_barrier")
    k.stamp()
    for op in p1_reads(k, 0, 5):
        op()
    pend = stage(L)
    for g in range(32):
        st, s = g // 4, g % 4
        fa, fb = V_FA + 16 * (g & 1), V_FB + 4 * (g & 1)
        pre = []
        if s == 3:
            assert not pend
            k.wait(vm=("st%d" % (st + 1),), lg0=True)
            k.e("s_barrier")
            if st in (1, 4, 7):
                k.stamp()
            if st == 0:
                k.e("s_cmp_lg_u32 s%d, 0" % S_W)
                k.e("s_cbranch_scc1 L_noann")
                k.e("s_mov_b64 exec, 1")
                k.e("buffer_atomic_add v%d, v%d, %s, 0 offen sc1" % (V_ONE, V_GOA, srd(SRD_DBG)))
                k.e("s_mov_b64 exec, -1")
                k.lab("L_noann")
            if st == 5:
                k.vmem("buffer_load_dword v%d, v%d, %s, 0 offen sc1" % (V_GOD, V_GOA, srd(SRD_DBG)), "go")
            if st < 7:
                pre = adv_read_addrs(k, list(range(V_RB, V_RB + 4)) + list(range(V_RA, V_RA + 4)), st, st + 1, 5)
                pend = stage(st + 1 + L)
            else:
                pend = sum((stage(x) for x in range(8 + L, 13)), [])
        if g < 31:
            rd = p1_reads(k, g + 1, 5)
        else:
            rd = []
            for i in range(8):
                def kr(i=i):
                    if i:
                        k.e("v_xor_b32 v%d, %d, v%d" % (t + (i & 1), i << 5, V_KA))
                    k.ds("ds_read_b128 %s, v%d" % (vr(V_KF + 4 * i, 4), t + (i & 1) if i else V_KA), "k%d" % i)
                rd.append(kr)
        if s == 3 and st < 7:
            seq = [pre[0], rd[0], pre[4], rd[1], rd[2], pre[5], rd[3], rd[4], pre[6], rd[5], rd[6], pre[7], rd[7], rd[8]] + pre[1:4]
            split = [5, 3, 3, 6]
        elif g == 31:
            seq, split = rd, [2, 2, 2, 2]
        else:
            seq = rd
            split = [4, 3, 2, 0]
        nd = [1, 1, 1, 0] if g < 2 else ([1, 0, 1, 0] if g < 31 else [1, 1, 1, 1])
        pos = 0
        for dt in range(4):
            k.wait(lg=("b%d" % g, "a%d_%d" % (g, dt)))
            mfma(k, V_ACC + 16 * dt, fa + 4 * dt, fb, g == 0)
            for op in seq[pos:pos + split[dt]]:
                op()
            pos += split[dt]
            for _ in range(nd[dt]):
                if pend:
                    pend.pop(0)()
    k.e("s_mov_b32 s%d, 0x3e0293ee" % S_C)
    for dt in range(1, 4):
        k.e("v_xor_b32 v%d, %d, v%d" % (V_RA + dt, dt << 6, V_VA))
    for i in range(8):
        if i == 6:
            k.e("s_nop 1")
        for j in range(4):
            k.e("v_cvt_pk_bf16_f32 v%d, v%d, v%d" % (V_QB + 4 * i + j, V_ACC + 8 * i + 2 * j, V_ACC + 8 * i + 2 * j + 1))
        if i >= 1:
            k.wait(lg=("k%d" % (i - 1),))
            mfma(k, V_S, V_KF + 4 * (i - 1), V_QB + 4 * (i - 1), i == 1)
        if pend:
            pend.pop(0)()
    k.wait(lg=("k7",), vm=("st9",))
    k.e("s_nop 0")
    mfma(k, V_S, V_KF + 28, V_QB + 28, False)
    for dt in range(4):
        for u in range(2):
            for e in range(2):
                k.ds("ds_read_b64_tr_b16 %s, v%d offset:%d" % (vr(V_FA + 8 * dt + 4 * u + 2 * e, 2), V_RA + dt if dt else V_VA, (16 * u + 8 * e) * 256), "v%d" % dt)
    pend += stage(13)
    m, m2 = t, t + 1

    def dm():
        if pend:
            pend.pop(0)()
    dm()
    k.e("v_max3_f32 v%d, v%d, v%d, v%d" % (m, V_S, V_S + 1, V_S + 2))
    k.e("v_max3_f32 v%d, v%d, v%d, v%d" % (m2, V_S + 3, V_S + 4, V_S + 5))
    for i in range(6, 14, 4):
        k.e("v_max3_f32 v%d, v%d, v%d, v%d" % (m, m, V_S + i, V_S + i + 1))
        k.e("v_max3_f32 v%d, v%d, v%d, v%d" % (m2, m2, V_S + i + 2, V_S + i + 3))
    k.e("v_max3_f32 v%d, v%d, v%d, v%d" % (m, m, V_S + 14, V_S + 15))
    k.e("v_max_f32 v%d, v%d, v%d" % (m, m, m2))
    k.e("v_mov_b32 v%d, v%d" % (m2, m))
    dm()
    k.e("s_nop 1")
    k.e("v_permlane32_swap_b32 v%d, v%d" % (m, m2))
    k.e("v_max_f32 v%d, v%d, v%d" % (m, m, m2))
    k.e("v_mul_f32 v%d, s%d, v%d" % (m, S_C, m))
    for i in range(16):
        k.e("v_fma_f32 v%d, v%d, s%d, -v%d" % (V_S + i, V_S + i, S_C, m))
    for i in range(16):
        k.e("v_exp_f32 v%d, v%d" % (V_S + i, V_S + i))
        if i & 1:
            dm()
    k.e("v_add_f32 v%d, v%d, v%d" % (m, V_S, V_S + 1))
    k.e("v_add_f32 v%d, v%d, v%d" % (m2, V_S + 2, V_S + 3))
    for i in range(4, 16, 2):
        k.e("v_add_f32 v%d, v%d, v%d" % (m, m, V_S + i))
        k.e("v_add_f32 v%d, v%d, v%d" % (m2, m2, V_S + i + 1))
    k.e("v_add_f32 v%d, v%d, v%d" % (m, m, m2))
    k.e("v_mov_b32 v%d, v%d" % (m2, m))
    while pend:
        dm()
    k.e("s_nop 1")
    k.e("v_permlane32_swap_b32 v%d, v%d" % (m, m2))
    k.e("v_add_f32 v%d, v%d, v%d" % (m, m, m2))
    k.e("v_rcp_f32 v%d, v%d" % (m, m))
    k.e("s_lshl_b32 s%d, s%d, 4" % (S_T0, S_BR))
    k.e("s_add_u32 s%d, s%d, s%d" % (S_T0, S_T0, S_B))
    k.e("s_lshl_b32 s%d, s%d, 5" % (S_T0, S_T0))
    k.e("s_add_u32 s%d, s%d, s%d" % (S_T1, S_T0, S_HEAD))
    k.e("s_lshl_b32 s%d, s%d, 13" % (S_OX, S_T1))
    k.e("s_add_u32 s%d, s%d, 4096" % (S_T2, S_OX))
    for i in range(16):
        k.e("v_mul_f32 v%d, v%d, v%d" % (V_S + i, V_S + i, m))
    for j in range(8):
        k.e("v_cvt_pk_bf16_f32 v%d, v%d, v%d" % (V_PB + j, V_S + 2 * j, V_S + 2 * j + 1))
    k.wait(vm=("st10",))
    k.e("s_barrier")
    k.stamp()
    for dt in range(4):
        k.wait(lg=("v%d" % dt,))
        mfma(k, V_ACC + 16 * dt, V_FA + 8 * dt, V_PB, True)
        mfma(k, V_ACC + 16 * dt, V_FA + 8 * dt + 4, V_PB + 4, False)

    def wreads(ks):
        fa = V_FA + 16 * (ks & 1)
        return [lambda nt=nt, e=e: k.ds("ds_read_b64_tr_b16 %s, v%d offset:%d" % (vr(fa + 4 * nt + 2 * e, 2), V_WA + nt, (ks % 8) * 4096 + e * 2048), "w%d_%d" % (ks, nt))
                for nt in range(4) for e in range(2)]

    def ocvt(i):
        ops = [lambda j=j: k.e("v_cvt_pk_bf16_f32 v%d, v%d, v%d" % (V_QB + 4 * i + j, V_ACC + 8 * i + 2 * j, V_ACC + 8 * i + 2 * j + 1)) for j in range(4)]
        ops.append(lambda: k.vmem("buffer_store_dwordx4 %s, v%d, %s, s%d offen offset:%d sc1" % (vr(V_QB + 4 * i, 4), V_L16, srd(SRD_WS), S_OX if i < 4 else S_T2, (i & 3) * 1024), "ost"))
        return ops
    for op in wreads(0):
        op()
    for i in range(8):
        for op in ocvt(i):
            op()

    def p2step(ks, extra=()):
        fa = V_FA + 16 * (ks & 1)
        rd = []
        if ks < 31:
            rd = wreads(ks + 1)
            if ks % 8 == 7:
                adv = adv_read_addrs(k, list(range(V_WA, V_WA + 4)), 10 + ks // 8, 11 + ks // 8, 5)
                rd = [adv[0], rd[0], rd[1], adv[1], rd[2], rd[3], adv[2], rd[4], rd[5], adv[3], rd[6], rd[7]]
        n = len(rd) // 4
        for nt in range(4):
            k.wait(lg=("w%d_%d" % (ks, nt),), vm=("o%d" % ks,))
            if ks < 8:
                mfma(k, V_AC2 + 16 * nt, fa + 4 * nt, V_QB + 4 * ks, ks == 0)
            else:
                mfma(k, V_AC2 + 16 * nt, fa + 4 * nt, 4 * (ks - 8), False, ba=True)
            lo, hi = ([0, 3, 6, 8, 8] if n == 2 else [0, 3, 6, 9, 12])[nt:nt + 2]
            for op in rd[lo:hi]:
                op()
    for ks in range(7):
        p2step(ks)
    k.wait(vm0=True)
    k.e("v_cmp_gt_u32 vcc, 32, v%d" % (V_GOD))
    k.e("s_cbranch_vccz L_go_x")
    spin(k, "L_go", V_GOA, SRD_DBG, "0", "32", "gt")
    k.e("s_mov_b64 exec, 15")
    k.e("buffer_store_dword v%d, v%d, %s, s%d offen sc1" % (V_ONE, V_FL1, srd(SRD_WS), S_OI))
    k.e("s_mov_b64 exec, -1")
    k.e("s_barrier")
    k.stamp()
    p2step(7)
    k.e("s_and_b32 s%d, s%d, 0x%x" % (S_OX, S_OX, 0xffffffff ^ (3 << 13)))
    spin(k, "L_s1", V_PL1, SRD_WS, "s%d" % S_OI, "1")
    k.stamp()
    for j in range(1, 4):
        k.e("s_add_u32 s%d, s%d, %d" % (S_T0, S_NB, j))
        k.e("s_and_b32 s%d, s%d, 3" % (S_T0, S_T0))
        k.e("s_lshl_b32 s%d, s%d, 13" % (S_T0, S_T0))
        k.e("s_add_u32 s%d, s%d, s%d" % (S_T0, S_T0, S_OX))
        k.e("s_add_u32 s%d, s%d, 4096" % (S_T1, S_T0))
        for i in range(8):
            ks = 8 * j + i
            k.vmem("buffer_load_dwordx4 %s, v%d, %s, s%d offen offset:%d sc1" % (vr(4 * (ks - 8), 4, True), V_L16, srd(SRD_WS), S_T0 if i < 4 else S_T1, (i & 3) * 1024), "o%d" % ks)
    k.e("s_lshl2_add_u32 s%d, s%d, s%d" % (S_T0, S_BR, S_TG))
    k.e("s_lshl2_add_u32 s%d, s%d, s%d" % (S_T0, S_T0, S_NB))
    k.e("s_lshl2_add_u32 s%d, s%d, s%d" % (S_T1, S_T0, S_W))
    k.e("s_lshl_b32 s%d, s%d, 6" % (S_T1, S_T1))
    k.e("s_add_u32 s%d, s%d, s%d" % (S_T1, S_T1, S_KQ))
    k.e("s_lshl_b32 s%d, s%d, 10" % (S_T1, S_T1))
    k.e("s_add_u32 s%d, s%d, 0x%x" % (S_OP, S_T1, WS_P))
    k.e("s_lshl_b32 s%d, s%d, 3" % (S_T0, S_T0))
    k.e("s_add_u32 s%d, s%d, s%d" % (S_T0, S_T0, S_KQ))
    k.e("s_lshl2_add_u32 s%d, s%d, s%d" % (S_T0, S_T0, S_W))
    k.e("s_lshl_b32 s%d, s%d, 13" % (S_T0, S_T0))
    k.e("s_add_u32 s%d, s%d, 0x%x" % (S_OWQ, S_T0, WS_P))
    k.e("s_add_u32 s%d, s%d, 4096" % (S_OKV, S_OWQ))
    for ks in range(8, 32):
        p2step(ks)
        if ks == 8:
            k.stamp()
    k.stamp()
    k.e("s_nop 5")
    for pc in range(8):
        for j in range(4):
            k.e("v_cvt_pk_bf16_f32 v%d, v%d, v%d" % (V_QB + 4 * pc + j, V_AC2 + 8 * pc + 2 * j, V_AC2 + 8 * pc + 2 * j + 1))
        k.vmem("buffer_store_dwordx4 %s, v%d, %s, s%d offen sc1" % (vr(V_QB + 4 * pc, 4), V_L16, srd(SRD_WS), S_OP), "pst")
        if pc < 7:
            k.e("s_add_u32 s%d, s%d, 8192" % (S_OP, S_OP))
    k.e("s_lshr_b32 s%d, s%d, 1" % (S_T0, S_KQ))
    k.e("s_lshl2_add_u32 s%d, s%d, s%d" % (S_T0, S_TG, S_T0))
    k.e("s_lshl_b32 s%d, s%d, 6" % (S_T0, S_T0))
    k.e("s_add_u32 s%d, s%d, s%d" % (S_T0, S_T0, S_BR))
    k.e("s_lshl2_add_u32 s%d, s%d, s%d" % (S_T0, S_T0, S_NB))
    k.e("s_and_b32 s%d, s%d, 1" % (S_T1, S_KQ))
    k.e("s_lshl1_add_u32 s%d, s%d, s%d" % (S_T0, S_T0, S_T1))
    k.e("s_lshl2_add_u32 s%d, s%d, s%d" % (S_T0, S_T0, S_W))
    k.e("s_lshl_b32 s%d, s%d, 5" % (S_T3, S_T0))
    k.e("s_mov_b32 s%d, 0x3f80" % S_T0)
    k.e("s_mov_b32 s%d, 0x3f800000" % S_T1)
    k.wait(vm0=True)
    k.e("s_mov_b64 exec, 3")
    k.e("buffer_store_dword v%d, v%d, %s, s%d offen sc1" % (V_ONE, V_FL2, srd(SRD_WS), S_OI))
    k.e("s_mov_b64 exec, -1")
    k.stamp()
    spin(k, "L_s2", V_PL2, SRD_WS, "s%d" % S_OI, "1")
    k.stamp()
    for q in range(8):
        k.vmem("buffer_load_dwordx4 %s, v%d, %s, s%d offen offset:%d sc1" % (vr(V_ACC + 4 * q, 4), V_L16, srd(SRD_WS), S_OWQ if q < 4 else S_OKV, (q & 3) * 1024), "p%d" % q)
    for q in range(8):
        k.wait(vm=("p%d" % q,))
        for j in range(4):
            if q == 0:
                k.e("v_lshlrev_b32 v%d, 16, v%d" % (V_FA + 2 * j, V_ACC + j))
                k.e("v_and_b32 v%d, 0xffff0000, v%d" % (V_FA + 2 * j + 1, V_ACC + j))
            else:
                k.e("v_dot2_f32_bf16 v%d, v%d, s%d, v%d" % (V_FA + 2 * j, V_ACC + 4 * q + j, S_T0, V_FA + 2 * j))
                k.e("v_dot2_f32_bf16 v%d, v%d, s%d, v%d" % (V_FA + 2 * j + 1, V_ACC + 4 * q + j, S_T1, V_FA + 2 * j + 1))
    k.e("s_nop 2")
    for j in range(4):
        k.e("v_cvt_pk_bf16_f32 v%d, v%d, v%d" % (V_QB + j, V_FA + 2 * j, V_FA + 2 * j + 1))
    k.vmem("buffer_store_dwordx4 %s, v%d, %s, s%d offen" % (vr(V_QB, 4), V_OUT, srd(SRD_OUT), S_T3), "out")
    k.stamp()
    k.dump_stamps(0)
    if pad:
        k.lab("L_pad")
        k.e("s_memrealtime s[96:97]")
        k.e("s_waitcnt lgkmcnt(0)")
        k.e("s_sub_u32 s96, s96, s98")
        k.e("s_cmp_lt_u32 s96, %d" % (pad * 100))
        k.e("s_cbranch_scc1 L_pad")
    k.lab("L_end")
    k.e("s_endpgm")
    kt = kernel_text(NAME + "_kernel", k, 512, 256)
    return finish(["; @launch grid=(256,1,1) block=(256,1,1) lds=163840"], [kt])


if __name__ == "__main__":
    mode, out = sys.argv[1], sys.argv[2]
    kw = dict(a.split("=") for a in sys.argv[3:])
    kw = {a: int(b) for a, b in kw.items()}
    open(out, "w").write(globals()["gen_" + mode](**kw))
```

```python
import sys

NAME = "concat_heads__gqa_block_cached__mha_block_cached__near_ridge"
HDR = open("cdna_kernels/%s.s.ref" % NAME).read().split("; Override launch")[0]

WS_O = 0
WS_P = 8 << 20
WS_DIAG = 24 << 20
WS_BYTES = 32 << 20

S_WG = 2
SRD_X, SRD_WQ, SRD_K, SRD_V, SRD_WO, SRD_WS, SRD_OUT, SRD_DBG = 32, 36, 40, 44, 48, 52, 56, 60
S_BR, S_HG, S_LO, S_TG, S_W, S_B, S_HEAD = 64, 65, 66, 67, 68, 69, 70
S_T0, S_T1, S_T2, S_T3 = 71, 72, 73, 74
S_OWQ, S_OX, S_OKV, S_OWO, S_OO, S_OP = 75, 76, 77, 78, 79, 80
S_MW, S_MX, S_M8 = 81, 82, 83
S_C = 84
S_OV = 84
S_STAMP = 86
SLOT = 32768


def srd(r):
    return "s[%d:%d]" % (r, r + 3)


def vr(b, n=1, a=False):
    p = "a" if a else "v"
    return "%s%d" % (p, b) if n == 1 else "%s[%d:%d]" % (p, b, b + n - 1)


class K:
    def __init__(self, diag=False):
        self.l = []
        self.vm = []
        self.lg = []
        self.diag = diag
        self.nstamp = 0

    def e(self, s):
        self.l.append("    " + s)

    def lab(self, s):
        self.l.append(s + ":")

    def c(self, s):
        self.l.append("    ; " + s)

    def vmem(self, s, tag):
        self.e(s)
        self.vm.append(tag)

    def ds(self, s, tag):
        self.e(s)
        self.lg.append(tag)

    def _cnt(self, q, tags, cap):
        idx = [i for i, t in enumerate(q) if t in tags]
        if not idx:
            return None
        n = len(q) - 1 - max(idx)
        n = min(n, cap)
        del q[: len(q) - n]
        return n

    def wait(self, vm=(), lg=(), vm0=False, lg0=False):
        p = []
        if vm0:
            self.vm = []
            p.append("vmcnt(0)")
        else:
            n = self._cnt(self.vm, vm, 63)
            if n is not None:
                p.append("vmcnt(%d)" % n)
        if lg0:
            self.lg = []
            p.append("lgkmcnt(0)")
        else:
            n = self._cnt(self.lg, lg, 15)
            if n is not None:
                p.append("lgkmcnt(%d)" % n)
        if p:
            self.e("s_waitcnt " + " ".join(p))

    def stamp(self):
        if not self.diag:
            return
        r = S_STAMP + self.nstamp
        assert r <= 100
        self.nstamp += 1
        self.e("s_memrealtime s[30:31]" if self.diag == 1 else "s_memtime s[30:31]")
        self.wait(lg0=True)
        self.e("s_mov_b32 s%d, s30" % r)

    def dump_stamps(self, kidx):
        if not self.diag:
            return
        self.e("s_lshl_b32 s%d, s2, 2" % S_T0)
        self.e("s_add_u32 s%d, s%d, s%d" % (S_T0, S_T0, S_W))
        self.e("s_lshl_b32 s%d, s%d, 6" % (S_T0, S_T0))
        self.e("s_add_u32 s%d, s%d, %d" % (S_T0, S_T0, WS_DIAG + kidx * 131072))
        self.e("v_mov_b32 v1, 0")
        self.e("s_memtime s[30:31]")
        self.wait(lg0=True)
        self.e("s_sub_u32 s101, s30, s101")
        for i in list(range(self.nstamp)) + [15]:
            self.e("v_mov_b32 v2, s%d" % (S_STAMP + i))
            self.e("buffer_store_dword v2, v1, %s, s%d offen offset:%d" % (srd(SRD_WS), S_T0, 4 * i))
            self.e("s_nop 1")


def prologue(k, endlab):
    k.e("s_cmp_ge_u32 s2, 256")
    k.e("s_cbranch_scc1 %s" % endlab)
    k.e("s_load_dwordx16 s[4:19], s[0:1], 0")
    k.e("s_load_dwordx8 s[20:27], s[0:1], 64")
    k.e("s_load_dwordx2 s[28:29], s[0:1], 96")
    if k.diag:
        k.e("%s s[%d:%d]" % ("s_memrealtime" if k.diag == 1 else "s_memtime", S_STAMP, S_STAMP + 1))
        k.e("s_memtime s[100:101]")
        k.nstamp = 1
    k.e("v_lshrrev_b32 v1, 6, v0")
    k.e("v_and_b32 v0, 63, v0")
    k.e("s_and_b32 s%d, s2, 3" % S_HG)
    k.e("v_readfirstlane_b32 s%d, v1" % S_W)
    k.e("s_nop 0")
    k.e("s_lshr_b32 s%d, s%d, 2" % (S_T3, S_W))
    k.e("s_and_b32 s%d, s%d, 3" % (S_W, S_W))
    k.e("s_bfe_u32 s%d, s2, 0x10002" % S_BR)
    k.e("s_bfe_u32 s%d, s2, 0x30003" % S_LO)
    k.e("s_bfe_u32 s%d, s2, 0x20006" % S_TG)
    k.e("s_lshl_b32 s%d, s%d, 3" % (S_HEAD, S_HG))
    k.e("s_add_u32 s%d, s%d, s%d" % (S_HEAD, S_HEAD, S_LO))
    k.e("s_lshl_b32 s%d, s%d, 2" % (S_B, S_TG))
    k.e("s_add_u32 s%d, s%d, s%d" % (S_B, S_B, S_W))
    k.e("s_lshl_b32 s%d, s%d, 12" % (S_MW, S_W))
    k.e("s_add_u32 s%d, s%d, 16384" % (S_MX, S_MW))
    k.e("s_lshl_b32 s%d, s%d, 13" % (S_M8, S_W))


def build_srds(k, which):
    k.e("s_waitcnt lgkmcnt(0)")
    if k.diag:
        k.e("s_mov_b32 s101, s100")
    k.stamp()
    k.e("s_cmp_eq_u32 s%d, 0" % S_BR)
    src = {"X": (4, 14), "K": (6, 16), "V": (8, 18), "WQ": (10, 20), "WO": (12, 22)}
    reg = {"X": SRD_X, "K": SRD_K, "V": SRD_V, "WQ": SRD_WQ, "WO": SRD_WO}
    size = {"X": (1 << 19,) * 2, "K": (1 << 20, 1 << 22), "V": (1 << 20, 1 << 22), "WQ": (1 << 22,) * 2, "WO": (1 << 22,) * 2}
    for n in which:
        if n in src:
            a, b = src[n]
            r = reg[n]
            k.e("s_cselect_b64 s[%d:%d], s[%d:%d], s[%d:%d]" % (r, r + 1, a, a + 1, b, b + 1))
            if size[n][0] == size[n][1]:
                k.e("s_mov_b32 s%d, 0x%x" % (r + 2, size[n][0]))
            else:
                k.e("s_mov_b32 s%d, 0x%x" % (r + 3, size[n][0]))
                k.e("s_cselect_b32 s%d, s%d, 0x%x" % (r + 2, r + 3, size[n][1]))
            k.e("s_mov_b32 s%d, 0x20000" % (r + 3))
        else:
            r, p, sz = {"WS": (SRD_WS, 28, WS_BYTES), "OUT": (SRD_OUT, 24, 1 << 20), "DBG": (SRD_DBG, 26, 256)}[n]
            k.e("s_mov_b64 s[%d:%d], s[%d:%d]" % (r, r + 1, p, p + 1))
            k.e("s_mov_b32 s%d, 0x%x" % (r + 2, sz))
            k.e("s_mov_b32 s%d, 0x20000" % (r + 3))


V_DWQ, V_DX, V_DK, V_DV, V_DWO = 4, 8, 12, 16, 20
V_RA, V_RB = 24, 28
V_L16 = 17
V_T = 32
V_FA = 40
V_FB = 72
V_ACC = 80
V_QB = 144
V_S = 176
V_KF = 192
V_PB = 224


def p1_dma_addrs(k):
    t = V_T
    k.e("v_lshrrev_b32 v%d, 4, v0" % t)
    k.e("v_and_b32 v%d, 15, v0" % (t + 1))
    k.e("v_lshlrev_b32 v%d, 2, v%d" % (t + 2, t))
    k.e("v_xor_b32 v%d, v%d, v%d" % (t + 2, t + 2, t + 1))
    k.e("v_lshlrev_b32 v%d, 4, v%d" % (t + 2, t + 2))
    k.e("v_lshl_add_u32 v%d, v%d, 13, v%d" % (V_DWQ, t, t + 2))
    k.e("s_lshl_b32 s%d, s%d, 17" % (S_T0, S_W))
    k.e("v_add_u32 v%d, s%d, v%d" % (V_DWQ, S_T0, V_DWQ))
    for i in range(1, 4):
        k.e("v_add_u32 v%d, %d, v%d" % (V_DWQ + i, i * (32768 - 1024), V_DWQ))
    k.e("v_lshl_add_u32 v%d, v%d, 8, v%d" % (V_DV, t, t + 2))
    k.e("v_xor_b32 v%d, v%d, v%d" % (t + 2, t, t + 1))
    k.e("v_lshlrev_b32 v%d, 4, v%d" % (t + 2, t + 2))
    k.e("v_lshl_add_u32 v%d, v%d, 8, v%d" % (V_DK, t, t + 2))
    for i in range(1, 4):
        k.e("v_xor_b32 v%d, %d, v%d" % (V_DK + i, i << 6, V_DK))
    k.e("v_lshrrev_b32 v%d, 3, v0" % t)
    k.e("v_and_b32 v%d, 7, v0" % (t + 1))
    k.e("v_lshrrev_b32 v%d, 1, v%d" % (t + 2, t))
    k.e("v_xor_b32 v%d, v%d, v%d" % (t + 2, t + 2, t + 1))
    k.e("v_lshlrev_b32 v%d, 4, v%d" % (t + 2, t + 2))
    k.e("v_lshl_add_u32 v%d, v%d, 10, v%d" % (V_DX, t, t + 2))
    k.e("v_xor_b32 v%d, 64, v%d" % (V_DX + 1, V_DX))
    k.e("v_add_u32 v%d, %d, v%d" % (V_DX + 2, 2 * 7168, V_DX))
    k.e("v_add_u32 v%d, %d, v%d" % (V_DX + 3, 3 * 7168, V_DX + 1))
    k.e("v_add_u32 v%d, %d, v%d" % (V_DX + 1, 7168, V_DX + 1))
    k.e("s_lshl_b32 s%d, s%d, 8" % (S_OWQ, S_HEAD))
    k.e("s_lshl_b32 s%d, s%d, 15" % (S_OX, S_B))
    k.e("s_lshr_b32 s%d, s%d, 2" % (S_T0, S_HEAD))
    k.e("s_lshl_b32 s%d, s%d, 3" % (S_T1, S_B))
    k.e("s_add_u32 s%d, s%d, s%d" % (S_T0, S_T0, S_T1))
    k.e("s_lshl_b32 s%d, s%d, 5" % (S_T1, S_B))
    k.e("s_add_u32 s%d, s%d, s%d" % (S_T1, S_T1, S_HEAD))
    k.e("s_cmp_eq_u32 s%d, 0" % S_BR)
    k.e("s_cselect_b32 s%d, s%d, s%d" % (S_OKV, S_T0, S_T1))
    k.e("s_lshl_b32 s%d, s%d, 13" % (S_OKV, S_OKV))


def p2_dma_addrs(k):
    t = V_T
    k.e("v_lshrrev_b32 v%d, 3, v0" % t)
    k.e("v_and_b32 v%d, 7, v0" % (t + 1))
    k.e("v_lshlrev_b32 v%d, 1, v%d" % (t + 2, t))
    k.e("v_and_b32 v%d, 4, v%d" % (t + 2, t + 2))
    k.e("v_xor_b32 v%d, v%d, v%d" % (t + 2, t + 2, t + 1))
    k.e("v_lshlrev_b32 v%d, 4, v%d" % (t + 2, t + 2))
    k.e("v_lshl_add_u32 v%d, v%d, 10, v%d" % (V_DWO, t, t + 2))
    k.e("s_lshl_b32 s%d, s%d, 16" % (S_T0, S_W))
    k.e("v_add_u32 v%d, s%d, v%d" % (V_DWO, S_T0, V_DWO))
    for i in range(1, 4):
        k.e("v_add_u32 v%d, %d, v%d" % (V_DWO + i, i * 7168, V_DWO))
    k.e("s_lshl_b32 s%d, s%d, 20" % (S_OWO, S_HG))
    k.e("s_lshl_b32 s%d, s%d, 7" % (S_T0, S_LO))
    k.e("s_add_u32 s%d, s%d, s%d" % (S_OWO, S_OWO, S_T0))


def slot_of(st, nslot):
    if nslot == 5:
        return st % 5
    if nslot == 4:
        return st % 4 if st < 8 else {8: 4, 9: 0, 10: 1, 11: 2, 12: 3, 13: 4}[st]
    return st % 3 if st < 8 else {8: 3, 9: 4, 10: 2, 11: 0, 12: 1, 13: 3}[st]


def dma_stage(k, st, nslot, pol=""):
    base = slot_of(st, nslot) * SLOT
    tag = "st%d" % st
    ops = []

    def grp(m_sreg, m_add, sr, voffs, soff, adv, wrap=0):
        def first():
            k.e("s_add_u32 m0, s%d, %d" % (m_sreg, base + m_add))
            k.e("s_nop 0")
            k.vmem("buffer_load_dwordx4 v%d, %s, s%d offen%s lds" % (voffs[0], srd(sr), soff, pol), tag)
        ops.append(first)
        for i in range(1, 4):
            def nxt(i=i):
                k.vmem("buffer_load_dwordx4 v%d, %s, s%d offen offset:%d%s lds" % (voffs[i], srd(sr), soff, i * 1024, pol), tag)
                if i == 3 and adv:
                    k.e("s_add_u32 s%d, s%d, %d" % (soff, soff, adv))
                    if wrap:
                        k.e("s_bitset0_b32 s%d, %d" % (soff, wrap))
            ops.append(nxt)

    if st < 8:
        grp(S_MW, 0, SRD_WQ, [V_DWQ + i for i in range(4)], S_OWQ, 64 * 8192, 22)
        grp(S_MX, 0, SRD_X, [V_DX + i for i in range(4)], S_OX, 128, 10)
    elif st == 8:
        grp(S_M8, 0, SRD_K, [V_DK + i for i in range(4)], S_OKV, 4096)
        grp(S_M8, 4096, SRD_K, [V_DK + i for i in range(4)], S_OKV, -4096 & 0xffffffff)
    elif st == 9:
        grp(S_M8, 0, SRD_V, [V_DV] * 4, S_OV, 4096)
        grp(S_M8, 4096, SRD_V, [V_DV] * 4, S_OV, 0)
    else:
        grp(S_M8, 0, SRD_WO, [V_DWO + i for i in range(4)], S_OWO, 4 * 8192)
        grp(S_M8, 4096, SRD_WO, [V_DWO + i for i in range(4)], S_OWO, 256 * 1024 - 4 * 8192)
    return ops


def tr_lane_terms(k, t):
    k.e("v_lshrrev_b32 v%d, 5, v0" % t)
    k.e("v_bfe_u32 v%d, v0, 2, 2" % (t + 1))
    k.e("v_bfe_u32 v%d, v0, 4, 1" % (t + 2))
    k.e("v_and_b32 v%d, 3, v0" % (t + 3))


def pi_term(k, dst, t):
    k.e("v_and_b32 v%d, 1, v0" % dst)
    k.e("v_lshlrev_b32 v%d, 4, v%d" % (dst, dst))
    k.e("v_and_b32 v%d, 2, v0" % (t + 4))
    k.e("v_lshl_add_u32 v%d, v%d, 2, v%d" % (dst, t + 4, dst))
    k.e("v_lshl_add_u32 v%d, v%d, 5, v%d" % (dst, t + 2, dst))


def p1_read_addrs(k):
    t = V_T
    tr_lane_terms(k, t)
    pi_term(k, V_RA, t)
    k.e("v_lshl_add_u32 v%d, v%d, 3, v%d" % (t + 4, t, t + 1))
    k.e("v_lshl_add_u32 v%d, v%d, 8, v%d" % (V_RA, t + 4, V_RA))
    k.e("v_lshl_add_u32 v%d, v%d, 6, v%d" % (V_RA, t + 1, V_RA))
    for dt in range(1, 4):
        k.e("v_xor_b32 v%d, %d, v%d" % (V_RA + dt, dt << 6, V_RA))
    k.e("v_and_b32 v%d, 31, v0" % (t + 4))
    k.e("v_bfe_u32 v%d, v0, 1, 3" % (t + 5))
    k.e("v_xor_b32 v%d, v%d, v%d" % (t + 5, t + 5, t))
    k.e("v_lshlrev_b32 v%d, 4, v%d" % (t + 5, t + 5))
    k.e("v_lshl_add_u32 v%d, v%d, 7, v%d" % (V_RB, t + 4, t + 5))
    k.e("v_add_u32 v%d, s%d, v%d" % (V_RB, S_MX, V_RB))
    for s in range(1, 4):
        k.e("v_xor_b32 v%d, %d, v%d" % (V_RB + s, s << 5, V_RB))


def mfma(k, d, a, b, first, aa=False, ba=False):
    k.e("v_mfma_f32_32x32x16_bf16 %s, %s, %s, %s" % (vr(d, 16), vr(a, 4, aa), vr(b, 4, ba), "0" if first else vr(d, 16)))


def p1_reads(k, g, nslot):
    st, s = g // 4, g % 4
    fa, fb = V_FA + 16 * (g & 1), V_FB + 4 * (g & 1)
    ops = [lambda: k.ds("ds_read_b128 %s, v%d" % (vr(fb, 4), V_RB + s), "b%d" % g)]
    for dt in range(4):
        for e in range(2):
            ops.append(lambda dt=dt, e=e: k.ds("ds_read_b64_tr_b16 %s, v%d offset:%d" % (vr(fa + 4 * dt + 2 * e, 2), V_RA + dt, s * 4096 + e * 1024), "a%d_%d" % (g, dt)))
    return ops


def adv_read_addrs(k, regs, st_from, st_to, nslot):
    d = (slot_of(st_to, nslot) - slot_of(st_from, nslot)) * SLOT
    return [lambda r=r: k.e("v_add_u32 v%d, 0x%x, v%d" % (r, d & 0xffffffff, r)) for r in regs]


def phase1(k, nslot, last_stage, pol=""):
    p1_dma_addrs(k)
    build_srds(k, ["WQ", "X", "K", "V", "WS"] + (["WO", "OUT", "DBG"] if last_stage >= 10 else []))
    for st in range(nslot):
        for op in dma_stage(k, st, nslot, pol):
            op()
    p1_read_addrs(k)
    if last_stage >= 10:
        p2_dma_addrs(k)
    k.e("v_lshlrev_b32 v%d, 4, v0" % V_L16)
    k.wait(vm=("st0",))
    k.e("s_barrier")
    k.stamp()
    for op in p1_reads(k, 0, nslot):
        op()
    for g in range(32):
        st, s = g // 4, g % 4
        fa, fb = V_FA + 16 * (g & 1), V_FB + 4 * (g & 1)
        pre, fill = [], []
        if s == 3:
            k.wait(vm=("st%d" % (st + 1),), lg0=True)
            k.e("s_barrier")
            k.stamp()
            if st < 7:
                pre += adv_read_addrs(k, list(range(V_RB, V_RB + 4)) + list(range(V_RA, V_RA + 4)), st, st + 1, nslot)
            if st + nslot <= last_stage:
                fill += dma_stage(k, st + nslot, nslot, pol)
        rd = p1_reads(k, g + 1, nslot) if g < 31 else []
        if s == 3 and st < 7:
            seq = [pre[0], rd[0], pre[4], rd[1], rd[2], pre[5], rd[3], rd[4], pre[6], rd[5], rd[6], pre[7], rd[7], rd[8]] + pre[1:4]
            split = [5, 3, 3, 6]
        else:
            seq = rd
            split = [4, 3, 2, 0]
        pos = 0
        for dt in range(4):
            k.wait(lg=("b%d" % g, "a%d_%d" % (g, dt)))
            mfma(k, V_ACC + 16 * dt, fa + 4 * dt, fb, g == 0)
            for op in seq[pos:pos + split[dt]]:
                op()
            pos += split[dt]
            for op in fill[2 * dt:2 * dt + 2]:
                op()


def attention(k, nslot, last_stage, pol="", opol=""):
    t = V_T
    kb, vb = (8 % nslot) * SLOT, (9 % nslot) * SLOT
    k.e("v_lshrrev_b32 v%d, 5, v0" % t)
    k.e("v_and_b32 v%d, 15, v0" % (t + 1))
    k.e("v_xor_b32 v%d, v%d, v%d" % (t + 1, t + 1, t))
    k.e("v_lshlrev_b32 v%d, 4, v%d" % (t + 1, t + 1))
    k.e("v_and_b32 v%d, 31, v0" % (t + 2))
    k.e("v_lshl_add_u32 v%d, v%d, 8, v%d" % (t + 1, t + 2, t + 1))
    k.e("s_add_u32 s%d, s%d, %d" % (S_T0, S_M8, kb))
    k.e("v_add_u32 v%d, s%d, v%d" % (t + 1, S_T0, t + 1))
    k.wait(vm=("st8",))
    for i in range(8):
        if i:
            k.e("v_xor_b32 v%d, %d, v%d" % (t + 2, i << 5, t + 1))
        k.ds("ds_read_b128 %s, v%d" % (vr(V_KF + 4 * i, 4), t + 2 if i else t + 1), "k%d" % i)
    tr_lane_terms(k, t)
    k.e("v_lshlrev_b32 v%d, 3, v%d" % (V_RA, t + 3))
    k.e("v_lshl_add_u32 v%d, v%d, 5, v%d" % (V_RA, t + 2, V_RA))
    k.e("v_lshl_add_u32 v%d, v%d, 2, v%d" % (t + 4, t, t + 1))
    k.e("v_lshl_add_u32 v%d, v%d, 8, v%d" % (V_RA, t + 4, V_RA))
    k.e("v_lshl_add_u32 v%d, v%d, 6, v%d" % (V_RA, t + 1, V_RA))
    k.e("s_add_u32 s%d, s%d, %d" % (S_T0, S_M8, vb))
    k.e("v_add_u32 v%d, s%d, v%d" % (V_RA, S_T0, V_RA))
    for dt in range(1, 4):
        k.e("v_xor_b32 v%d, %d, v%d" % (V_RA + dt, dt << 6, V_RA))
    k.e("s_mov_b32 s%d, 0x3e0293ee" % S_C)
    for i in range(8):
        for j in range(4):
            k.e("v_cvt_pk_bf16_f32 v%d, v%d, v%d" % (V_QB + 4 * i + j, V_ACC + 8 * i + 2 * j, V_ACC + 8 * i + 2 * j + 1))
        if i >= 1:
            k.wait(lg=("k%d" % (i - 1),))
            mfma(k, V_S, V_KF + 4 * (i - 1), V_QB + 4 * (i - 1), i == 1)
    k.wait(lg=("k7",), vm=("st9",))
    k.e("s_nop 0")
    mfma(k, V_S, V_KF + 28, V_QB + 28, False)
    for dt in range(4):
        for u in range(2):
            for e in range(2):
                k.ds("ds_read_b64_tr_b16 %s, v%d offset:%d" % (vr(V_FA + 8 * dt + 4 * u + 2 * e, 2), V_RA + dt, (16 * u + 8 * e) * 256), "v%d" % dt)
    m, m2 = t, t + 1
    k.e("v_max3_f32 v%d, v%d, v%d, v%d" % (m, V_S, V_S + 1, V_S + 2))
    k.e("v_max3_f32 v%d, v%d, v%d, v%d" % (m2, V_S + 3, V_S + 4, V_S + 5))
    for i in range(6, 14, 4):
        k.e("v_max3_f32 v%d, v%d, v%d, v%d" % (m, m, V_S + i, V_S + i + 1))
        k.e("v_max3_f32 v%d, v%d, v%d, v%d" % (m2, m2, V_S + i + 2, V_S + i + 3))
    k.e("v_max3_f32 v%d, v%d, v%d, v%d" % (m, m, V_S + 14, V_S + 15))
    k.e("v_max_f32 v%d, v%d, v%d" % (m, m, m2))
    k.e("v_mov_b32 v%d, v%d" % (m2, m))
    k.e("s_nop 1")
    k.e("v_permlane32_swap_b32 v%d, v%d" % (m, m2))
    k.e("v_max_f32 v%d, v%d, v%d" % (m, m, m2))
    k.e("v_mul_f32 v%d, s%d, v%d" % (m, S_C, m))
    for i in range(16):
        k.e("v_fma_f32 v%d, v%d, s%d, -v%d" % (V_S + i, V_S + i, S_C, m))
    for i in range(16):
        k.e("v_exp_f32 v%d, v%d" % (V_S + i, V_S + i))
    k.e("v_add_f32 v%d, v%d, v%d" % (m, V_S, V_S + 1))
    k.e("v_add_f32 v%d, v%d, v%d" % (m2, V_S + 2, V_S + 3))
    for i in range(4, 16, 2):
        k.e("v_add_f32 v%d, v%d, v%d" % (m, m, V_S + i))
        k.e("v_add_f32 v%d, v%d, v%d" % (m2, m2, V_S + i + 1))
    k.e("v_add_f32 v%d, v%d, v%d" % (m, m, m2))
    k.e("v_mov_b32 v%d, v%d" % (m2, m))
    k.e("s_nop 1")
    k.e("v_permlane32_swap_b32 v%d, v%d" % (m, m2))
    k.e("v_add_f32 v%d, v%d, v%d" % (m, m, m2))
    k.e("v_rcp_f32 v%d, v%d" % (m, m))
    k.e("s_nop 0")
    for i in range(16):
        k.e("v_mul_f32 v%d, v%d, v%d" % (V_S + i, V_S + i, m))
    for j in range(8):
        k.e("v_cvt_pk_bf16_f32 v%d, v%d, v%d" % (V_PB + j, V_S + 2 * j, V_S + 2 * j + 1))
    k.e("s_lshl_b32 s%d, s%d, 4" % (S_T0, S_BR))
    k.e("s_add_u32 s%d, s%d, s%d" % (S_T0, S_T0, S_B))
    k.e("s_lshl_b32 s%d, s%d, 5" % (S_T0, S_T0))
    k.e("s_add_u32 s%d, s%d, s%d" % (S_T1, S_T0, S_HEAD))
    k.e("s_lshl_b32 s%d, s%d, 13" % (S_OO, S_T1))
    k.e("s_add_u32 s%d, s%d, 4096" % (S_T2, S_OO))
    for dt in range(4):
        k.wait(lg=("v%d" % dt,))
        mfma(k, V_ACC + 16 * dt, V_FA + 8 * dt, V_PB, True)
        mfma(k, V_ACC + 16 * dt, V_FA + 8 * dt + 4, V_PB + 4, False)
    k.e("s_nop 5")
    for i in range(8):
        if i == 6:
            k.e("s_nop 1")
        for j in range(4):
            k.e("v_cvt_pk_bf16_f32 v%d, v%d, v%d" % (V_QB + 4 * i + j, V_ACC + 8 * i + 2 * j, V_ACC + 8 * i + 2 * j + 1))
        k.vmem("buffer_store_dwordx4 %s, v%d, %s, s%d offen offset:%d%s" % (vr(V_QB + 4 * i, 4), V_L16, srd(SRD_WS), S_OO if i < 4 else S_T2, (i & 3) * 1024, opol), "ost")


def p2_read_addrs(k, first_stage, nslot):
    t = V_T
    tr_lane_terms(k, t)
    pi_term(k, V_RA, t)
    k.e("v_lshl_add_u32 v%d, v%d, 2, v%d" % (t + 4, t, t + 1))
    k.e("v_lshl_add_u32 v%d, v%d, 7, v%d" % (V_RA, t + 4, V_RA))
    k.e("v_lshrrev_b32 v%d, 1, v%d" % (t + 4, t + 1))
    k.e("v_lshl_add_u32 v%d, v%d, 6, v%d" % (V_RA, t + 4, V_RA))
    b = (first_stage % nslot) * SLOT
    if b:
        k.e("v_add_u32 v%d, 0x%x, v%d" % (V_RA, b, V_RA))
    k.e("v_xor_b32 v%d, 64, v%d" % (V_RA + 1, V_RA))


def o_loads(k, lo, hi, opol):
    for ks in range(lo, hi):
        k.vmem("buffer_load_dwordx4 %s, v%d, %s, s%d offen offset:%d%s" % (vr(4 * ks, 4, True), V_L16, srd(SRD_WS), S_OO, (ks & 3) * 1024, opol), "o%d" % ks)
        if ks & 3 == 3:
            k.e("s_add_u32 s%d, s%d, 4096" % (S_OO, S_OO))


def o_load_base(k):
    k.e("s_lshl_b32 s%d, s%d, 4" % (S_T0, S_BR))
    k.e("s_add_u32 s%d, s%d, s%d" % (S_T0, S_T0, S_B))
    k.e("s_lshl_b32 s%d, s%d, 2" % (S_T0, S_T0))
    k.e("s_add_u32 s%d, s%d, s%d" % (S_T0, S_T0, S_HG))
    k.e("s_lshl_b32 s%d, s%d, 16" % (S_OO, S_T0))


def phase2_compute(k, nslot, all_landed):
    NSET = 4

    def reads(ks):
        fa = V_FA + 8 * (ks % NSET)
        for nt in range(2):
            for e in range(2):
                k.ds("ds_read_b64_tr_b16 %s, v%d offset:%d" % (vr(fa + 4 * nt + 2 * e, 2), V_RA + nt, ((ks % 16) * 16 + 8 * e) * 128), "w%d" % ks)

    def enter(ks):
        if ks % 16 == 0:
            st = 10 + ks // 16
            if ks:
                for op in adv_read_addrs(k, [V_RA, V_RA + 1], st - 1, st, nslot):
                    op()
            if not all_landed:
                k.wait(vm=("st%d" % st,))
                k.e("s_barrier")
                k.stamp()
    for ks in range(NSET - 1):
        enter(ks)
        reads(ks)
    for ks in range(64):
        k.wait(vm=("o%d" % ks,), lg=("w%d" % ks,))
        fa = V_FA + 8 * (ks % NSET)
        mfma(k, V_ACC, fa, 4 * ks, ks == 0, ba=True)
        mfma(k, V_ACC + 16, fa + 4, 4 * ks, ks == 0, ba=True)
        n = ks + NSET - 1
        if n < 64:
            enter(n)
            reads(n)


def part_base(k, j_sreg, hg_sreg):
    k.e("s_lshl_b32 s%d, s%d, 2" % (S_T0, S_BR))
    k.e("s_add_u32 s%d, s%d, s%d" % (S_T0, S_T0, S_TG))
    k.e("s_lshl_b32 s%d, s%d, 3" % (S_T0, S_T0))
    k.e("s_add_u32 s%d, s%d, s%d" % (S_T0, S_T0, S_LO))
    k.e("s_lshl_b32 s%d, s%d, 2" % (S_T0, S_T0))
    k.e("s_add_u32 s%d, s%d, s%d" % (S_T0, S_T0, j_sreg))
    k.e("s_lshl_b32 s%d, s%d, 2" % (S_T0, S_T0))
    if hg_sreg is not None:
        k.e("s_add_u32 s%d, s%d, s%d" % (S_T0, S_T0, hg_sreg))
    k.e("s_lshl_b32 s%d, s%d, 13" % (S_T0, S_T0))
    k.e("s_add_u32 s%d, s%d, 0x%x" % (S_OP, S_T0, WS_P))


def part_store(k, opol):
    part_base(k, S_W, S_HG)
    k.e("s_add_u32 s%d, s%d, 4096" % (S_T2, S_OP))
    k.e("s_nop 7")
    for i in range(8):
        k.vmem("buffer_store_dwordx4 %s, v%d, %s, s%d offen offset:%d%s" % (vr(V_ACC + 4 * i, 4), V_L16, srd(SRD_WS), S_OP if i < 4 else S_T2, (i & 3) * 1024, opol), "pst")


def reduce_store(k, opol):
    part_base(k, S_HG, None)
    k.e("s_lshl_b32 s%d, s%d, 11" % (S_T0, S_W))
    k.e("s_add_u32 s%d, s%d, s%d" % (S_OP, S_OP, S_T0))
    for q in range(4):
        for i in range(2):
            k.vmem("buffer_load_dwordx4 %s, v%d, %s, s%d offen offset:%d%s" % (vr(V_KF + 8 * q + 4 * i, 4), V_L16, srd(SRD_WS), S_OP, i * 1024, opol), "p%d" % q)
        if q < 3:
            k.e("s_add_u32 s%d, s%d, 8192" % (S_OP, S_OP))
    t = V_T
    k.e("v_and_b32 v%d, 31, v0" % t)
    k.e("v_lshrrev_b32 v%d, 5, v0" % (t + 1))
    k.e("v_lshlrev_b32 v%d, 11, v%d" % (t, t))
    k.e("v_lshl_add_u32 v%d, v%d, 4, v%d" % (t, t + 1, t))
    k.e("s_lshl_b32 s%d, s%d, 2" % (S_T0, S_TG))
    k.e("s_add_u32 s%d, s%d, s%d" % (S_T0, S_T0, S_HG))
    k.e("s_lshl_b32 s%d, s%d, 16" % (S_T0, S_T0))
    k.e("s_lshl_b32 s%d, s%d, 10" % (S_T1, S_BR))
    k.e("s_add_u32 s%d, s%d, s%d" % (S_T0, S_T0, S_T1))
    k.e("s_lshl_b32 s%d, s%d, 7" % (S_T1, S_LO))
    k.e("s_add_u32 s%d, s%d, s%d" % (S_T0, S_T0, S_T1))
    k.e("s_lshl_b32 s%d, s%d, 5" % (S_T1, S_W))
    k.e("s_add_u32 s%d, s%d, s%d" % (S_T0, S_T0, S_T1))
    k.wait(vm=("p1",))
    for i in range(8):
        k.e("v_add_f32 v%d, v%d, v%d" % (V_KF + i, V_KF + i, V_KF + 8 + i))
    k.wait(vm=("p3",))
    for i in range(8):
        k.e("v_add_f32 v%d, v%d, v%d" % (V_KF + 16 + i, V_KF + 16 + i, V_KF + 24 + i))
    for i in range(8):
        k.e("v_add_f32 v%d, v%d, v%d" % (V_KF + i, V_KF + i, V_KF + 16 + i))
    for j in range(4):
        k.e("v_cvt_pk_bf16_f32 v%d, v%d, v%d" % (V_PB + j, V_KF + 2 * j, V_KF + 2 * j + 1))
    k.vmem("buffer_store_dwordx4 %s, v%d, %s, s%d offen" % (vr(V_PB, 4), t, srd(SRD_OUT), S_T0), "out")


def kernel_text(name, k, nv=256, acc=256):
    return ("\n.globl %s\n.p2align 8\n.type %s,@function\n%s:\n" % (name, name, name)) + "\n".join(k.l) + "\n", \
        (".p2align 6\n.amdhsa_kernel %s\n  .amdhsa_next_free_vgpr %d\n  .amdhsa_next_free_sgpr 102\n  .amdhsa_accum_offset %d\n"
         "  .amdhsa_group_segment_fixed_size 0\n  .amdhsa_kernarg_size 104\n  .amdhsa_user_sgpr_count 2\n"
         "  .amdhsa_user_sgpr_kernarg_segment_ptr 1\n  .amdhsa_system_sgpr_workgroup_id_x 1\n.end_amdhsa_kernel\n" % (name, nv, acc))


def finish(launches, kernels):
    s = HDR
    for l in launches:
        s += l + "\n"
    s += '.amdgcn_target "amdgcn-amd-amdhsa--gfx950"\n.text\n'
    s += "".join(t for t, _ in kernels)
    s += '.section .rodata,"a"\n'
    s += "".join(d for _, d in kernels)
    return s


def gen_three(diag=False, extra_empty=0):
    ks = []
    k = K(diag)
    prologue(k, "L1_end")
    phase1(k, 5, 9)
    k.stamp()
    attention(k, 5, 9)
    k.stamp()
    k.dump_stamps(0)
    k.lab("L1_end")
    k.e("s_endpgm")
    ks.append(kernel_text("p1_kernel", k))
    k = K(diag)
    prologue(k, "L2_end")
    p2_dma_addrs(k)
    k.e("v_lshlrev_b32 v%d, 4, v0" % V_L16)
    o_load_base(k)
    build_srds(k, ["WO", "WS"])
    for q in range(4):
        for op in dma_stage(k, 10 + q, 5):
            op()
        o_loads(k, 16 * q, 16 * q + 16 if q < 3 else 56, "")
    p2_read_addrs(k, 10, 5)
    k.wait(vm=("st10", "go"))
    o_loads(k, 56, 64, "")
    k.stamp()
    phase2_compute(k, 5, False)
    k.stamp()
    part_store(k, "")
    k.dump_stamps(1)
    k.lab("L2_end")
    k.e("s_endpgm")
    ks.append(kernel_text("p2_kernel", k, 512, 256))
    k = K(diag)
    prologue(k, "L3_end")
    k.e("v_lshlrev_b32 v%d, 4, v0" % V_L16)
    build_srds(k, ["WS", "OUT"])
    reduce_store(k, "")
    k.stamp()
    k.dump_stamps(2)
    k.lab("L3_end")
    k.e("s_endpgm")
    ks.append(kernel_text("p3_kernel", k))
    L = ["; @launch kernel=p1_kernel grid=(256,1,1) block=(256,1,1) lds=163840",
         "; @launch kernel=p2_kernel grid=(256,1,1) block=(256,1,1) lds=163840",
         "; @launch kernel=p3_kernel grid=(256,1,1) block=(256,1,1) lds=0"]
    if extra_empty:
        k = K()
        k.e("s_endpgm")
        ks.append(kernel_text("nop_kernel", k, 8, 8))
        L += ["; @launch kernel=nop_kernel grid=(256,1,1) block=(256,1,1) lds=0"] * extra_empty
    return finish(L, ks)


WS_F = 16 << 20
V_KA, V_VA, V_WA = 18, 19, 240
V_FL1, V_FL2, V_PL1, V_PL2, V_GO, V_ONE, V_OUT = 244, 245, 246, 247, 248, 249, 250
V_GOA, V_GOD = 251, 252
V_ANN, V_GOP = 253, 254
S_ANN4, S_K11, S_FAST, S_CL, S_OB = 5, 6, 7, 4, 6
V_AC2, V_PL = 176, 112
S_NB, S_KQ, S_OWO2, S_GO, S_SPIN, S_OI = 85, 3, 78, 30, 31, 79


def one_addrs(k, ns):
    t = V_T
    k.e("s_and_b32 s%d, s%d, 3" % (S_NB, S_LO))
    k.e("s_lshr_b32 s%d, s%d, 2" % (S_KQ, S_HEAD))
    k.e("v_lshrrev_b32 v%d, 4, v0" % t)
    k.e("v_and_b32 v%d, 15, v0" % (t + 1))
    k.e("v_lshlrev_b32 v%d, 2, v%d" % (t + 2, t))
    k.e("v_xor_b32 v%d, v%d, v%d" % (t + 2, t + 2, t + 1))
    k.e("v_lshlrev_b32 v%d, 4, v%d" % (t + 2, t + 2))
    k.e("v_lshl_add_u32 v%d, v%d, 10, v%d" % (V_DWO, t, t + 2))
    k.e("s_lshl_b32 s%d, s%d, 15" % (S_T0, S_W))
    k.e("v_add_u32 v%d, s%d, v%d" % (V_DWO, S_T0, V_DWO))
    for i in range(1, 4):
        k.e("v_add_u32 v%d, %d, v%d" % (V_DWO + i, i * 3072, V_DWO))
    k.e("v_lshrrev_b32 v%d, 5, v0" % t)
    k.e("v_and_b32 v%d, 15, v0" % (t + 1))
    k.e("v_xor_b32 v%d, v%d, v%d" % (t + 1, t + 1, t))
    k.e("v_lshlrev_b32 v%d, 4, v%d" % (t + 1, t + 1))
    k.e("v_and_b32 v%d, 31, v0" % (t + 2))
    k.e("v_lshl_add_u32 v%d, v%d, 8, v%d" % (V_KA, t + 2, t + 1))
    k.e("s_add_u32 s%d, s%d, %d" % (S_T0, S_M8, slot_of(8, ns) * SLOT))
    k.e("v_add_u32 v%d, s%d, v%d" % (V_KA, S_T0, V_KA))
    k.e("v_lshlrev_b32 v%d, 11, v%d" % (V_OUT, t + 2))
    k.e("v_lshl_add_u32 v%d, v%d, 4, v%d" % (V_OUT, t, V_OUT))
    tr_lane_terms(k, t)
    k.e("v_lshl_add_u32 v%d, v%d, 2, v%d" % (t + 5, t, t + 1))
    k.e("v_lshlrev_b32 v%d, 8, v%d" % (t + 5, t + 5))
    k.e("v_lshl_add_u32 v%d, v%d, 6, v%d" % (t + 5, t + 1, t + 5))
    k.e("v_lshl_add_u32 v%d, v%d, 3, v%d" % (V_VA, t + 3, t + 5))
    k.e("v_lshl_add_u32 v%d, v%d, 5, v%d" % (V_VA, t + 2, V_VA))
    k.e("s_add_u32 s%d, s%d, %d" % (S_T0, S_M8, slot_of(9, ns) * SLOT))
    k.e("v_add_u32 v%d, s%d, v%d" % (V_VA, S_T0, V_VA))
    pi_term(k, V_WA, t)
    k.e("v_add_u32 v%d, v%d, v%d" % (V_WA, V_WA, t + 5))
    for nt in range(1, 4):
        k.e("v_xor_b32 v%d, %d, v%d" % (V_WA + nt, nt << 6, V_WA))
    k.e("s_and_b32 s%d, s2, 0xe7" % S_T0)
    k.e("s_lshl_b32 s%d, s%d, 8" % (S_T0, S_T0))
    k.e("s_lshl_b32 s%d, s%d, 4" % (S_T1, S_W))
    k.e("s_add_u32 s%d, s%d, s%d" % (S_T0, S_T0, S_T1))
    k.e("s_lshl_b32 s%d, s%d, 2" % (S_T2, S_NB))
    k.e("s_add_u32 s%d, s%d, s%d" % (S_T0, S_T0, S_T2))
    k.e("v_and_b32 v%d, 3, v0" % t)
    k.e("v_lshlrev_b32 v%d, 11, v%d" % (V_FL1, t))
    k.e("v_add_u32 v%d, s%d, v%d" % (V_FL1, S_T0, V_FL1))
    k.e("s_lshl_b32 s%d, s2, 8" % S_T0)
    k.e("s_add_u32 s%d, s%d, s%d" % (S_T1, S_T0, S_T1))
    k.e("v_lshlrev_b32 v%d, 2, v%d" % (V_PL1, t))
    k.e("v_add_u32 v%d, s%d, v%d" % (V_PL1, S_T1, V_PL1))
    k.e("v_and_b32 v%d, 7, v0" % t)
    k.e("v_lshlrev_b32 v%d, 2, v%d" % (V_PL2, t))
    k.e("s_add_u32 s%d, s%d, 128" % (S_T1, S_T0))
    k.e("v_add_u32 v%d, s%d, v%d" % (V_PL2, S_T1, V_PL2))
    k.e("s_and_b32 s%d, s2, 0xdc" % S_T0)
    k.e("s_or_b32 s%d, s%d, s%d" % (S_T0, S_T0, S_W))
    k.e("s_lshl_b32 s%d, s%d, 8" % (S_T0, S_T0))
    k.e("s_lshl_b32 s%d, s%d, 2" % (S_T1, S_KQ))
    k.e("s_add_u32 s%d, s%d, s%d" % (S_T0, S_T0, S_T1))
    k.e("s_add_u32 s%d, s%d, 128" % (S_T0, S_T0))
    k.e("v_and_b32 v%d, 1, v0" % t)
    k.e("v_lshlrev_b32 v%d, 13, v%d" % (V_FL2, t))
    k.e("v_add_u32 v%d, s%d, v%d" % (V_FL2, S_T0, V_FL2))
    k.e("v_mov_b32 v%d, 1" % V_ONE)
    k.e("s_lshl_b32 s%d, s%d, 1" % (S_GO, S_TG))
    k.e("s_add_u32 s%d, s%d, s%d" % (S_GO, S_GO, S_BR))
    k.e("s_lshl_b32 s%d, s%d, 5" % (S_GO, S_GO))
    k.e("v_and_b32 v%d, 7, v0" % t)
    k.e("v_lshl_add_u32 v%d, v%d, 2, s%d" % (V_GOP, t, S_GO))
    k.e("s_lshl2_add_u32 s%d, s%d, s%d" % (S_GO, S_KQ, S_GO))
    k.e("v_mov_b32 v%d, s%d" % (V_GOA, S_GO))


def wo_stage(k, st, pol, nslot):
    j = st - 10
    base = slot_of(st, nslot) * SLOT
    tag = "st%d" % st
    ops = []
    for g in range(2):
        for i in range(4):
            def op(g=g, i=i):
                if i == 0:
                    if g == 0:
                        k.e("s_add_u32 s%d, s%d, %d" % (S_T3, S_NB, j))
                        k.e("s_and_b32 s%d, s%d, 3" % (S_T3, S_T3))
                        k.e("s_lshl2_add_u32 s%d, s%d, s%d" % (S_T3, S_KQ, S_T3))
                        k.e("s_lshl_b32 s%d, s%d, 9" % (S_T3, S_T3))
                        k.e("s_add_u32 s%d, s%d, s%d" % (S_T3, S_T3, S_NB))
                        k.e("s_lshl_b32 s%d, s%d, 8" % (S_OWO2, S_T3))
                    else:
                        k.e("s_add_u32 s%d, s%d, 16384" % (S_OWO2, S_OWO2))
                    k.e("s_add_u32 m0, s%d, %d" % (S_M8, base + 4096 * g))
                    k.e("s_nop 0")
                k.vmem("buffer_load_dwordx4 v%d, %s, s%d offen offset:%d%s lds" % (V_DWO + i, srd(SRD_WO), S_OWO2, i * 1024, pol), tag)
            ops.append(op)
    return ops


def spin(k, name, addr, sr, soff, expect, cmp="ne"):
    k.e("s_mov_b32 s%d, 0x40000" % S_SPIN)
    k.lab(name)
    k.e("buffer_load_dword v%d, v%d, %s, %s offen sc1" % (V_GO, addr, srd(sr), soff))
    k.e("s_sub_u32 s%d, s%d, 1" % (S_SPIN, S_SPIN))
    k.e("s_cbranch_scc1 %s_x" % name)
    k.wait(vm0=True)
    k.e("v_cmp_%s_u32 vcc, %s, v%d" % (cmp, expect, V_GO))
    k.e("s_cbranch_vccnz %s" % name)
    k.lab(name + "_x")


SCHED = {
    5: {"i": "0a 0b 1a 1b 2a 2b 3a 3b", "p": "4a 4b", 0: "5a 5b", 1: "6a 6b", 2: "7a 7b", 3: "8a 8b", 4: "9a 9b", 5: "10a 10b", 6: "11a 11b", 7: "12a 12b"},
    30: {"i": "0a 0b 1a 1b 2a 2b", "p": "8a", 0: "3a 3b 8b", 1: "4a 4b", 2: "5a 5b", 3: "6a 6b", 4: "7a 7b 9a", 5: "9b 10a 10b", 6: "11a 11b", 7: "12a 12b"},
    31: {"i": "0a 0b 1a 1b", "p": "2a 2b 8a", 0: "3a 3b 8b", 1: "4a 4b 9a", 2: "5a 5b 9b", 3: "6a 6b", 4: "7a 7b", 5: "10a 10b", 6: "11a 11b", 7: "12a 12b"},
    32: {"i": "0a 0b 1a 1b 8a 2a 2b 8b", "p": "9a 9b", 0: "3a 3b", 1: "4a 4b", 2: "5a 5b", 3: "6a 6b", 4: "7a 7b", 5: "10a 10b", 6: "11a 11b", 7: "12a 12b"},
    34: {"i": "0a 0b 1a 1b 2a 2b", "p": "8a 8b", 0: "3a 3b", 1: "4a 4b 9a", 2: "5a 5b 9b", 3: "6a 6b", 4: "7a 7b", 5: "10a 10b", 6: "11a 11b", 7: "12a 12b"},
    40: {"i": "0a 0b 1a 1b 2a 2b", "p": "", 0: "3a 3b", 1: "4a 4b", 2: "5a 5b", 3: "6a 6b", 4: "7a 7b", 5: "", 6: "", 7: ""},
    41: {"i": "0a 0b 1a 1b 2a 2b 3a 3b", "p": "", 0: "4a 4b", 1: "5a 5b", 2: "6a 6b", 3: "7a 7b", 4: "", 5: "", 6: "", 7: ""},
    42: {"i": "0a 0b 1a 1b 2a 2b", "p": "3a 3b", 0: "4a 4b", 1: "5a 5b", 2: "6a 6b", 3: "7a 7b", 4: "", 5: "", 6: "", 7: ""},
    33: {"i": "0a 0b 1a 1b 2a 2b", "p": "8a 8b", 0: "3a 3b 9a", 1: "4a 4b 9b", 2: "5a 5b", 3: "6a 6b", 4: "7a 7b", 5: "10a 10b", 6: "11a 11b", 7: "12a 12b"},
}


def gen_one(diag=0, sched=30, nt=0, pad=0, fast=1, rot=2, fk=4, pk=6, oup=3, o2=14, sent=0, ann=0, cw="p", hk=0, hv=1):
    k = K(diag)
    pol = " nt" if nt else ""
    t = V_T
    NS = {5: 5, 41: 4, 42: 4}.get(sched, 3)
    made = {}

    def stage(st):
        return dma_stage(k, st, NS, pol if st >= 8 else "") if st < 10 else wo_stage(k, st, "", NS)

    def window(w):
        ops = []
        for g in SCHED[sched][w].split():
            st = int(g[:-1])
            if st not in made:
                made[st] = stage(st)
            ops += made[st][:4] if g[-1] == "a" else made[st][4:]
        return ops
    prologue(k, "L_end")
    if pad:
        k.e("s_memrealtime s[98:99]")
    p1_dma_addrs(k)
    k.e("s_mov_b32 s%d, s%d" % (S_OV, S_OKV))
    if rot:
        if rot == 1:
            k.e("s_lshl1_add_u32 s%d, s%d, s%d" % (S_T0, S_TG, S_LO))
            k.e("s_and_b32 s%d, s%d, 7" % (S_T0, S_T0))
        elif rot == 2:
            k.e("s_lshl_b32 s%d, s%d, 1" % (S_T0, S_TG))
        elif rot == 3:
            k.e("s_lshl_b32 s%d, s%d, 2" % (S_T0, S_TG))
            k.e("s_and_b32 s%d, s%d, 4" % (S_T0, S_T0))
        k.e("s_lshl_b32 s%d, s%d, 19" % (S_T1, S_T0))
        k.e("s_add_u32 s%d, s%d, s%d" % (S_OWQ, S_OWQ, S_T1))
        k.e("s_lshl_b32 s%d, s%d, 7" % (S_T1, S_T0))
        k.e("s_add_u32 s%d, s%d, s%d" % (S_OX, S_OX, S_T1))
    p1_read_addrs(k)
    one_addrs(k, NS)
    if slot_of(10, NS):
        for x in range(4):
            k.e("v_add_u32 v%d, 0x%x, v%d" % (V_WA + x, slot_of(10, NS) * SLOT, V_WA + x))
    k.e("v_lshlrev_b32 v%d, 4, v0" % V_L16)
    k.e("v_lshlrev_b32 v1, 2, v0")
    k.e("v_mov_b32 v2, 0")
    k.e("s_lshl_b32 s%d, s2, 8" % S_T2)
    k.e("s_add_u32 s%d, s%d, 0x%x" % (S_T2, S_T2, WS_F))
    hlp = sched >= 40
    if hlp:
        k.e("s_cmp_eq_u32 s%d, 1" % S_T3)
        k.e("s_cbranch_scc1 L_helper")
    build_srds(k, ["WQ", "X"])
    ini = window("i")
    for op in ini[:8]:
        op()
    sv, k.diag = k.diag, 0
    n0 = len(k.l)
    build_srds(k, ["WS", "OUT", "DBG"] if hlp else ["WS", "K", "V", "WO", "OUT", "DBG"])
    del k.l[n0]
    k.diag = sv
    if not hlp:
        k.vmem("buffer_store_dword v2, v1, %s, s%d offen sc1" % (srd(SRD_WS), S_T2), "zero")
    for op in ini[8:]:
        op()
    k.e("s_mov_b32 s%d, 0x%x" % (S_OI, WS_F))
    k.e("s_getreg_b32 s%d, hwreg(HW_REG_XCC_ID, 0, 3)" % S_ANN4)
    k.e("s_lshl_b32 s%d, s%d, 2" % (S_ANN4, S_ANN4))
    k.e("s_lshl_b32 s%d, 1, s%d" % (S_ANN4, S_ANN4))
    k.e("v_mov_b32 v%d, s%d" % (V_ANN, S_ANN4))
    k.e("s_lshl_b32 s%d, s%d, 2" % (S_ANN4, S_ANN4))
    k.e("s_mov_b32 s%d, 0x11111111" % S_K11)
    k.e("s_lshl2_add_u32 s%d, s%d, s%d" % (S_T0, S_BR, S_TG))
    k.e("s_lshl2_add_u32 s%d, s%d, s%d" % (S_T0, S_T0, S_NB))
    k.e("s_lshl2_add_u32 s%d, s%d, s%d" % (S_T1, S_T0, S_W))
    k.e("s_lshl_b32 s%d, s%d, 6" % (S_T1, S_T1))
    k.e("s_add_u32 s%d, s%d, s%d" % (S_T1, S_T1, S_KQ))
    k.e("s_lshl_b32 s%d, s%d, 10" % (S_T1, S_T1))
    k.e("s_add_u32 s%d, s%d, 0x%x" % (S_OP, S_T1, WS_P))
    k.e("s_mov_b32 s%d, s%d" % (S_CL, S_OP))
    for x in range(4):
        k.e("v_mov_b32 v%d, -1" % (V_S + x))

    def clr():
        k.vmem("buffer_store_dwordx4 %s, v%d, %s, s%d offen sc1" % (vr(V_S, 4), V_L16, srd(SRD_WS), S_CL), "zero")
        k.e("s_add_u32 s%d, s%d, 8192" % (S_CL, S_CL))
    clears = [clr] * 8 if sent else []
    if cw == "i":
        for op in clears:
            op()
    k.wait(vm=("st0",))
    k.e("s_barrier")
    k.stamp()
    for op in p1_reads(k, 0, NS):
        op()
    pend = window("p") + (clears if cw == "p" else [])
    gaps = 12
    for g in range(32):
        st, s = g // 4, g % 4
        fa, fb = V_FA + 16 * (g & 1), V_FB + 4 * (g & 1)
        pre = []
        if s == 3:
            assert not pend
            k.wait(vm=("st%d" % (st + 1), "zero" if st == ann else ""), lg0=True)
            k.e("s_barrier")
            if st in (1, 4, 7):
                k.stamp()
            if st == ann and not hlp:
                k.e("s_cmp_lg_u32 s%d, 0" % S_W)
                k.e("s_cbranch_scc1 L_noann")
                k.e("s_mov_b64 exec, 1")
                k.e("buffer_atomic_add v%d, v%d, %s, 0 offen sc1" % (V_ANN, V_GOA, srd(SRD_DBG)))
                k.e("s_mov_b64 exec, -1")
                k.lab("L_noann")
            if st == 6:
                k.vmem("buffer_load_dword v%d, v%d, %s, 0 offen sc1" % (V_GOD, V_GOP, srd(SRD_DBG)), "go")
                k.vmem("buffer_load_dword v%d, v%d, %s, s%d offen sc1" % (V_GO, V_PL1, srd(SRD_WS), S_OI), "warm")
            if st < 7:
                pre = adv_read_addrs(k, list(range(V_RB, V_RB + 4)) + list(range(V_RA, V_RA + 4)), st, st + 1, NS)
            pend = window(st) + (clears if cw == st else [])
            gaps = 16
        if g < 31:
            rd = p1_reads(k, g + 1, NS)
        else:
            rd = []
            for i in range(8):
                def kr(i=i):
                    if i:
                        k.e("v_xor_b32 v%d, %d, v%d" % (t + (i & 1), i << 5, V_KA))
                    k.ds("ds_read_b128 %s, v%d" % (vr(V_KF + 4 * i, 4), t + (i & 1) if i else V_KA), "k%d" % i)
                rd.append(kr)
        if s == 3 and st < 7:
            seq = [pre[0], rd[0], pre[4], rd[1], rd[2], pre[5], rd[3], rd[4], pre[6], rd[5], rd[6], pre[7], rd[7], rd[8]] + pre[1:4]
            split = [5, 3, 3, 6]
        elif g == 31:
            seq, split = rd, [2, 2, 2, 2]
        else:
            seq = rd
            split = [4, 3, 2, 0]
        pos = 0
        for dt in range(4):
            k.wait(lg=("b%d" % g, "a%d_%d" % (g, dt)))
            mfma(k, V_ACC + 16 * dt, fa + 4 * dt, fb, g == 0)
            for op in seq[pos:pos + split[dt]]:
                op()
            pos += split[dt]
            n = -(-len(pend) // gaps) if (g == 31 or len(pend) * 2 > gaps or gaps % 2 == 0) else 0
            for _ in range(n):
                pend.pop(0)()
            gaps -= 1
    k.e("s_mov_b32 s%d, 0x3e0293ee" % S_C)
    for dt in range(1, 4):
        k.e("v_xor_b32 v%d, %d, v%d" % (V_RA + dt, dt << 6, V_VA))
    for i in range(8):
        if i == 6:
            k.e("s_nop 1")
        for j in range(4):
            k.e("v_cvt_pk_bf16_f32 v%d, v%d, v%d" % (V_QB + 4 * i + j, V_ACC + 8 * i + 2 * j, V_ACC + 8 * i + 2 * j + 1))
        if i >= 1:
            k.wait(lg=("k%d" % (i - 1),))
            mfma(k, V_S, V_KF + 4 * (i - 1), V_QB + 4 * (i - 1), i == 1)
        if pend:
            pend.pop(0)()
    k.wait(lg=("k7",), vm=("st9",))
    k.e("s_nop 0")
    mfma(k, V_S, V_KF + 28, V_QB + 28, False)
    def vreads():
        for dt in range(4):
            for u in range(2):
                for e in range(2):
                    k.ds("ds_read_b64_tr_b16 %s, v%d offset:%d" % (vr(V_FA + 8 * dt + 4 * u + 2 * e, 2), V_RA + dt if dt else V_VA, (16 * u + 8 * e) * 256), "v%d" % dt)
    if NS != 4:
        vreads()
    else:
        k.e("s_nop 7")
        k.e("s_nop 3")
    if not hlp:
        pend += stage(13)
    m, m2 = t, t + 1

    def dm():
        if pend:
            pend.pop(0)()
    dm()
    k.e("v_max3_f32 v%d, v%d, v%d, v%d" % (m, V_S, V_S + 1, V_S + 2))
    k.e("v_max3_f32 v%d, v%d, v%d, v%d" % (m2, V_S + 3, V_S + 4, V_S + 5))
    for i in range(6, 14, 4):
        k.e("v_max3_f32 v%d, v%d, v%d, v%d" % (m, m, V_S + i, V_S + i + 1))
        k.e("v_max3_f32 v%d, v%d, v%d, v%d" % (m2, m2, V_S + i + 2, V_S + i + 3))
    k.e("v_max3_f32 v%d, v%d, v%d, v%d" % (m, m, V_S + 14, V_S + 15))
    k.e("v_max_f32 v%d, v%d, v%d" % (m, m, m2))
    k.e("v_mov_b32 v%d, v%d" % (m2, m))
    dm()
    k.e("s_nop 1")
    k.e("v_permlane32_swap_b32 v%d, v%d" % (m, m2))
    k.e("v_max_f32 v%d, v%d, v%d" % (m, m, m2))
    k.e("v_mul_f32 v%d, s%d, v%d" % (m, S_C, m))
    for i in range(16):
        k.e("v_fma_f32 v%d, v%d, s%d, -v%d" % (V_S + i, V_S + i, S_C, m))
    for i in range(16):
        k.e("v_exp_f32 v%d, v%d" % (V_S + i, V_S + i))
        if i & 1:
            dm()
    if NS == 4:
        k.e("s_barrier")
        vreads()
    k.e("v_add_f32 v%d, v%d, v%d" % (m, V_S, V_S + 1))
    k.e("v_add_f32 v%d, v%d, v%d" % (m2, V_S + 2, V_S + 3))
    for i in range(4, 16, 2):
        k.e("v_add_f32 v%d, v%d, v%d" % (m, m, V_S + i))
        k.e("v_add_f32 v%d, v%d, v%d" % (m2, m2, V_S + i + 1))
    k.e("v_add_f32 v%d, v%d, v%d" % (m, m, m2))
    k.e("v_mov_b32 v%d, v%d" % (m2, m))
    while pend:
        dm()
    k.e("s_nop 1")
    k.e("v_permlane32_swap_b32 v%d, v%d" % (m, m2))
    k.e("v_add_f32 v%d, v%d, v%d" % (m, m, m2))
    k.e("v_rcp_f32 v%d, v%d" % (m, m))
    k.e("s_lshl_b32 s%d, s%d, 4" % (S_T0, S_BR))
    k.e("s_add_u32 s%d, s%d, s%d" % (S_T0, S_T0, S_B))
    k.e("s_lshl_b32 s%d, s%d, 5" % (S_T0, S_T0))
    k.e("s_add_u32 s%d, s%d, s%d" % (S_T1, S_T0, S_HEAD))
    k.e("s_lshl_b32 s%d, s%d, 13" % (S_OX, S_T1))
    k.e("s_add_u32 s%d, s%d, 4096" % (S_T2, S_OX))
    for i in range(16):
        k.e("v_mul_f32 v%d, v%d, v%d" % (V_S + i, V_S + i, m))
    for j in range(8):
        k.e("v_cvt_pk_bf16_f32 v%d, v%d, v%d" % (V_PB + j, V_S + 2 * j, V_S + 2 * j + 1))
    k.wait(vm=("st10", "go"))
    k.e("s_mov_b32 s%d, 0x40000" % S_SPIN)
    k.lab("L_go")
    k.e("v_mul_lo_u32 v%d, v%d, s%d" % (t, V_GOD, S_K11))
    k.e("v_lshrrev_b32 v%d, 28, v%d" % (t, t))
    k.e("v_cmp_ne_u32 vcc, 4, v%d" % t)
    k.e("s_cbranch_vccz L_go_x")
    k.e("buffer_load_dword v%d, v%d, %s, 0 offen sc1" % (V_GOD, V_GOP, srd(SRD_DBG)))
    k.e("s_sub_u32 s%d, s%d, 1" % (S_SPIN, S_SPIN))
    k.e("s_waitcnt vmcnt(0)")
    k.e("s_cbranch_scc0 L_go")
    k.lab("L_go_x")
    k.e("v_readlane_b32 s%d, v%d, s%d" % (S_FAST, V_GOD, S_KQ))
    k.e("s_barrier")
    k.stamp()
    k.e("s_cmp_eq_u32 s%d, s%d" % (S_FAST, S_ANN4 if fast else S_K11))
    def wreads(ks):
        fa = V_FA + 16 * (ks & 1)
        if ks >= 24:
            nt, hf = (ks - 24) >> 1, ks & 1
            return [lambda j=j, e=e: k.ds("ds_read_b64_tr_b16 %s, v%d offset:%d" % (vr(fa + 4 * j + 2 * e, 2), V_WA + nt, (4 * hf + j) * 4096 + e * 2048), "w%d_%d" % (ks, j))
                    for j in range(4) for e in range(2)]
        return [lambda nt=nt, e=e: k.ds("ds_read_b64_tr_b16 %s, v%d offset:%d" % (vr(fa + 4 * nt + 2 * e, 2), V_WA + nt, (ks % 8) * 4096 + e * 2048), "w%d_%d" % (ks, nt))
                for nt in range(4) for e in range(2)]

    def ocvt(i, sc):
        def f():
            for j in range(4):
                k.e("v_cvt_pk_bf16_f32 v%d, v%d, v%d" % (V_QB + 4 * i + j, V_ACC + 8 * i + 2 * j, V_ACC + 8 * i + 2 * j + 1))
            k.vmem("buffer_store_dwordx4 %s, v%d, %s, s%d offen offset:%d%s" % (vr(V_QB + 4 * i, 4), V_L16, srd(SRD_WS), S_OX if i < 4 else S_T2, (i & 3) * 1024, sc), "ost")
        return f

    def pcvt(pc):
        def f():
            for j in range(4):
                k.e("v_cvt_pk_bf16_f32 v%d, v%d, v%d" % (V_ACC + 4 * pc + j, V_AC2 + 8 * pc + 2 * j, V_AC2 + 8 * pc + 2 * j + 1))
            k.vmem("buffer_store_dwordx4 %s, v%d, %s, s%d offen sc1" % (vr(V_ACC + 4 * pc, 4), V_L16, srd(SRD_WS), S_OP), "pst")
            if pc < 7:
                k.e("s_add_u32 s%d, s%d, 8192" % (S_OP, S_OP))
        return f

    def p2step(ks, extra=None):
        extra = extra or {}
        fa = V_FA + 16 * (ks & 1)
        rd = []
        if ks < 31:
            rd = wreads(ks + 1)
            if ks % 8 == 7:
                adv = adv_read_addrs(k, list(range(V_WA, V_WA + 4)), 10 + ks // 8, 11 + ks // 8, NS)
                rd = [adv[0], rd[0], rd[1], adv[1], rd[2], rd[3], adv[2], rd[4], rd[5], adv[3], rd[6], rd[7]]
        n = len(rd) // 4
        for j in range(4):
            kk, nt = (ks, j) if ks < 24 else (24 + 4 * (ks & 1) + j, (ks - 24) >> 1)
            k.wait(lg=("w%d_%d" % (ks, j),), vm=("o%d" % kk,))
            if ks < 8:
                mfma(k, V_AC2 + 16 * nt, fa + 4 * j, V_QB + 4 * ks, ks == 0)
            else:
                mfma(k, V_AC2 + 16 * nt, fa + 4 * j, V_ACC + 4 * (kk - 8), False)
            lo, hi = ([0, 3, 6, 8, 8] if n == 2 else [0, 3, 6, 9, 12])[j:j + 2]
            for op in rd[lo:hi]:
                op()
            for op in extra.get(j, ()):
                op()

    def pv_and_publish(sc):
        for dt in range(4):
            k.wait(lg=("v%d" % dt,))
            mfma(k, V_ACC + 16 * dt, V_FA + 8 * dt, V_PB, True)
            if dt == 3:
                ocvt(1, sc)()
            mfma(k, V_ACC + 16 * dt, V_FA + 8 * dt + 4, V_PB + 4, False)
            if dt == 2:
                ocvt(0, sc)()
                for op in wreads(0):
                    op()
        ocvt(2, sc)()
        p2step(0, {0: [ocvt(3, sc)], 2: [ocvt(4, sc)]})
        p2step(1, {0: [ocvt(5, sc)], 2: [ocvt(6, sc)]})
        p2step(2, {0: [ocvt(7, sc)]})
        for ks in range(3, fk):
            p2step(ks)
        k.wait(vm0=True)
        k.e("s_mov_b64 exec, 15")
        k.e("buffer_store_dword v%d, v%d, %s, s%d offen%s" % (V_ONE, V_FL1, srd(SRD_WS), S_OI, sc))
        k.e("s_mov_b64 exec, -1")
    k.e("s_cbranch_scc1 L_ofast")
    sv = list(k.vm), list(k.lg)
    pv_and_publish(" sc1")
    k.e("s_branch L_odone")
    k.lab("L_ofast")
    k.vm, k.lg = sv
    pv_and_publish("")
    k.lab("L_odone")
    k.e("s_barrier")
    k.stamp()
    k.e("s_and_b32 s%d, s%d, 0x%x" % (S_OX, S_OX, 0xffffffff ^ (3 << 13)))
    for j in range(1, 4):
        k.e("s_add_u32 s%d, s%d, %d" % (S_T0, S_NB, j))
        k.e("s_and_b32 s%d, s%d, 3" % (S_T0, S_T0))
        k.e("s_lshl_b32 s%d, s%d, 13" % (S_T0, S_T0))
        k.e("s_add_u32 s%d, s%d, s%d" % (S_OB + 2 * j, S_T0, S_OX))
        k.e("s_add_u32 s%d, s%d, 4096" % (S_OB + 2 * j + 1, S_OB + 2 * j))
    for ks in range(fk, pk):
        p2step(ks, {0: [lambda: k.vmem("buffer_load_dword v%d, v%d, %s, s%d offen sc1" % (V_GO, V_PL1, srd(SRD_WS), S_OI), "poll")]} if ks == pk - 1 else None)
    if pk > fk:
        k.wait(vm0=True)
        k.e("v_cmp_ne_u32 vcc, 1, v%d" % V_GO)
        k.e("s_cbranch_vccz L_s1_x")
    spin(k, "L_s1", V_PL1, SRD_WS, "s%d" % S_OI, "1")
    k.stamp()
    old = [lambda ks=ks: k.vmem("buffer_load_dwordx4 %s, v%d, %s, s%d offen offset:%d sc1" % (vr(V_ACC + 4 * (ks - 8), 4), V_L16, srd(SRD_WS), S_OB + 2 * (ks // 8) + ((ks >> 2) & 1), (ks & 3) * 1024), "o%d" % ks)
           for ks in range(8, 32)]
    for _ in range(oup):
        old.pop(0)()
    k.e("s_lshl2_add_u32 s%d, s%d, s%d" % (S_T0, S_BR, S_TG))
    k.e("s_lshl2_add_u32 s%d, s%d, s%d" % (S_T0, S_T0, S_NB))
    k.e("s_lshl_b32 s%d, s%d, 3" % (S_T0, S_T0))
    k.e("s_add_u32 s%d, s%d, s%d" % (S_T0, S_T0, S_KQ))
    k.e("s_lshl2_add_u32 s%d, s%d, s%d" % (S_T0, S_T0, S_W))
    k.e("s_lshl_b32 s%d, s%d, 13" % (S_T0, S_T0))
    k.e("s_add_u32 s%d, s%d, 0x%x" % (S_OWQ, S_T0, WS_P))
    k.e("s_add_u32 s%d, s%d, 4096" % (S_OKV, S_OWQ))
    k.e("s_lshr_b32 s%d, s%d, 1" % (S_T0, S_KQ))
    k.e("s_lshl2_add_u32 s%d, s%d, s%d" % (S_T0, S_TG, S_T0))
    k.e("s_lshl_b32 s%d, s%d, 6" % (S_T0, S_T0))
    k.e("s_add_u32 s%d, s%d, s%d" % (S_T0, S_T0, S_BR))
    k.e("s_lshl2_add_u32 s%d, s%d, s%d" % (S_T0, S_T0, S_NB))
    k.e("s_and_b32 s%d, s%d, 1" % (S_T1, S_KQ))
    k.e("s_lshl1_add_u32 s%d, s%d, s%d" % (S_T0, S_T0, S_T1))
    k.e("s_lshl2_add_u32 s%d, s%d, s%d" % (S_T0, S_T0, S_W))
    k.e("s_lshl_b32 s%d, s%d, 5" % (S_T3, S_T0))
    k.e("s_mov_b32 s%d, 0x3f80" % S_T0)
    k.e("s_mov_b32 s%d, 0x3f800000" % S_T1)
    for ks in range(pk, 32):
        ex = {}
        if old:
            ex[0] = [old.pop(0)]
        if old and ks < o2:
            ex[2] = [old.pop(0)]
        if ks >= 26 and ks % 2 == 0:
            assert not old
            ex = {1: [pcvt(ks - 26)], 3: [pcvt(ks - 25)]}
        assert ks >= 8 or len(old) >= 8
        if hlp and ks == 23:
            k.e("s_barrier")
        p2step(ks, ex)
        if ks == 8:
            k.stamp()
    k.stamp()
    k.e("s_nop 7")
    k.e("s_nop 7")
    pcvt(6)()
    pcvt(7)()

    def pload(q):
        k.vmem("buffer_load_dwordx4 %s, v%d, %s, s%d offen offset:%d sc1" % (vr(V_PL + 4 * q, 4), V_L16, srd(SRD_WS), S_OWQ if q < 4 else S_OKV, (q & 3) * 1024), "p%d" % q)
    if not sent:
        k.wait(vm0=True)
        k.e("s_mov_b64 exec, 3")
        k.e("buffer_store_dword v%d, v%d, %s, s%d offen sc1" % (V_ONE, V_FL2, srd(SRD_WS), S_OI))
        k.e("s_mov_b64 exec, -1")
        k.stamp()
        spin(k, "L_s2", V_PL2, SRD_WS, "s%d" % S_OI, "1")
        k.stamp()
        for q in range(8):
            pload(q)
    else:
        k.stamp()
        for q in range(8):
            pload(q)
        k.e("s_mov_b32 s%d, 0x40000" % S_SPIN)
        k.lab("L_s2")
        k.wait(vm0=True)
        k.e("s_mov_b32 s%d, 0" % S_FAST)
        for q in range(8):
            r = V_PL + 4 * q
            k.e("v_max3_u32 v%d, v%d, v%d, v%d" % (t, r, r + 1, r + 2))
            k.e("v_max_u32 v%d, v%d, v%d" % (t, t, r + 3))
            k.e("v_cmp_eq_u32 vcc, -1, v%d" % t)
            k.e("s_cbranch_vccz L_s2_%d" % q)
            pload(q)
            k.e("s_mov_b32 s%d, 1" % S_FAST)
            k.lab("L_s2_%d" % q)
        k.e("s_sub_u32 s%d, s%d, s%d" % (S_SPIN, S_SPIN, S_FAST))
        k.e("s_cbranch_scc1 L_s2_x")
        k.e("s_cmp_eq_u32 s%d, 1" % S_FAST)
        k.e("s_cbranch_scc1 L_s2")
        k.lab("L_s2_x")
        k.wait(vm0=True)
        k.stamp()
    for q in range(8):
        k.wait(vm=("p%d" % q,))
        for j in range(4):
            if q == 0:
                k.e("v_lshlrev_b32 v%d, 16, v%d" % (V_FA + 2 * j, V_PL + j))
                k.e("v_and_b32 v%d, 0xffff0000, v%d" % (V_FA + 2 * j + 1, V_PL + j))
            else:
                k.e("v_dot2_f32_bf16 v%d, v%d, s%d, v%d" % (V_FA + 2 * j, V_PL + 4 * q + j, S_T0, V_FA + 2 * j))
                k.e("v_dot2_f32_bf16 v%d, v%d, s%d, v%d" % (V_FA + 2 * j + 1, V_PL + 4 * q + j, S_T1, V_FA + 2 * j + 1))
    k.e("s_nop 2")
    for j in range(4):
        k.e("v_cvt_pk_bf16_f32 v%d, v%d, v%d" % (V_QB + j, V_FA + 2 * j, V_FA + 2 * j + 1))
    k.vmem("buffer_store_dwordx4 %s, v%d, %s, s%d offen" % (vr(V_QB, 4), V_OUT, srd(SRD_OUT), S_T3), "out")
    k.stamp()
    k.dump_stamps(0)
    if pad:
        k.lab("L_pad")
        k.e("s_memrealtime s[96:97]")
        k.e("s_waitcnt lgkmcnt(0)")
        k.e("s_sub_u32 s96, s96, s98")
        k.e("s_cmp_lt_u32 s96, %d" % (pad * 100))
        k.e("s_cbranch_scc1 L_pad")
    k.lab("L_end")
    k.e("s_endpgm")
    if hlp:
        k.lab("L_helper")
        k.diag, k.vm, k.lg = 0, [], []
        build_srds(k, ["WS", "K", "V", "WO", "DBG"])
        k.e("s_getreg_b32 s%d, hwreg(HW_REG_XCC_ID, 0, 3)" % S_ANN4)
        k.e("s_lshl_b32 s%d, s%d, 2" % (S_ANN4, S_ANN4))
        k.e("s_lshl_b32 s%d, 1, s%d" % (S_ANN4, S_ANN4))
        k.e("v_mov_b32 v%d, s%d" % (V_ANN, S_ANN4))
        k.e("s_cmp_lg_u32 s%d, 0" % S_W)
        k.e("s_cbranch_scc1 L_noann")
        k.e("buffer_store_dword v2, v1, %s, s%d offen sc1" % (srd(SRD_WS), S_T2))
        k.e("s_waitcnt vmcnt(0)")
        k.e("s_mov_b64 exec, 1")
        k.e("buffer_atomic_add v%d, v%d, %s, 0 offen sc1" % (V_ANN, V_GOA, srd(SRD_DBG)))
        k.e("s_mov_b64 exec, -1")
        k.lab("L_noann")
        K8, V9 = stage(8), stage(9)
        if NS == 4:
            at = {5: V9, 6: stage(10), 7: stage(11), 8: stage(12), 9: stage(13)}
            need = {8: ("st8",), 9: ("st9",), 10: ("st10",), 11: ("st11", "st12"), 12: ("st13",)}
            at[hk - 1] = at.get(hk - 1, []) + K8[:4]
            at[hv - 1] = at.get(hv - 1, []) + K8[4:]
        else:
            at = {6: stage(10), 7: stage(11), 8: stage(12), 9: stage(13)}
            need = {8: ("st8", "st9"), 9: ("st10",), 10: ("st11", "st12"), 11: ("st13",)}
            at[hk - 1] = at.get(hk - 1, []) + K8
            at[hv - 1] = at.get(hv - 1, []) + V9
        for b in range(-1, max(need) + 1):
            if b >= 0:
                k.wait(vm=need.get(b, ()))
                k.e("s_barrier")
            for op in at.get(b, ()):
                op()
        k.e("s_endpgm")
    kt = kernel_text(NAME + "_kernel", k, 256, 256)
    return finish(["; @launch grid=(256,1,1) block=(%d,1,1) lds=163840" % (512 if hlp else 256)], [kt])


if __name__ == "__main__":
    mode, out = sys.argv[1], sys.argv[2]
    kw = dict(a.split("=") for a in sys.argv[3:])
    kw = {a: int(b) if b.isdigit() else b for a, b in kw.items()}
    open(out, "w").write(globals()["gen_" + mode](**kw))
```

```python
import sys

NAME = "concat_heads__gqa_block_cached__mha_block_cached__near_ridge"
HDR = open("cdna_kernels/%s.s.ref" % NAME).read().split("; Override launch")[0]

WS_O = 0
WS_P = 8 << 20
WS_DIAG = 24 << 20
WS_BYTES = 32 << 20

S_WG = 2
SRD_X, SRD_WQ, SRD_K, SRD_V, SRD_WO, SRD_WS, SRD_OUT, SRD_DBG = 32, 36, 40, 44, 48, 52, 56, 60
S_BR, S_HG, S_LO, S_TG, S_W, S_B, S_HEAD = 64, 65, 66, 67, 68, 69, 70
S_T0, S_T1, S_T2, S_T3 = 71, 72, 73, 74
S_OWQ, S_OX, S_OKV, S_OWO, S_OO, S_OP = 75, 76, 77, 78, 79, 80
S_MW, S_MX, S_M8 = 81, 82, 83
S_C = 84
S_OV = 84
S_STAMP = 86
SLOT = 32768


def srd(r):
    return "s[%d:%d]" % (r, r + 3)


def vr(b, n=1, a=False):
    p = "a" if a else "v"
    return "%s%d" % (p, b) if n == 1 else "%s[%d:%d]" % (p, b, b + n - 1)


class K:
    def __init__(self, diag=False):
        self.l = []
        self.vm = []
        self.lg = []
        self.diag = diag
        self.nstamp = 0

    def e(self, s):
        self.l.append("    " + s)

    def lab(self, s):
        self.l.append(s + ":")

    def c(self, s):
        self.l.append("    ; " + s)

    def vmem(self, s, tag):
        self.e(s)
        self.vm.append(tag)

    def ds(self, s, tag):
        self.e(s)
        self.lg.append(tag)

    def _cnt(self, q, tags, cap):
        idx = [i for i, t in enumerate(q) if t in tags]
        if not idx:
            return None
        n = len(q) - 1 - max(idx)
        n = min(n, cap)
        del q[: len(q) - n]
        return n

    def wait(self, vm=(), lg=(), vm0=False, lg0=False):
        p = []
        if vm0:
            self.vm = []
            p.append("vmcnt(0)")
        else:
            n = self._cnt(self.vm, vm, 63)
            if n is not None:
                p.append("vmcnt(%d)" % n)
        if lg0:
            self.lg = []
            p.append("lgkmcnt(0)")
        else:
            n = self._cnt(self.lg, lg, 15)
            if n is not None:
                p.append("lgkmcnt(%d)" % n)
        if p:
            self.e("s_waitcnt " + " ".join(p))

    def stamp(self):
        if not self.diag:
            return
        r = S_STAMP + self.nstamp
        assert r <= 100
        self.nstamp += 1
        self.e("s_memrealtime s[30:31]" if self.diag == 1 else "s_memtime s[30:31]")
        self.wait(lg0=True)
        self.e("s_mov_b32 s%d, s30" % r)

    def dump_stamps(self, kidx):
        if not self.diag:
            return
        self.e("s_lshl_b32 s%d, s2, 2" % S_T0)
        self.e("s_add_u32 s%d, s%d, s%d" % (S_T0, S_T0, S_W))
        self.e("s_lshl_b32 s%d, s%d, 6" % (S_T0, S_T0))
        self.e("s_add_u32 s%d, s%d, %d" % (S_T0, S_T0, WS_DIAG + kidx * 131072))
        self.e("v_mov_b32 v1, 0")
        self.e("s_memtime s[30:31]")
        self.wait(lg0=True)
        self.e("s_sub_u32 s101, s30, s101")
        for i in list(range(self.nstamp)) + [15]:
            self.e("v_mov_b32 v2, s%d" % (S_STAMP + i))
            self.e("buffer_store_dword v2, v1, %s, s%d offen offset:%d" % (srd(SRD_WS), S_T0, 4 * i))
            self.e("s_nop 1")


def prologue(k, endlab):
    k.e("s_cmp_ge_u32 s2, 256")
    k.e("s_cbranch_scc1 %s" % endlab)
    k.e("s_load_dwordx16 s[4:19], s[0:1], 0")
    k.e("s_load_dwordx8 s[20:27], s[0:1], 64")
    k.e("s_load_dwordx2 s[28:29], s[0:1], 96")
    if k.diag:
        k.e("%s s[%d:%d]" % ("s_memrealtime" if k.diag == 1 else "s_memtime", S_STAMP, S_STAMP + 1))
        k.e("s_memtime s[100:101]")
        k.nstamp = 1
    k.e("v_lshrrev_b32 v1, 6, v0")
    k.e("v_and_b32 v0, 63, v0")
    k.e("s_and_b32 s%d, s2, 3" % S_HG)
    k.e("v_readfirstlane_b32 s%d, v1" % S_W)
    k.e("s_nop 0")
    k.e("s_lshr_b32 s%d, s%d, 2" % (S_T3, S_W))
    k.e("s_and_b32 s%d, s%d, 3" % (S_W, S_W))
    k.e("s_bfe_u32 s%d, s2, 0x10002" % S_BR)
    k.e("s_bfe_u32 s%d, s2, 0x30003" % S_LO)
    k.e("s_bfe_u32 s%d, s2, 0x20006" % S_TG)
    k.e("s_lshl_b32 s%d, s%d, 3" % (S_HEAD, S_HG))
    k.e("s_add_u32 s%d, s%d, s%d" % (S_HEAD, S_HEAD, S_LO))
    k.e("s_lshl_b32 s%d, s%d, 2" % (S_B, S_TG))
    k.e("s_add_u32 s%d, s%d, s%d" % (S_B, S_B, S_W))
    k.e("s_lshl_b32 s%d, s%d, 12" % (S_MW, S_W))
    k.e("s_add_u32 s%d, s%d, 16384" % (S_MX, S_MW))
    k.e("s_lshl_b32 s%d, s%d, 13" % (S_M8, S_W))


def build_srds(k, which):
    k.e("s_waitcnt lgkmcnt(0)")
    if k.diag:
        k.e("s_mov_b32 s101, s100")
    k.stamp()
    k.e("s_cmp_eq_u32 s%d, 0" % S_BR)
    src = {"X": (4, 14), "K": (6, 16), "V": (8, 18), "WQ": (10, 20), "WO": (12, 22)}
    reg = {"X": SRD_X, "K": SRD_K, "V": SRD_V, "WQ": SRD_WQ, "WO": SRD_WO}
    size = {"X": (1 << 19,) * 2, "K": (1 << 20, 1 << 22), "V": (1 << 20, 1 << 22), "WQ": (1 << 22,) * 2, "WO": (1 << 22,) * 2}
    for n in which:
        if n in src:
            a, b = src[n]
            r = reg[n]
            k.e("s_cselect_b64 s[%d:%d], s[%d:%d], s[%d:%d]" % (r, r + 1, a, a + 1, b, b + 1))
            if size[n][0] == size[n][1]:
                k.e("s_mov_b32 s%d, 0x%x" % (r + 2, size[n][0]))
            else:
                k.e("s_mov_b32 s%d, 0x%x" % (r + 3, size[n][0]))
                k.e("s_cselect_b32 s%d, s%d, 0x%x" % (r + 2, r + 3, size[n][1]))
            k.e("s_mov_b32 s%d, 0x20000" % (r + 3))
        else:
            r, p, sz = {"WS": (SRD_WS, 28, WS_BYTES), "OUT": (SRD_OUT, 24, 1 << 20), "DBG": (SRD_DBG, 26, 256)}[n]
            k.e("s_mov_b64 s[%d:%d], s[%d:%d]" % (r, r + 1, p, p + 1))
            k.e("s_mov_b32 s%d, 0x%x" % (r + 2, sz))
            k.e("s_mov_b32 s%d, 0x20000" % (r + 3))


V_DWQ, V_DX, V_DK, V_DV, V_DWO = 4, 8, 12, 16, 20
V_RA, V_RB = 24, 28
V_L16 = 17
V_T = 32
V_FA = 40
V_FB = 72
V_ACC = 80
V_QB = 144
V_S = 176
V_KF = 192
V_PB = 224


def p1_dma_addrs(k):
    t = V_T
    k.e("v_lshrrev_b32 v%d, 4, v0" % t)
    k.e("v_and_b32 v%d, 15, v0" % (t + 1))
    k.e("v_lshlrev_b32 v%d, 2, v%d" % (t + 2, t))
    k.e("v_xor_b32 v%d, v%d, v%d" % (t + 2, t + 2, t + 1))
    k.e("v_lshlrev_b32 v%d, 4, v%d" % (t + 2, t + 2))
    k.e("v_lshl_add_u32 v%d, v%d, 13, v%d" % (V_DWQ, t, t + 2))
    k.e("s_lshl_b32 s%d, s%d, 17" % (S_T0, S_W))
    k.e("v_add_u32 v%d, s%d, v%d" % (V_DWQ, S_T0, V_DWQ))
    for i in range(1, 4):
        k.e("v_add_u32 v%d, %d, v%d" % (V_DWQ + i, i * (32768 - 1024), V_DWQ))
    k.e("v_lshl_add_u32 v%d, v%d, 8, v%d" % (V_DV, t, t + 2))
    k.e("v_xor_b32 v%d, v%d, v%d" % (t + 2, t, t + 1))
    k.e("v_lshlrev_b32 v%d, 4, v%d" % (t + 2, t + 2))
    k.e("v_lshl_add_u32 v%d, v%d, 8, v%d" % (V_DK, t, t + 2))
    for i in range(1, 4):
        k.e("v_xor_b32 v%d, %d, v%d" % (V_DK + i, i << 6, V_DK))
    k.e("v_lshrrev_b32 v%d, 3, v0" % t)
    k.e("v_and_b32 v%d, 7, v0" % (t + 1))
    k.e("v_lshrrev_b32 v%d, 1, v%d" % (t + 2, t))
    k.e("v_xor_b32 v%d, v%d, v%d" % (t + 2, t + 2, t + 1))
    k.e("v_lshlrev_b32 v%d, 4, v%d" % (t + 2, t + 2))
    k.e("v_lshl_add_u32 v%d, v%d, 10, v%d" % (V_DX, t, t + 2))
    k.e("v_xor_b32 v%d, 64, v%d" % (V_DX + 1, V_DX))
    k.e("v_add_u32 v%d, %d, v%d" % (V_DX + 2, 2 * 7168, V_DX))
    k.e("v_add_u32 v%d, %d, v%d" % (V_DX + 3, 3 * 7168, V_DX + 1))
    k.e("v_add_u32 v%d, %d, v%d" % (V_DX + 1, 7168, V_DX + 1))
    k.e("s_lshl_b32 s%d, s%d, 8" % (S_OWQ, S_HEAD))
    k.e("s_lshl_b32 s%d, s%d, 15" % (S_OX, S_B))
    k.e("s_lshr_b32 s%d, s%d, 2" % (S_T0, S_HEAD))
    k.e("s_lshl_b32 s%d, s%d, 3" % (S_T1, S_B))
    k.e("s_add_u32 s%d, s%d, s%d" % (S_T0, S_T0, S_T1))
    k.e("s_lshl_b32 s%d, s%d, 5" % (S_T1, S_B))
    k.e("s_add_u32 s%d, s%d, s%d" % (S_T1, S_T1, S_HEAD))
    k.e("s_cmp_eq_u32 s%d, 0" % S_BR)
    k.e("s_cselect_b32 s%d, s%d, s%d" % (S_OKV, S_T0, S_T1))
    k.e("s_lshl_b32 s%d, s%d, 13" % (S_OKV, S_OKV))


def p2_dma_addrs(k):
    t = V_T
    k.e("v_lshrrev_b32 v%d, 3, v0" % t)
    k.e("v_and_b32 v%d, 7, v0" % (t + 1))
    k.e("v_lshlrev_b32 v%d, 1, v%d" % (t + 2, t))
    k.e("v_and_b32 v%d, 4, v%d" % (t + 2, t + 2))
    k.e("v_xor_b32 v%d, v%d, v%d" % (t + 2, t + 2, t + 1))
    k.e("v_lshlrev_b32 v%d, 4, v%d" % (t + 2, t + 2))
    k.e("v_lshl_add_u32 v%d, v%d, 10, v%d" % (V_DWO, t, t + 2))
    k.e("s_lshl_b32 s%d, s%d, 16" % (S_T0, S_W))
    k.e("v_add_u32 v%d, s%d, v%d" % (V_DWO, S_T0, V_DWO))
    for i in range(1, 4):
        k.e("v_add_u32 v%d, %d, v%d" % (V_DWO + i, i * 7168, V_DWO))
    k.e("s_lshl_b32 s%d, s%d, 20" % (S_OWO, S_HG))
    k.e("s_lshl_b32 s%d, s%d, 7" % (S_T0, S_LO))
    k.e("s_add_u32 s%d, s%d, s%d" % (S_OWO, S_OWO, S_T0))


def slot_of(st, nslot):
    if nslot == 5:
        return st % 5
    if nslot == 4:
        return st % 4 if st < 8 else {8: 4, 9: 0, 10: 1, 11: 2, 12: 3, 13: 4}[st]
    return st % 3 if st < 8 else {8: 3, 9: 4, 10: 2, 11: 0, 12: 1, 13: 3}[st]


def dma_stage(k, st, nslot, pol=""):
    base = slot_of(st, nslot) * SLOT
    tag = "st%d" % st
    ops = []

    def grp(m_sreg, m_add, sr, voffs, soff, adv, wrap=0):
        def first():
            k.e("s_add_u32 m0, s%d, %d" % (m_sreg, base + m_add))
            k.e("s_nop 0")
            k.vmem("buffer_load_dwordx4 v%d, %s, s%d offen%s lds" % (voffs[0], srd(sr), soff, pol), tag)
        ops.append(first)
        for i in range(1, 4):
            def nxt(i=i):
                k.vmem("buffer_load_dwordx4 v%d, %s, s%d offen offset:%d%s lds" % (voffs[i], srd(sr), soff, i * 1024, pol), tag)
                if i == 3 and adv:
                    k.e("s_add_u32 s%d, s%d, %d" % (soff, soff, adv))
                    if wrap:
                        k.e("s_bitset0_b32 s%d, %d" % (soff, wrap))
            ops.append(nxt)

    if st < 8:
        grp(S_MW, 0, SRD_WQ, [V_DWQ + i for i in range(4)], S_OWQ, 64 * 8192, 22)
        grp(S_MX, 0, SRD_X, [V_DX + i for i in range(4)], S_OX, 128, 10)
    elif st == 8:
        grp(S_M8, 0, SRD_K, [V_DK + i for i in range(4)], S_OKV, 4096)
        grp(S_M8, 4096, SRD_K, [V_DK + i for i in range(4)], S_OKV, -4096 & 0xffffffff)
    elif st == 9:
        grp(S_M8, 0, SRD_V, [V_DV] * 4, S_OV, 4096)
        grp(S_M8, 4096, SRD_V, [V_DV] * 4, S_OV, 0)
    else:
        grp(S_M8, 0, SRD_WO, [V_DWO + i for i in range(4)], S_OWO, 4 * 8192)
        grp(S_M8, 4096, SRD_WO, [V_DWO + i for i in range(4)], S_OWO, 256 * 1024 - 4 * 8192)
    return ops


def tr_lane_terms(k, t):
    k.e("v_lshrrev_b32 v%d, 5, v0" % t)
    k.e("v_bfe_u32 v%d, v0, 2, 2" % (t + 1))
    k.e("v_bfe_u32 v%d, v0, 4, 1" % (t + 2))
    k.e("v_and_b32 v%d, 3, v0" % (t + 3))


def pi_term(k, dst, t):
    k.e("v_and_b32 v%d, 1, v0" % dst)
    k.e("v_lshlrev_b32 v%d, 4, v%d" % (dst, dst))
    k.e("v_and_b32 v%d, 2, v0" % (t + 4))
    k.e("v_lshl_add_u32 v%d, v%d, 2, v%d" % (dst, t + 4, dst))
    k.e("v_lshl_add_u32 v%d, v%d, 5, v%d" % (dst, t + 2, dst))


def p1_read_addrs(k):
    t = V_T
    tr_lane_terms(k, t)
    pi_term(k, V_RA, t)
    k.e("v_lshl_add_u32 v%d, v%d, 3, v%d" % (t + 4, t, t + 1))
    k.e("v_lshl_add_u32 v%d, v%d, 8, v%d" % (V_RA, t + 4, V_RA))
    k.e("v_lshl_add_u32 v%d, v%d, 6, v%d" % (V_RA, t + 1, V_RA))
    for dt in range(1, 4):
        k.e("v_xor_b32 v%d, %d, v%d" % (V_RA + dt, dt << 6, V_RA))
    k.e("v_and_b32 v%d, 31, v0" % (t + 4))
    k.e("v_bfe_u32 v%d, v0, 1, 3" % (t + 5))
    k.e("v_xor_b32 v%d, v%d, v%d" % (t + 5, t + 5, t))
    k.e("v_lshlrev_b32 v%d, 4, v%d" % (t + 5, t + 5))
    k.e("v_lshl_add_u32 v%d, v%d, 7, v%d" % (V_RB, t + 4, t + 5))
    k.e("v_add_u32 v%d, s%d, v%d" % (V_RB, S_MX, V_RB))
    for s in range(1, 4):
        k.e("v_xor_b32 v%d, %d, v%d" % (V_RB + s, s << 5, V_RB))


def mfma(k, d, a, b, first, aa=False, ba=False):
    k.e("v_mfma_f32_32x32x16_bf16 %s, %s, %s, %s" % (vr(d, 16), vr(a, 4, aa), vr(b, 4, ba), "0" if first else vr(d, 16)))


def p1_reads(k, g, nslot):
    st, s = g // 4, g % 4
    fa, fb = V_FA + 16 * (g & 1), V_FB + 4 * (g & 1)
    ops = [lambda: k.ds("ds_read_b128 %s, v%d" % (vr(fb, 4), V_RB + s), "b%d" % g)]
    for dt in range(4):
        for e in range(2):
            ops.append(lambda dt=dt, e=e: k.ds("ds_read_b64_tr_b16 %s, v%d offset:%d" % (vr(fa + 4 * dt + 2 * e, 2), V_RA + dt, s * 4096 + e * 1024), "a%d_%d" % (g, dt)))
    return ops


def adv_read_addrs(k, regs, st_from, st_to, nslot):
    d = (slot_of(st_to, nslot) - slot_of(st_from, nslot)) * SLOT
    return [lambda r=r: k.e("v_add_u32 v%d, 0x%x, v%d" % (r, d & 0xffffffff, r)) for r in regs]


def phase1(k, nslot, last_stage, pol=""):
    p1_dma_addrs(k)
    build_srds(k, ["WQ", "X", "K", "V", "WS"] + (["WO", "OUT", "DBG"] if last_stage >= 10 else []))
    for st in range(nslot):
        for op in dma_stage(k, st, nslot, pol):
            op()
    p1_read_addrs(k)
    if last_stage >= 10:
        p2_dma_addrs(k)
    k.e("v_lshlrev_b32 v%d, 4, v0" % V_L16)
    k.wait(vm=("st0",))
    k.e("s_barrier")
    k.stamp()
    for op in p1_reads(k, 0, nslot):
        op()
    for g in range(32):
        st, s = g // 4, g % 4
        fa, fb = V_FA + 16 * (g & 1), V_FB + 4 * (g & 1)
        pre, fill = [], []
        if s == 3:
            k.wait(vm=("st%d" % (st + 1),), lg0=True)
            k.e("s_barrier")
            k.stamp()
            if st < 7:
                pre += adv_read_addrs(k, list(range(V_RB, V_RB + 4)) + list(range(V_RA, V_RA + 4)), st, st + 1, nslot)
            if st + nslot <= last_stage:
                fill += dma_stage(k, st + nslot, nslot, pol)
        rd = p1_reads(k, g + 1, nslot) if g < 31 else []
        if s == 3 and st < 7:
            seq = [pre[0], rd[0], pre[4], rd[1], rd[2], pre[5], rd[3], rd[4], pre[6], rd[5], rd[6], pre[7], rd[7], rd[8]] + pre[1:4]
            split = [5, 3, 3, 6]
        else:
            seq = rd
            split = [4, 3, 2, 0]
        pos = 0
        for dt in range(4):
            k.wait(lg=("b%d" % g, "a%d_%d" % (g, dt)))
            mfma(k, V_ACC + 16 * dt, fa + 4 * dt, fb, g == 0)
            for op in seq[pos:pos + split[dt]]:
                op()
            pos += split[dt]
            for op in fill[2 * dt:2 * dt + 2]:
                op()


def attention(k, nslot, last_stage, pol="", opol=""):
    t = V_T
    kb, vb = (8 % nslot) * SLOT, (9 % nslot) * SLOT
    k.e("v_lshrrev_b32 v%d, 5, v0" % t)
    k.e("v_and_b32 v%d, 15, v0" % (t + 1))
    k.e("v_xor_b32 v%d, v%d, v%d" % (t + 1, t + 1, t))
    k.e("v_lshlrev_b32 v%d, 4, v%d" % (t + 1, t + 1))
    k.e("v_and_b32 v%d, 31, v0" % (t + 2))
    k.e("v_lshl_add_u32 v%d, v%d, 8, v%d" % (t + 1, t + 2, t + 1))
    k.e("s_add_u32 s%d, s%d, %d" % (S_T0, S_M8, kb))
    k.e("v_add_u32 v%d, s%d, v%d" % (t + 1, S_T0, t + 1))
    k.wait(vm=("st8",))
    for i in range(8):
        if i:
            k.e("v_xor_b32 v%d, %d, v%d" % (t + 2, i << 5, t + 1))
        k.ds("ds_read_b128 %s, v%d" % (vr(V_KF + 4 * i, 4), t + 2 if i else t + 1), "k%d" % i)
    tr_lane_terms(k, t)
    k.e("v_lshlrev_b32 v%d, 3, v%d" % (V_RA, t + 3))
    k.e("v_lshl_add_u32 v%d, v%d, 5, v%d" % (V_RA, t + 2, V_RA))
    k.e("v_lshl_add_u32 v%d, v%d, 2, v%d" % (t + 4, t, t + 1))
    k.e("v_lshl_add_u32 v%d, v%d, 8, v%d" % (V_RA, t + 4, V_RA))
    k.e("v_lshl_add_u32 v%d, v%d, 6, v%d" % (V_RA, t + 1, V_RA))
    k.e("s_add_u32 s%d, s%d, %d" % (S_T0, S_M8, vb))
    k.e("v_add_u32 v%d, s%d, v%d" % (V_RA, S_T0, V_RA))
    for dt in range(1, 4):
        k.e("v_xor_b32 v%d, %d, v%d" % (V_RA + dt, dt << 6, V_RA))
    k.e("s_mov_b32 s%d, 0x3e0293ee" % S_C)
    for i in range(8):
        for j in range(4):
            k.e("v_cvt_pk_bf16_f32 v%d, v%d, v%d" % (V_QB + 4 * i + j, V_ACC + 8 * i + 2 * j, V_ACC + 8 * i + 2 * j + 1))
        if i >= 1:
            k.wait(lg=("k%d" % (i - 1),))
            mfma(k, V_S, V_KF + 4 * (i - 1), V_QB + 4 * (i - 1), i == 1)
    k.wait(lg=("k7",), vm=("st9",))
    k.e("s_nop 0")
    mfma(k, V_S, V_KF + 28, V_QB + 28, False)
    for dt in range(4):
        for u in range(2):
            for e in range(2):
                k.ds("ds_read_b64_tr_b16 %s, v%d offset:%d" % (vr(V_FA + 8 * dt + 4 * u + 2 * e, 2), V_RA + dt, (16 * u + 8 * e) * 256), "v%d" % dt)
    m, m2 = t, t + 1
    k.e("v_max3_f32 v%d, v%d, v%d, v%d" % (m, V_S, V_S + 1, V_S + 2))
    k.e("v_max3_f32 v%d, v%d, v%d, v%d" % (m2, V_S + 3, V_S + 4, V_S + 5))
    for i in range(6, 14, 4):
        k.e("v_max3_f32 v%d, v%d, v%d, v%d" % (m, m, V_S + i, V_S + i + 1))
        k.e("v_max3_f32 v%d, v%d, v%d, v%d" % (m2, m2, V_S + i + 2, V_S + i + 3))
    k.e("v_max3_f32 v%d, v%d, v%d, v%d" % (m, m, V_S + 14, V_S + 15))
    k.e("v_max_f32 v%d, v%d, v%d" % (m, m, m2))
    k.e("v_mov_b32 v%d, v%d" % (m2, m))
    k.e("s_nop 1")
    k.e("v_permlane32_swap_b32 v%d, v%d" % (m, m2))
    k.e("v_max_f32 v%d, v%d, v%d" % (m, m, m2))
    k.e("v_mul_f32 v%d, s%d, v%d" % (m, S_C, m))
    for i in range(16):
        k.e("v_fma_f32 v%d, v%d, s%d, -v%d" % (V_S + i, V_S + i, S_C, m))
    for i in range(16):
        k.e("v_exp_f32 v%d, v%d" % (V_S + i, V_S + i))
    k.e("v_add_f32 v%d, v%d, v%d" % (m, V_S, V_S + 1))
    k.e("v_add_f32 v%d, v%d, v%d" % (m2, V_S + 2, V_S + 3))
    for i in range(4, 16, 2):
        k.e("v_add_f32 v%d, v%d, v%d" % (m, m, V_S + i))
        k.e("v_add_f32 v%d, v%d, v%d" % (m2, m2, V_S + i + 1))
    k.e("v_add_f32 v%d, v%d, v%d" % (m, m, m2))
    k.e("v_mov_b32 v%d, v%d" % (m2, m))
    k.e("s_nop 1")
    k.e("v_permlane32_swap_b32 v%d, v%d" % (m, m2))
    k.e("v_add_f32 v%d, v%d, v%d" % (m, m, m2))
    k.e("v_rcp_f32 v%d, v%d" % (m, m))
    k.e("s_nop 0")
    for i in range(16):
        k.e("v_mul_f32 v%d, v%d, v%d" % (V_S + i, V_S + i, m))
    for j in range(8):
        k.e("v_cvt_pk_bf16_f32 v%d, v%d, v%d" % (V_PB + j, V_S + 2 * j, V_S + 2 * j + 1))
    k.e("s_lshl_b32 s%d, s%d, 4" % (S_T0, S_BR))
    k.e("s_add_u32 s%d, s%d, s%d" % (S_T0, S_T0, S_B))
    k.e("s_lshl_b32 s%d, s%d, 5" % (S_T0, S_T0))
    k.e("s_add_u32 s%d, s%d, s%d" % (S_T1, S_T0, S_HEAD))
    k.e("s_lshl_b32 s%d, s%d, 13" % (S_OO, S_T1))
    k.e("s_add_u32 s%d, s%d, 4096" % (S_T2, S_OO))
    for dt in range(4):
        k.wait(lg=("v%d" % dt,))
        mfma(k, V_ACC + 16 * dt, V_FA + 8 * dt, V_PB, True)
        mfma(k, V_ACC + 16 * dt, V_FA + 8 * dt + 4, V_PB + 4, False)
    k.e("s_nop 5")
    for i in range(8):
        if i == 6:
            k.e("s_nop 1")
        for j in range(4):
            k.e("v_cvt_pk_bf16_f32 v%d, v%d, v%d" % (V_QB + 4 * i + j, V_ACC + 8 * i + 2 * j, V_ACC + 8 * i + 2 * j + 1))
        k.vmem("buffer_store_dwordx4 %s, v%d, %s, s%d offen offset:%d%s" % (vr(V_QB + 4 * i, 4), V_L16, srd(SRD_WS), S_OO if i < 4 else S_T2, (i & 3) * 1024, opol), "ost")


def p2_read_addrs(k, first_stage, nslot):
    t = V_T
    tr_lane_terms(k, t)
    pi_term(k, V_RA, t)
    k.e("v_lshl_add_u32 v%d, v%d, 2, v%d" % (t + 4, t, t + 1))
    k.e("v_lshl_add_u32 v%d, v%d, 7, v%d" % (V_RA, t + 4, V_RA))
    k.e("v_lshrrev_b32 v%d, 1, v%d" % (t + 4, t + 1))
    k.e("v_lshl_add_u32 v%d, v%d, 6, v%d" % (V_RA, t + 4, V_RA))
    b = (first_stage % nslot) * SLOT
    if b:
        k.e("v_add_u32 v%d, 0x%x, v%d" % (V_RA, b, V_RA))
    k.e("v_xor_b32 v%d, 64, v%d" % (V_RA + 1, V_RA))


def o_loads(k, lo, hi, opol):
    for ks in range(lo, hi):
        k.vmem("buffer_load_dwordx4 %s, v%d, %s, s%d offen offset:%d%s" % (vr(4 * ks, 4, True), V_L16, srd(SRD_WS), S_OO, (ks & 3) * 1024, opol), "o%d" % ks)
        if ks & 3 == 3:
            k.e("s_add_u32 s%d, s%d, 4096" % (S_OO, S_OO))


def o_load_base(k):
    k.e("s_lshl_b32 s%d, s%d, 4" % (S_T0, S_BR))
    k.e("s_add_u32 s%d, s%d, s%d" % (S_T0, S_T0, S_B))
    k.e("s_lshl_b32 s%d, s%d, 2" % (S_T0, S_T0))
    k.e("s_add_u32 s%d, s%d, s%d" % (S_T0, S_T0, S_HG))
    k.e("s_lshl_b32 s%d, s%d, 16" % (S_OO, S_T0))


def phase2_compute(k, nslot, all_landed):
    NSET = 4

    def reads(ks):
        fa = V_FA + 8 * (ks % NSET)
        for nt in range(2):
            for e in range(2):
                k.ds("ds_read_b64_tr_b16 %s, v%d offset:%d" % (vr(fa + 4 * nt + 2 * e, 2), V_RA + nt, ((ks % 16) * 16 + 8 * e) * 128), "w%d" % ks)

    def enter(ks):
        if ks % 16 == 0:
            st = 10 + ks // 16
            if ks:
                for op in adv_read_addrs(k, [V_RA, V_RA + 1], st - 1, st, nslot):
                    op()
            if not all_landed:
                k.wait(vm=("st%d" % st,))
                k.e("s_barrier")
                k.stamp()
    for ks in range(NSET - 1):
        enter(ks)
        reads(ks)
    for ks in range(64):
        k.wait(vm=("o%d" % ks,), lg=("w%d" % ks,))
        fa = V_FA + 8 * (ks % NSET)
        mfma(k, V_ACC, fa, 4 * ks, ks == 0, ba=True)
        mfma(k, V_ACC + 16, fa + 4, 4 * ks, ks == 0, ba=True)
        n = ks + NSET - 1
        if n < 64:
            enter(n)
            reads(n)


def part_base(k, j_sreg, hg_sreg):
    k.e("s_lshl_b32 s%d, s%d, 2" % (S_T0, S_BR))
    k.e("s_add_u32 s%d, s%d, s%d" % (S_T0, S_T0, S_TG))
    k.e("s_lshl_b32 s%d, s%d, 3" % (S_T0, S_T0))
    k.e("s_add_u32 s%d, s%d, s%d" % (S_T0, S_T0, S_LO))
    k.e("s_lshl_b32 s%d, s%d, 2" % (S_T0, S_T0))
    k.e("s_add_u32 s%d, s%d, s%d" % (S_T0, S_T0, j_sreg))
    k.e("s_lshl_b32 s%d, s%d, 2" % (S_T0, S_T0))
    if hg_sreg is not None:
        k.e("s_add_u32 s%d, s%d, s%d" % (S_T0, S_T0, hg_sreg))
    k.e("s_lshl_b32 s%d, s%d, 13" % (S_T0, S_T0))
    k.e("s_add_u32 s%d, s%d, 0x%x" % (S_OP, S_T0, WS_P))


def part_store(k, opol):
    part_base(k, S_W, S_HG)
    k.e("s_add_u32 s%d, s%d, 4096" % (S_T2, S_OP))
    k.e("s_nop 7")
    for i in range(8):
        k.vmem("buffer_store_dwordx4 %s, v%d, %s, s%d offen offset:%d%s" % (vr(V_ACC + 4 * i, 4), V_L16, srd(SRD_WS), S_OP if i < 4 else S_T2, (i & 3) * 1024, opol), "pst")


def reduce_store(k, opol):
    part_base(k, S_HG, None)
    k.e("s_lshl_b32 s%d, s%d, 11" % (S_T0, S_W))
    k.e("s_add_u32 s%d, s%d, s%d" % (S_OP, S_OP, S_T0))
    for q in range(4):
        for i in range(2):
            k.vmem("buffer_load_dwordx4 %s, v%d, %s, s%d offen offset:%d%s" % (vr(V_KF + 8 * q + 4 * i, 4), V_L16, srd(SRD_WS), S_OP, i * 1024, opol), "p%d" % q)
        if q < 3:
            k.e("s_add_u32 s%d, s%d, 8192" % (S_OP, S_OP))
    t = V_T
    k.e("v_and_b32 v%d, 31, v0" % t)
    k.e("v_lshrrev_b32 v%d, 5, v0" % (t + 1))
    k.e("v_lshlrev_b32 v%d, 11, v%d" % (t, t))
    k.e("v_lshl_add_u32 v%d, v%d, 4, v%d" % (t, t + 1, t))
    k.e("s_lshl_b32 s%d, s%d, 2" % (S_T0, S_TG))
    k.e("s_add_u32 s%d, s%d, s%d" % (S_T0, S_T0, S_HG))
    k.e("s_lshl_b32 s%d, s%d, 16" % (S_T0, S_T0))
    k.e("s_lshl_b32 s%d, s%d, 10" % (S_T1, S_BR))
    k.e("s_add_u32 s%d, s%d, s%d" % (S_T0, S_T0, S_T1))
    k.e("s_lshl_b32 s%d, s%d, 7" % (S_T1, S_LO))
    k.e("s_add_u32 s%d, s%d, s%d" % (S_T0, S_T0, S_T1))
    k.e("s_lshl_b32 s%d, s%d, 5" % (S_T1, S_W))
    k.e("s_add_u32 s%d, s%d, s%d" % (S_T0, S_T0, S_T1))
    k.wait(vm=("p1",))
    for i in range(8):
        k.e("v_add_f32 v%d, v%d, v%d" % (V_KF + i, V_KF + i, V_KF + 8 + i))
    k.wait(vm=("p3",))
    for i in range(8):
        k.e("v_add_f32 v%d, v%d, v%d" % (V_KF + 16 + i, V_KF + 16 + i, V_KF + 24 + i))
    for i in range(8):
        k.e("v_add_f32 v%d, v%d, v%d" % (V_KF + i, V_KF + i, V_KF + 16 + i))
    for j in range(4):
        k.e("v_cvt_pk_bf16_f32 v%d, v%d, v%d" % (V_PB + j, V_KF + 2 * j, V_KF + 2 * j + 1))
    k.vmem("buffer_store_dwordx4 %s, v%d, %s, s%d offen" % (vr(V_PB, 4), t, srd(SRD_OUT), S_T0), "out")


def kernel_text(name, k, nv=256, acc=256):
    return ("\n.globl %s\n.p2align 8\n.type %s,@function\n%s:\n" % (name, name, name)) + "\n".join(k.l) + "\n", \
        (".p2align 6\n.amdhsa_kernel %s\n  .amdhsa_next_free_vgpr %d\n  .amdhsa_next_free_sgpr 102\n  .amdhsa_accum_offset %d\n"
         "  .amdhsa_group_segment_fixed_size 0\n  .amdhsa_kernarg_size 104\n  .amdhsa_user_sgpr_count 2\n"
         "  .amdhsa_user_sgpr_kernarg_segment_ptr 1\n  .amdhsa_system_sgpr_workgroup_id_x 1\n.end_amdhsa_kernel\n" % (name, nv, acc))


def finish(launches, kernels):
    s = HDR
    for l in launches:
        s += l + "\n"
    s += '.amdgcn_target "amdgcn-amd-amdhsa--gfx950"\n.text\n'
    s += "".join(t for t, _ in kernels)
    s += '.section .rodata,"a"\n'
    s += "".join(d for _, d in kernels)
    return s


def gen_three(diag=False, extra_empty=0):
    ks = []
    k = K(diag)
    prologue(k, "L1_end")
    phase1(k, 5, 9)
    k.stamp()
    attention(k, 5, 9)
    k.stamp()
    k.dump_stamps(0)
    k.lab("L1_end")
    k.e("s_endpgm")
    ks.append(kernel_text("p1_kernel", k))
    k = K(diag)
    prologue(k, "L2_end")
    p2_dma_addrs(k)
    k.e("v_lshlrev_b32 v%d, 4, v0" % V_L16)
    o_load_base(k)
    build_srds(k, ["WO", "WS"])
    for q in range(4):
        for op in dma_stage(k, 10 + q, 5):
            op()
        o_loads(k, 16 * q, 16 * q + 16 if q < 3 else 56, "")
    p2_read_addrs(k, 10, 5)
    k.wait(vm=("st10", "go"))
    o_loads(k, 56, 64, "")
    k.stamp()
    phase2_compute(k, 5, False)
    k.stamp()
    part_store(k, "")
    k.dump_stamps(1)
    k.lab("L2_end")
    k.e("s_endpgm")
    ks.append(kernel_text("p2_kernel", k, 512, 256))
    k = K(diag)
    prologue(k, "L3_end")
    k.e("v_lshlrev_b32 v%d, 4, v0" % V_L16)
    build_srds(k, ["WS", "OUT"])
    reduce_store(k, "")
    k.stamp()
    k.dump_stamps(2)
    k.lab("L3_end")
    k.e("s_endpgm")
    ks.append(kernel_text("p3_kernel", k))
    L = ["; @launch kernel=p1_kernel grid=(256,1,1) block=(256,1,1) lds=163840",
         "; @launch kernel=p2_kernel grid=(256,1,1) block=(256,1,1) lds=163840",
         "; @launch kernel=p3_kernel grid=(256,1,1) block=(256,1,1) lds=0"]
    if extra_empty:
        k = K()
        k.e("s_endpgm")
        ks.append(kernel_text("nop_kernel", k, 8, 8))
        L += ["; @launch kernel=nop_kernel grid=(256,1,1) block=(256,1,1) lds=0"] * extra_empty
    return finish(L, ks)


WS_F = 16 << 20
V_KA, V_VA, V_WA = 18, 19, 240
V_FL1, V_FL2, V_PL1, V_PL2, V_GO, V_ONE, V_OUT = 244, 245, 246, 247, 248, 249, 250
V_GOA, V_GOD = 251, 252
V_ANN, V_GOP = 253, 254
S_ANN4, S_K11, S_FAST, S_CL, S_OB = 5, 6, 7, 4, 6
V_AC2, V_PL = 176, 112
S_NB, S_KQ, S_OWO2, S_GO, S_SPIN, S_OI = 85, 3, 78, 30, 31, 79


def one_addrs(k, ns):
    t = V_T
    k.e("s_and_b32 s%d, s%d, 3" % (S_NB, S_LO))
    k.e("s_lshr_b32 s%d, s%d, 2" % (S_KQ, S_HEAD))
    k.e("v_lshrrev_b32 v%d, 4, v0" % t)
    k.e("v_and_b32 v%d, 15, v0" % (t + 1))
    k.e("v_lshlrev_b32 v%d, 2, v%d" % (t + 2, t))
    k.e("v_xor_b32 v%d, v%d, v%d" % (t + 2, t + 2, t + 1))
    k.e("v_lshlrev_b32 v%d, 4, v%d" % (t + 2, t + 2))
    k.e("v_lshl_add_u32 v%d, v%d, 10, v%d" % (V_DWO, t, t + 2))
    k.e("s_lshl_b32 s%d, s%d, 15" % (S_T0, S_W))
    k.e("v_add_u32 v%d, s%d, v%d" % (V_DWO, S_T0, V_DWO))
    for i in range(1, 4):
        k.e("v_add_u32 v%d, %d, v%d" % (V_DWO + i, i * 3072, V_DWO))
    k.e("v_lshrrev_b32 v%d, 5, v0" % t)
    k.e("v_and_b32 v%d, 15, v0" % (t + 1))
    k.e("v_xor_b32 v%d, v%d, v%d" % (t + 1, t + 1, t))
    k.e("v_lshlrev_b32 v%d, 4, v%d" % (t + 1, t + 1))
    k.e("v_and_b32 v%d, 31, v0" % (t + 2))
    k.e("v_lshl_add_u32 v%d, v%d, 8, v%d" % (V_KA, t + 2, t + 1))
    k.e("s_add_u32 s%d, s%d, %d" % (S_T0, S_M8, slot_of(8, ns) * SLOT))
    k.e("v_add_u32 v%d, s%d, v%d" % (V_KA, S_T0, V_KA))
    k.e("v_lshlrev_b32 v%d, 11, v%d" % (V_OUT, t + 2))
    k.e("v_lshl_add_u32 v%d, v%d, 4, v%d" % (V_OUT, t, V_OUT))
    tr_lane_terms(k, t)
    k.e("v_lshl_add_u32 v%d, v%d, 2, v%d" % (t + 5, t, t + 1))
    k.e("v_lshlrev_b32 v%d, 8, v%d" % (t + 5, t + 5))
    k.e("v_lshl_add_u32 v%d, v%d, 6, v%d" % (t + 5, t + 1, t + 5))
    k.e("v_lshl_add_u32 v%d, v%d, 3, v%d" % (V_VA, t + 3, t + 5))
    k.e("v_lshl_add_u32 v%d, v%d, 5, v%d" % (V_VA, t + 2, V_VA))
    k.e("s_add_u32 s%d, s%d, %d" % (S_T0, S_M8, slot_of(9, ns) * SLOT))
    k.e("v_add_u32 v%d, s%d, v%d" % (V_VA, S_T0, V_VA))
    pi_term(k, V_WA, t)
    k.e("v_add_u32 v%d, v%d, v%d" % (V_WA, V_WA, t + 5))
    for nt in range(1, 4):
        k.e("v_xor_b32 v%d, %d, v%d" % (V_WA + nt, nt << 6, V_WA))
    k.e("s_and_b32 s%d, s2, 0xe7" % S_T0)
    k.e("s_lshl_b32 s%d, s%d, 8" % (S_T0, S_T0))
    k.e("s_lshl_b32 s%d, s%d, 4" % (S_T1, S_W))
    k.e("s_add_u32 s%d, s%d, s%d" % (S_T0, S_T0, S_T1))
    k.e("s_lshl_b32 s%d, s%d, 2" % (S_T2, S_NB))
    k.e("s_add_u32 s%d, s%d, s%d" % (S_T0, S_T0, S_T2))
    k.e("v_and_b32 v%d, 3, v0" % t)
    k.e("v_lshlrev_b32 v%d, 11, v%d" % (V_FL1, t))
    k.e("v_add_u32 v%d, s%d, v%d" % (V_FL1, S_T0, V_FL1))
    k.e("s_lshl_b32 s%d, s2, 8" % S_T0)
    k.e("s_add_u32 s%d, s%d, s%d" % (S_T1, S_T0, S_T1))
    k.e("v_lshlrev_b32 v%d, 2, v%d" % (V_PL1, t))
    k.e("v_add_u32 v%d, s%d, v%d" % (V_PL1, S_T1, V_PL1))
    k.e("v_and_b32 v%d, 7, v0" % t)
    k.e("v_lshlrev_b32 v%d, 2, v%d" % (V_PL2, t))
    k.e("s_add_u32 s%d, s%d, 128" % (S_T1, S_T0))
    k.e("v_add_u32 v%d, s%d, v%d" % (V_PL2, S_T1, V_PL2))
    k.e("s_and_b32 s%d, s2, 0xdc" % S_T0)
    k.e("s_or_b32 s%d, s%d, s%d" % (S_T0, S_T0, S_W))
    k.e("s_lshl_b32 s%d, s%d, 8" % (S_T0, S_T0))
    k.e("s_lshl_b32 s%d, s%d, 2" % (S_T1, S_KQ))
    k.e("s_add_u32 s%d, s%d, s%d" % (S_T0, S_T0, S_T1))
    k.e("s_add_u32 s%d, s%d, 128" % (S_T0, S_T0))
    k.e("v_and_b32 v%d, 1, v0" % t)
    k.e("v_lshlrev_b32 v%d, 13, v%d" % (V_FL2, t))
    k.e("v_add_u32 v%d, s%d, v%d" % (V_FL2, S_T0, V_FL2))
    k.e("v_mov_b32 v%d, 1" % V_ONE)
    k.e("s_lshl_b32 s%d, s%d, 1" % (S_GO, S_TG))
    k.e("s_add_u32 s%d, s%d, s%d" % (S_GO, S_GO, S_BR))
    k.e("s_lshl_b32 s%d, s%d, 5" % (S_GO, S_GO))
    k.e("v_and_b32 v%d, 7, v0" % t)
    k.e("v_lshl_add_u32 v%d, v%d, 2, s%d" % (V_GOP, t, S_GO))
    k.e("s_lshl2_add_u32 s%d, s%d, s%d" % (S_GO, S_KQ, S_GO))
    k.e("v_mov_b32 v%d, s%d" % (V_GOA, S_GO))


S_J = 14


def head_order(k, jrot):
    k.e("s_cmp_eq_u32 s%d, 3" % S_TG)
    k.e("s_cselect_b32 s%d, 0, s%d" % (S_T0, S_TG))
    if not jrot:
        k.e("s_mov_b32 s%d, 0" % S_T0)
    for j in range(1, 4):
        k.e("s_add_u32 s%d, s%d, %d" % (S_T1, S_T0, j))
        k.e("s_cmp_gt_u32 s%d, 3" % S_T1)
        k.e("s_cselect_b32 s%d, 3, 0" % S_J)
        k.e("s_sub_u32 s%d, s%d, s%d" % (S_T1, S_T1, S_J))
        k.e("s_add_u32 s%d, s%d, s%d" % (S_T1, S_T1, S_NB))
        k.e("s_and_b32 s%d, s%d, 3" % (S_J + j, S_T1))


def wo_stage(k, st, pol, nslot):
    j = st - 10
    base = slot_of(st, nslot) * SLOT
    tag = "st%d" % st
    ops = []
    for g in range(2):
        for i in range(4):
            def op(g=g, i=i):
                if i == 0:
                    if g == 0:
                        k.e("s_lshl2_add_u32 s%d, s%d, s%d" % (S_T3, S_KQ, S_J + j if j else S_NB))
                        k.e("s_lshl_b32 s%d, s%d, 9" % (S_T3, S_T3))
                        k.e("s_add_u32 s%d, s%d, s%d" % (S_T3, S_T3, S_NB))
                        k.e("s_lshl_b32 s%d, s%d, 8" % (S_OWO2, S_T3))
                    else:
                        k.e("s_add_u32 s%d, s%d, 16384" % (S_OWO2, S_OWO2))
                    k.e("s_add_u32 m0, s%d, %d" % (S_M8, base + 4096 * g))
                    k.e("s_nop 0")
                k.vmem("buffer_load_dwordx4 v%d, %s, s%d offen offset:%d%s lds" % (V_DWO + i, srd(SRD_WO), S_OWO2, i * 1024, pol), tag)
            ops.append(op)
    return ops


def spin(k, name, addr, sr, soff, expect, cmp="ne"):
    k.e("s_mov_b32 s%d, 0x40000" % S_SPIN)
    k.lab(name)
    k.e("buffer_load_dword v%d, v%d, %s, %s offen sc1" % (V_GO, addr, srd(sr), soff))
    k.e("s_sub_u32 s%d, s%d, 1" % (S_SPIN, S_SPIN))
    k.e("s_cbranch_scc1 %s_x" % name)
    k.wait(vm0=True)
    k.e("v_cmp_%s_u32 vcc, %s, v%d" % (cmp, expect, V_GO))
    k.e("s_cbranch_vccnz %s" % name)
    k.lab(name + "_x")


SCHED = {
    5: {"i": "0a 0b 1a 1b 2a 2b 3a 3b", "p": "4a 4b", 0: "5a 5b", 1: "6a 6b", 2: "7a 7b", 3: "8a 8b", 4: "9a 9b", 5: "10a 10b", 6: "11a 11b", 7: "12a 12b"},
    30: {"i": "0a 0b 1a 1b 2a 2b", "p": "8a", 0: "3a 3b 8b", 1: "4a 4b", 2: "5a 5b", 3: "6a 6b", 4: "7a 7b 9a", 5: "9b 10a 10b", 6: "11a 11b", 7: "12a 12b"},
    31: {"i": "0a 0b 1a 1b", "p": "2a 2b 8a", 0: "3a 3b 8b", 1: "4a 4b 9a", 2: "5a 5b 9b", 3: "6a 6b", 4: "7a 7b", 5: "10a 10b", 6: "11a 11b", 7: "12a 12b"},
    32: {"i": "0a 0b 1a 1b 8a 2a 2b 8b", "p": "9a 9b", 0: "3a 3b", 1: "4a 4b", 2: "5a 5b", 3: "6a 6b", 4: "7a 7b", 5: "10a 10b", 6: "11a 11b", 7: "12a 12b"},
    34: {"i": "0a 0b 1a 1b 2a 2b", "p": "8a 8b", 0: "3a 3b", 1: "4a 4b 9a", 2: "5a 5b 9b", 3: "6a 6b", 4: "7a 7b", 5: "10a 10b", 6: "11a 11b", 7: "12a 12b"},
    40: {"i": "0a 0b 1a 1b 2a 2b", "p": "", 0: "3a 3b", 1: "4a 4b", 2: "5a 5b", 3: "6a 6b", 4: "7a 7b", 5: "", 6: "", 7: ""},
    41: {"i": "0a 0b 1a 1b 2a 2b 3a 3b", "p": "", 0: "4a 4b", 1: "5a 5b", 2: "6a 6b", 3: "7a 7b", 4: "", 5: "", 6: "", 7: ""},
    42: {"i": "0a 0b 1a 1b 2a 2b", "p": "3a 3b", 0: "4a 4b", 1: "5a 5b", 2: "6a 6b", 3: "7a 7b", 4: "", 5: "", 6: "", 7: ""},
    33: {"i": "0a 0b 1a 1b 2a 2b", "p": "8a 8b", 0: "3a 3b 9a", 1: "4a 4b 9b", 2: "5a 5b", 3: "6a 6b", 4: "7a 7b", 5: "10a 10b", 6: "11a 11b", 7: "12a 12b"},
}


def gen_one(diag=0, sched=40, nt=0, pad=0, fast=1, rot=0, fk=4, pk=6, oup=3, o2=14, sent=0, ann=0, cw="p", hk=0, hv=2, nm=24, split2=1, jrot=1, bk=1, hs="00002222"):
    k = K(diag)
    pol = " nt" if nt else ""
    t = V_T
    NS = {5: 5, 41: 4, 42: 4}.get(sched, 3)
    made = {}

    def stage(st):
        return dma_stage(k, st, NS, pol if st >= 8 else "") if st < 10 else wo_stage(k, st, "", NS)

    def window(w):
        ops = []
        for g in SCHED[sched][w].split():
            st = int(g[:-1])
            if st not in made:
                made[st] = stage(st)
            ops += made[st][:4] if g[-1] == "a" else made[st][4:]
        return ops
    prologue(k, "L_end")
    if pad:
        k.e("s_memrealtime s[98:99]")
    p1_dma_addrs(k)
    k.e("s_mov_b32 s%d, s%d" % (S_OV, S_OKV))
    if rot:
        if rot == 1:
            k.e("s_lshl1_add_u32 s%d, s%d, s%d" % (S_T0, S_TG, S_LO))
            k.e("s_and_b32 s%d, s%d, 7" % (S_T0, S_T0))
        elif rot == 2:
            k.e("s_lshl_b32 s%d, s%d, 1" % (S_T0, S_TG))
        elif rot == 3:
            k.e("s_lshl_b32 s%d, s%d, 2" % (S_T0, S_TG))
            k.e("s_and_b32 s%d, s%d, 4" % (S_T0, S_T0))
        k.e("s_lshl_b32 s%d, s%d, 19" % (S_T1, S_T0))
        k.e("s_add_u32 s%d, s%d, s%d" % (S_OWQ, S_OWQ, S_T1))
        k.e("s_lshl_b32 s%d, s%d, 7" % (S_T1, S_T0))
        k.e("s_add_u32 s%d, s%d, s%d" % (S_OX, S_OX, S_T1))
    p1_read_addrs(k)
    one_addrs(k, NS)
    if slot_of(10, NS):
        for x in range(4):
            k.e("v_add_u32 v%d, 0x%x, v%d" % (V_WA + x, slot_of(10, NS) * SLOT, V_WA + x))
    k.e("v_lshlrev_b32 v%d, 4, v0" % V_L16)
    k.e("v_lshlrev_b32 v1, 2, v0")
    k.e("v_mov_b32 v2, 0")
    k.e("s_lshl_b32 s%d, s2, 8" % S_T2)
    k.e("s_add_u32 s%d, s%d, 0x%x" % (S_T2, S_T2, WS_F))
    hlp = sched >= 40
    if hlp:
        k.e("s_cmp_eq_u32 s%d, 1" % S_T3)
        k.e("s_cbranch_scc1 L_helper")
    build_srds(k, ["WQ", "X"])
    ini = window("i")
    for op in ini[:8]:
        op()
    sv, k.diag = k.diag, 0
    n0 = len(k.l)
    build_srds(k, ["WS", "OUT", "DBG"] if hlp else ["WS", "K", "V", "WO", "OUT", "DBG"])
    del k.l[n0]
    k.diag = sv
    if not hlp:
        k.vmem("buffer_store_dword v2, v1, %s, s%d offen sc1" % (srd(SRD_WS), S_T2), "zero")
    for op in ini[8:]:
        op()
    k.e("s_mov_b32 s%d, 0x%x" % (S_OI, WS_F))
    k.e("s_getreg_b32 s%d, hwreg(HW_REG_XCC_ID, 0, 3)" % S_ANN4)
    k.e("s_lshl_b32 s%d, s%d, 2" % (S_ANN4, S_ANN4))
    k.e("s_lshl_b32 s%d, 1, s%d" % (S_ANN4, S_ANN4))
    k.e("v_mov_b32 v%d, s%d" % (V_ANN, S_ANN4))
    k.e("s_lshl_b32 s%d, s%d, 2" % (S_ANN4, S_ANN4))
    k.e("s_mov_b32 s%d, 0x11111111" % S_K11)
    head_order(k, jrot)
    k.e("s_lshl2_add_u32 s%d, s%d, s%d" % (S_T0, S_BR, S_TG))
    k.e("s_lshl2_add_u32 s%d, s%d, s%d" % (S_T0, S_T0, S_NB))
    k.e("s_lshl2_add_u32 s%d, s%d, s%d" % (S_T1, S_T0, S_W))
    k.e("s_lshl_b32 s%d, s%d, 6" % (S_T1, S_T1))
    k.e("s_add_u32 s%d, s%d, s%d" % (S_T1, S_T1, S_KQ))
    k.e("s_lshl_b32 s%d, s%d, 10" % (S_T1, S_T1))
    k.e("s_add_u32 s%d, s%d, 0x%x" % (S_OP, S_T1, WS_P))
    k.e("s_mov_b32 s%d, s%d" % (S_CL, S_OP))
    for x in range(4):
        k.e("v_mov_b32 v%d, -1" % (V_S + x))

    def clr():
        k.vmem("buffer_store_dwordx4 %s, v%d, %s, s%d offen sc1" % (vr(V_S, 4), V_L16, srd(SRD_WS), S_CL), "zero")
        k.e("s_add_u32 s%d, s%d, 8192" % (S_CL, S_CL))
    clears = [clr] * 8 if sent else []
    if cw == "i":
        for op in clears:
            op()
    k.wait(vm=("st0",))
    k.e("s_barrier")
    k.stamp()
    for op in p1_reads(k, 0, NS):
        op()
    pend = window("p") + (clears if cw == "p" else [])
    gaps = 12
    for g in range(32):
        st, s = g // 4, g % 4
        fa, fb = V_FA + 16 * (g & 1), V_FB + 4 * (g & 1)
        pre = []
        if s == 3:
            assert not pend
            k.wait(vm=("st%d" % (st + 1), "zero" if st == ann else ""), lg0=True)
            k.e("s_barrier")
            if st in (1, 4, 7):
                k.stamp()
            if st == ann and not hlp:
                k.e("s_cmp_lg_u32 s%d, 0" % S_W)
                k.e("s_cbranch_scc1 L_noann")
                k.e("s_mov_b64 exec, 1")
                k.e("buffer_atomic_add v%d, v%d, %s, 0 offen sc1" % (V_ANN, V_GOA, srd(SRD_DBG)))
                k.e("s_mov_b64 exec, -1")
                k.lab("L_noann")
            if st == 6:
                k.vmem("buffer_load_dword v%d, v%d, %s, 0 offen sc1" % (V_GOD, V_GOP, srd(SRD_DBG)), "go")
                k.vmem("buffer_load_dword v%d, v%d, %s, s%d offen sc1" % (V_GO, V_PL1, srd(SRD_WS), S_OI), "warm")
            if st < 7:
                pre = adv_read_addrs(k, list(range(V_RB, V_RB + 4)) + list(range(V_RA, V_RA + 4)), st, st + 1, NS)
            pend = window(st) + (clears if cw == st else [])
            gaps = 16
        if g < 31:
            rd = p1_reads(k, g + 1, NS)
        else:
            rd = []
            for i in range(8):
                def kr(i=i):
                    if i:
                        k.e("v_xor_b32 v%d, %d, v%d" % (t + (i & 1), i << 5, V_KA))
                    k.ds("ds_read_b128 %s, v%d" % (vr(V_KF + 4 * i, 4), t + (i & 1) if i else V_KA), "k%d" % i)
                rd.append(kr)
        if s == 3 and st < 7:
            seq = [pre[0], rd[0], pre[4], rd[1], rd[2], pre[5], rd[3], rd[4], pre[6], rd[5], rd[6], pre[7], rd[7], rd[8]] + pre[1:4]
            split = [5, 3, 3, 6]
        elif g == 31:
            seq, split = rd, [2, 2, 2, 2]
        else:
            seq = rd
            split = [4, 3, 2, 0]
        pos = 0
        for dt in range(4):
            k.wait(lg=("b%d" % g, "a%d_%d" % (g, dt)))
            mfma(k, V_ACC + 16 * dt, fa + 4 * dt, fb, g == 0)
            for op in seq[pos:pos + split[dt]]:
                op()
            pos += split[dt]
            n = -(-len(pend) // gaps) if (g == 31 or len(pend) * 2 > gaps or gaps % 2 == 0) else 0
            for _ in range(n):
                pend.pop(0)()
            gaps -= 1
    k.e("s_mov_b32 s%d, 0x3e0293ee" % S_C)
    for dt in range(1, 4):
        k.e("v_xor_b32 v%d, %d, v%d" % (V_RA + dt, dt << 6, V_VA))
    for i in range(8):
        if i == 6:
            k.e("s_nop 1")
        for j in range(4):
            k.e("v_cvt_pk_bf16_f32 v%d, v%d, v%d" % (V_QB + 4 * i + j, V_ACC + 8 * i + 2 * j, V_ACC + 8 * i + 2 * j + 1))
        if i >= 1:
            k.wait(lg=("k%d" % (i - 1),))
            mfma(k, V_S, V_KF + 4 * (i - 1), V_QB + 4 * (i - 1), i == 1)
        if pend:
            pend.pop(0)()
    k.wait(lg=("k7",), vm=("st9",))
    k.e("s_nop 0")
    mfma(k, V_S, V_KF + 28, V_QB + 28, False)
    def vreads():
        for dt in range(4):
            for u in range(2):
                for e in range(2):
                    k.ds("ds_read_b64_tr_b16 %s, v%d offset:%d" % (vr(V_FA + 8 * dt + 4 * u + 2 * e, 2), V_RA + dt if dt else V_VA, (16 * u + 8 * e) * 256), "v%d" % dt)
    if NS != 4 and bk != 2:
        if hlp and bk:
            k.e("s_barrier")
        vreads()
    else:
        k.e("s_nop 7")
        k.e("s_nop 3")
    if not hlp:
        pend += stage(13)
    m, m2 = t, t + 1

    def dm():
        if pend:
            pend.pop(0)()
    dm()
    k.e("v_max3_f32 v%d, v%d, v%d, v%d" % (m, V_S, V_S + 1, V_S + 2))
    k.e("v_max3_f32 v%d, v%d, v%d, v%d" % (m2, V_S + 3, V_S + 4, V_S + 5))
    for i in range(6, 14, 4):
        k.e("v_max3_f32 v%d, v%d, v%d, v%d" % (m, m, V_S + i, V_S + i + 1))
        k.e("v_max3_f32 v%d, v%d, v%d, v%d" % (m2, m2, V_S + i + 2, V_S + i + 3))
    k.e("v_max3_f32 v%d, v%d, v%d, v%d" % (m, m, V_S + 14, V_S + 15))
    k.e("v_max_f32 v%d, v%d, v%d" % (m, m, m2))
    k.e("v_mov_b32 v%d, v%d" % (m2, m))
    dm()
    k.e("s_nop 1")
    k.e("v_permlane32_swap_b32 v%d, v%d" % (m, m2))
    k.e("v_max_f32 v%d, v%d, v%d" % (m, m, m2))
    k.e("v_mul_f32 v%d, s%d, v%d" % (m, S_C, m))
    for i in range(16):
        k.e("v_fma_f32 v%d, v%d, s%d, -v%d" % (V_S + i, V_S + i, S_C, m))
    for i in range(16):
        k.e("v_exp_f32 v%d, v%d" % (V_S + i, V_S + i))
        if i & 1:
            dm()
    if NS == 4 or bk == 2:
        k.e("s_barrier")
        vreads()
    k.e("v_add_f32 v%d, v%d, v%d" % (m, V_S, V_S + 1))
    k.e("v_add_f32 v%d, v%d, v%d" % (m2, V_S + 2, V_S + 3))
    for i in range(4, 16, 2):
        k.e("v_add_f32 v%d, v%d, v%d" % (m, m, V_S + i))
        k.e("v_add_f32 v%d, v%d, v%d" % (m2, m2, V_S + i + 1))
    k.e("v_add_f32 v%d, v%d, v%d" % (m, m, m2))
    k.e("v_mov_b32 v%d, v%d" % (m2, m))
    while pend:
        dm()
    k.e("s_nop 1")
    k.e("v_permlane32_swap_b32 v%d, v%d" % (m, m2))
    k.e("v_add_f32 v%d, v%d, v%d" % (m, m, m2))
    k.e("v_rcp_f32 v%d, v%d" % (m, m))
    k.e("s_lshl_b32 s%d, s%d, 4" % (S_T0, S_BR))
    k.e("s_add_u32 s%d, s%d, s%d" % (S_T0, S_T0, S_B))
    k.e("s_lshl_b32 s%d, s%d, 5" % (S_T0, S_T0))
    k.e("s_add_u32 s%d, s%d, s%d" % (S_T1, S_T0, S_HEAD))
    k.e("s_lshl_b32 s%d, s%d, 13" % (S_OX, S_T1))
    k.e("s_add_u32 s%d, s%d, 4096" % (S_T2, S_OX))
    for i in range(16):
        k.e("v_mul_f32 v%d, v%d, v%d" % (V_S + i, V_S + i, m))
    for j in range(8):
        k.e("v_cvt_pk_bf16_f32 v%d, v%d, v%d" % (V_PB + j, V_S + 2 * j, V_S + 2 * j + 1))
    k.wait(vm=("st10", "go"))
    k.e("s_mov_b32 s%d, 0x40000" % S_SPIN)
    k.lab("L_go")
    k.e("v_mul_lo_u32 v%d, v%d, s%d" % (t, V_GOD, S_K11))
    k.e("v_lshrrev_b32 v%d, 28, v%d" % (t, t))
    k.e("v_cmp_gt_u32 vcc, 4, v%d" % t)
    k.e("s_cbranch_vccz L_go_x")
    k.e("buffer_load_dword v%d, v%d, %s, 0 offen sc1" % (V_GOD, V_GOP, srd(SRD_DBG)))
    k.e("s_sub_u32 s%d, s%d, 1" % (S_SPIN, S_SPIN))
    k.e("s_waitcnt vmcnt(0)")
    k.e("s_cbranch_scc0 L_go")
    k.lab("L_go_x")
    k.e("v_readlane_b32 s%d, v%d, s%d" % (S_FAST, V_GOD, S_KQ))
    k.e("s_barrier")
    k.stamp()
    k.e("s_cmp_eq_u32 s%d, s%d" % (S_FAST, S_ANN4 if fast else S_K11))
    G = (32 - nm) // 4

    def wreads(ks):
        fa = V_FA + 16 * (ks & 1)
        if ks >= nm:
            nt, hf = divmod(ks - nm, G)
            d = (slot_of(10 + (nm + 4 * hf) // 8, NS) - slot_of(10 + nm // 8, NS)) * SLOT
            assert 0 <= d <= SLOT or (d == 2 * SLOT)
            ra = V_WA + nt if d < 2 * SLOT else V_RA + nt
            return [lambda j=j, e=e: k.ds("ds_read_b64_tr_b16 %s, v%d offset:%d" % (vr(fa + 4 * j + 2 * e, 2), ra, (d & SLOT) + (4 * (hf & 1) + j) * 4096 + e * 2048), "w%d_%d" % (ks, j))
                    for j in range(4) for e in range(2)]
        return [lambda nt=nt, e=e: k.ds("ds_read_b64_tr_b16 %s, v%d offset:%d" % (vr(fa + 4 * nt + 2 * e, 2), V_WA + nt, (ks % 8) * 4096 + e * 2048), "w%d_%d" % (ks, nt))
                for nt in range(4) for e in range(2)]

    def ocvt(i, sc):
        def f():
            for j in range(4):
                k.e("v_cvt_pk_bf16_f32 v%d, v%d, v%d" % (V_QB + 4 * i + j, V_ACC + 8 * i + 2 * j, V_ACC + 8 * i + 2 * j + 1))
            k.vmem("buffer_store_dwordx4 %s, v%d, %s, s%d offen offset:%d%s" % (vr(V_QB + 4 * i, 4), V_L16, srd(SRD_WS), S_OX if i < 4 else S_T2, (i & 3) * 1024, sc), "ost")
        return f

    def pcvt(pc):
        def f():
            for j in range(4):
                k.e("v_cvt_pk_bf16_f32 v%d, v%d, v%d" % (V_ACC + 4 * pc + j, V_AC2 + 8 * pc + 2 * j, V_AC2 + 8 * pc + 2 * j + 1))
            k.vmem("buffer_store_dwordx4 %s, v%d, %s, s%d offen sc1" % (vr(V_ACC + 4 * pc, 4), V_L16, srd(SRD_WS), S_OP), "pst%d" % (pc >> 2))
            if pc < 7:
                k.e("s_add_u32 s%d, s%d, 8192" % (S_OP, S_OP))
        return f

    def p2step(ks, extra=None):
        extra = extra or {}
        fa = V_FA + 16 * (ks & 1)
        rd = []
        if ks < 31:
            rd = wreads(ks + 1)
            if ks % 8 == 7 and ks < nm:
                adv = adv_read_addrs(k, list(range(V_WA, V_WA + 4)), 10 + ks // 8, 11 + ks // 8, NS)
                rd = [adv[0], rd[0], rd[1], adv[1], rd[2], rd[3], adv[2], rd[4], rd[5], adv[3], rd[6], rd[7]]
        n = len(rd) // 4
        for j in range(4):
            kk, nt = (ks, j) if ks < nm else (nm + 4 * ((ks - nm) % G) + j, (ks - nm) // G)
            k.wait(lg=("w%d_%d" % (ks, j),), vm=("o%d" % kk,))
            if ks < 8:
                mfma(k, V_AC2 + 16 * nt, fa + 4 * j, V_QB + 4 * ks, ks == 0)
            else:
                mfma(k, V_AC2 + 16 * nt, fa + 4 * j, V_ACC + 4 * (kk - 8), False)
            lo, hi = ([0, 3, 6, 8, 8] if n == 2 else [0, 3, 6, 9, 12])[j:j + 2]
            for op in rd[lo:hi]:
                op()
            for op in extra.get(j, ()):
                op()

    def pv_and_publish(sc):
        for dt in range(4):
            k.wait(lg=("v%d" % dt,))
            mfma(k, V_ACC + 16 * dt, V_FA + 8 * dt, V_PB, True)
            if dt == 3:
                ocvt(1, sc)()
            mfma(k, V_ACC + 16 * dt, V_FA + 8 * dt + 4, V_PB + 4, False)
            if dt == 2:
                ocvt(0, sc)()
                for op in wreads(0):
                    op()
        ocvt(2, sc)()
        p2step(0, {0: [ocvt(3, sc)], 2: [ocvt(4, sc)]})
        p2step(1, {0: [ocvt(5, sc)], 2: [ocvt(6, sc)]})
        p2step(2, {0: [ocvt(7, sc)]})
        for ks in range(3, fk):
            p2step(ks)
        k.wait(vm0=True)
        k.e("s_mov_b64 exec, 15")
        k.e("buffer_store_dword v%d, v%d, %s, s%d offen%s" % (V_ONE, V_FL1, srd(SRD_WS), S_OI, sc))
        k.e("s_mov_b64 exec, -1")
    k.e("s_cbranch_scc1 L_ofast")
    sv = list(k.vm), list(k.lg)
    pv_and_publish(" sc1")
    k.e("s_branch L_odone")
    k.lab("L_ofast")
    k.vm, k.lg = sv
    pv_and_publish("")
    k.lab("L_odone")
    assert pk <= 7
    if not hlp:
        k.e("s_barrier")
    k.stamp()
    k.e("s_and_b32 s%d, s%d, 0x%x" % (S_OX, S_OX, 0xffffffff ^ (3 << 13)))
    for j in range(1, 4):
        k.e("s_lshl_b32 s%d, s%d, 13" % (S_T0, S_J + j))
        k.e("s_add_u32 s%d, s%d, s%d" % (S_OB + 2 * j, S_T0, S_OX))
        k.e("s_add_u32 s%d, s%d, 4096" % (S_OB + 2 * j + 1, S_OB + 2 * j))
    for ks in range(fk, pk):
        p2step(ks, {0: [lambda: k.vmem("buffer_load_dword v%d, v%d, %s, s%d offen sc1" % (V_GO, V_PL1, srd(SRD_WS), S_OI), "poll")]} if ks == pk - 1 else None)
    if pk > fk:
        k.wait(vm0=True)
        k.e("v_cmp_ne_u32 vcc, 1, v%d" % V_GO)
        k.e("s_cbranch_vccz L_s1_x")
    spin(k, "L_s1", V_PL1, SRD_WS, "s%d" % S_OI, "1")
    k.stamp()
    old = [lambda ks=ks: k.vmem("buffer_load_dwordx4 %s, v%d, %s, s%d offen offset:%d sc1" % (vr(V_ACC + 4 * (ks - 8), 4), V_L16, srd(SRD_WS), S_OB + 2 * (ks // 8) + ((ks >> 2) & 1), (ks & 3) * 1024), "o%d" % ks)
           for ks in range(8, 32)]
    for _ in range(oup):
        old.pop(0)()
    k.e("s_lshl2_add_u32 s%d, s%d, s%d" % (S_T0, S_BR, S_TG))
    k.e("s_lshl2_add_u32 s%d, s%d, s%d" % (S_T0, S_T0, S_NB))
    k.e("s_lshl_b32 s%d, s%d, 3" % (S_T0, S_T0))
    k.e("s_add_u32 s%d, s%d, s%d" % (S_T0, S_T0, S_KQ))
    k.e("s_lshl2_add_u32 s%d, s%d, s%d" % (S_T0, S_T0, S_W))
    k.e("s_lshl_b32 s%d, s%d, 13" % (S_T0, S_T0))
    k.e("s_add_u32 s%d, s%d, 0x%x" % (S_OWQ, S_T0, WS_P))
    k.e("s_add_u32 s%d, s%d, 4096" % (S_OKV, S_OWQ))
    k.e("s_lshr_b32 s%d, s%d, 1" % (S_T0, S_KQ))
    k.e("s_lshl2_add_u32 s%d, s%d, s%d" % (S_T0, S_TG, S_T0))
    k.e("s_lshl_b32 s%d, s%d, 6" % (S_T0, S_T0))
    k.e("s_add_u32 s%d, s%d, s%d" % (S_T0, S_T0, S_BR))
    k.e("s_lshl2_add_u32 s%d, s%d, s%d" % (S_T0, S_T0, S_NB))
    k.e("s_and_b32 s%d, s%d, 1" % (S_T1, S_KQ))
    k.e("s_lshl1_add_u32 s%d, s%d, s%d" % (S_T0, S_T0, S_T1))
    k.e("s_lshl2_add_u32 s%d, s%d, s%d" % (S_T0, S_T0, S_W))
    k.e("s_lshl_b32 s%d, s%d, 5" % (S_T3, S_T0))
    k.e("s_mov_b32 s%d, 0x3f80" % S_T0)
    k.e("s_mov_b32 s%d, 0x3f800000" % S_T1)
    for ks in range(pk, 32):
        ex = {}
        if old:
            ex[0] = [old.pop(0)]
        if old and ks < o2:
            ex[2] = [old.pop(0)]
        if ks >= nm + G and (ks - nm) % G == 0:
            assert not old
            ex = {1: [pcvt(2 * ((ks - nm) // G) - 2)], 3: [pcvt(2 * ((ks - nm) // G) - 1)]}
        if ks == nm and nm == 16:
            ex.setdefault(1, []).extend(lambda x=x: k.e("v_add_u32 v%d, 0x%x, v%d" % (V_RA + x, 2 * SLOT, V_WA + x)) for x in range(4))
        assert ks >= 8 or len(old) >= 8
        if hlp and ks in (7, 15, 23 if nm == 24 else 17):
            k.e("s_barrier")
        p2step(ks, ex)
        if ks == 8:
            k.stamp()
    k.stamp()
    k.e("s_nop 7")
    k.e("s_nop 7")
    pcvt(6)()
    pcvt(7)()

    def pload(q):
        k.vmem("buffer_load_dwordx4 %s, v%d, %s, s%d offen offset:%d sc1" % (vr(V_PL + 4 * q, 4), V_L16, srd(SRD_WS), S_OWQ if q < 4 else S_OKV, (q & 3) * 1024), "p%d" % q)
    if not sent:
        if split2:
            k.wait(vm=("pst0",))
            k.e("s_mov_b64 exec, 1")
            k.vmem("buffer_store_dword v%d, v%d, %s, s%d offen sc1" % (V_ONE, V_FL2, srd(SRD_WS), S_OI), "fl")
        k.wait(vm=("pst1",))
        k.e("s_mov_b64 exec, %d" % (2 if split2 else 3))
        k.e("buffer_store_dword v%d, v%d, %s, s%d offen sc1" % (V_ONE, V_FL2, srd(SRD_WS), S_OI))
        k.e("s_mov_b64 exec, -1")
        k.stamp()
        spin(k, "L_s2", V_PL2, SRD_WS, "s%d" % S_OI, "1")
        k.stamp()
        for q in range(8):
            pload(q)
    else:
        k.stamp()
        for q in range(8):
            pload(q)
        k.e("s_mov_b32 s%d, 0x40000" % S_SPIN)
        k.lab("L_s2")
        k.wait(vm0=True)
        k.e("s_mov_b32 s%d, 0" % S_FAST)
        for q in range(8):
            r = V_PL + 4 * q
            k.e("v_max3_u32 v%d, v%d, v%d, v%d" % (t, r, r + 1, r + 2))
            k.e("v_max_u32 v%d, v%d, v%d" % (t, t, r + 3))
            k.e("v_cmp_eq_u32 vcc, -1, v%d" % t)
            k.e("s_cbranch_vccz L_s2_%d" % q)
            pload(q)
            k.e("s_mov_b32 s%d, 1" % S_FAST)
            k.lab("L_s2_%d" % q)
        k.e("s_sub_u32 s%d, s%d, s%d" % (S_SPIN, S_SPIN, S_FAST))
        k.e("s_cbranch_scc1 L_s2_x")
        k.e("s_cmp_eq_u32 s%d, 1" % S_FAST)
        k.e("s_cbranch_scc1 L_s2")
        k.lab("L_s2_x")
        k.wait(vm0=True)
        k.stamp()
    for q in range(8):
        k.wait(vm=("p%d" % q,))
        for j in range(4):
            if q == 0:
                k.e("v_lshlrev_b32 v%d, 16, v%d" % (V_FA + 2 * j, V_PL + j))
                k.e("v_and_b32 v%d, 0xffff0000, v%d" % (V_FA + 2 * j + 1, V_PL + j))
            else:
                k.e("v_dot2_f32_bf16 v%d, v%d, s%d, v%d" % (V_FA + 2 * j, V_PL + 4 * q + j, S_T0, V_FA + 2 * j))
                k.e("v_dot2_f32_bf16 v%d, v%d, s%d, v%d" % (V_FA + 2 * j + 1, V_PL + 4 * q + j, S_T1, V_FA + 2 * j + 1))
    k.e("s_nop 2")
    for j in range(4):
        k.e("v_cvt_pk_bf16_f32 v%d, v%d, v%d" % (V_QB + j, V_FA + 2 * j, V_FA + 2 * j + 1))
    k.vmem("buffer_store_dwordx4 %s, v%d, %s, s%d offen" % (vr(V_QB, 4), V_OUT, srd(SRD_OUT), S_T3), "out")
    k.stamp()
    k.dump_stamps(0)
    if pad:
        k.lab("L_pad")
        k.e("s_memrealtime s[96:97]")
        k.e("s_waitcnt lgkmcnt(0)")
        k.e("s_sub_u32 s96, s96, s98")
        k.e("s_cmp_lt_u32 s96, %d" % (pad * 100))
        k.e("s_cbranch_scc1 L_pad")
    k.lab("L_end")
    k.e("s_endpgm")
    if hlp:
        k.lab("L_helper")
        k.diag, k.vm, k.lg = 0, [], []
        build_srds(k, ["WS", "K", "V", "WO", "DBG"])
        k.e("s_getreg_b32 s%d, hwreg(HW_REG_XCC_ID, 0, 3)" % S_ANN4)
        k.e("s_lshl_b32 s%d, s%d, 2" % (S_ANN4, S_ANN4))
        k.e("s_lshl_b32 s%d, 1, s%d" % (S_ANN4, S_ANN4))
        k.e("v_mov_b32 v%d, s%d" % (V_ANN, S_ANN4))
        k.e("s_cmp_lg_u32 s%d, 0" % S_W)
        k.e("s_cbranch_scc1 L_noann")
        k.e("buffer_store_dword v2, v1, %s, s%d offen sc1" % (srd(SRD_WS), S_T2))
        k.e("s_waitcnt vmcnt(0)")
        k.e("s_mov_b64 exec, 1")
        k.e("buffer_atomic_add v%d, v%d, %s, 0 offen sc1" % (V_ANN, V_GOA, srd(SRD_DBG)))
        k.e("s_mov_b64 exec, -1")
        k.lab("L_noann")
        head_order(k, jrot)
        K8, V9 = stage(8), stage(9)
        if NS == 4:
            at = {5: V9, 6: stage(10), 7: stage(11), 8: stage(12), 9: stage(13)}
            need = {8: ("st8",), 9: ("st9",), 10: ("st10",), 11: ("st11",), 12: ("st12",), 13: ("st13",)}
            at[hk - 1] = at.get(hk - 1, []) + K8[:4]
            at[hv - 1] = at.get(hv - 1, []) + K8[4:]
        else:
            at = {6: stage(10), 7: stage(11), 8: stage(12), 9: stage(13)}
            need = {8: ("st8", "st9"), 9: ("st10",), 10: ("st11",), 11: ("st12",), 12: ("st13",)}
            if bk:
                need = {8: ("st8", "st9"), 10: ("st10",), 11: ("st11",), 12: ("st12",), 13: ("st13",)}
            if bk == 2:
                need.update({8: ("st8",), 9: ("st9",)})
            kv = K8 + V9
            for i, c in enumerate(hs):
                at[int(c) - 1] = [op for op in at.get(int(c) - 1, []) if op in kv] + kv[2 * i:2 * i + 2] + [op for op in at.get(int(c) - 1, []) if op not in kv]
        for b in range(-1, max(need) + 1):
            if b >= 0:
                k.wait(vm=need.get(b, ()))
                k.e("s_barrier")
            for op in at.get(b, ()):
                op()
        k.e("s_endpgm")
    kt = kernel_text(NAME + "_kernel", k, 256, 256)
    return finish(["; @launch grid=(256,1,1) block=(%d,1,1) lds=163840" % (512 if hlp else 256)], [kt])


if __name__ == "__main__":
    mode, out = sys.argv[1], sys.argv[2]
    kw = dict(a.split("=") for a in sys.argv[3:])
    kw = {a: int(b) if b.isdigit() and a != "hs" else b for a, b in kw.items()}
    open(out, "w").write(globals()["gen_" + mode](**kw))
```

```python
import sys

NAME = "concat_heads__gqa_block_cached__mha_block_cached__near_ridge"
HDR = open("cdna_kernels/%s.s.ref" % NAME).read().split("; Override launch")[0]

WS_O = 0
WS_P = 8 << 20
WS_DIAG = 24 << 20
WS_BYTES = 32 << 20

S_WG = 2
SRD_X, SRD_WQ, SRD_K, SRD_V, SRD_WO, SRD_WS, SRD_OUT, SRD_DBG = 32, 36, 40, 44, 48, 52, 56, 60
S_BR, S_HG, S_LO, S_TG, S_W, S_B, S_HEAD = 64, 65, 66, 67, 68, 69, 70
S_T0, S_T1, S_T2, S_T3 = 71, 72, 73, 74
S_OWQ, S_OX, S_OKV, S_OWO, S_OO, S_OP = 75, 76, 77, 78, 79, 80
S_MW, S_MX, S_M8 = 81, 82, 83
S_C = 84
S_OV = 84
S_STAMP = 86
SLOT = 32768


def srd(r):
    return "s[%d:%d]" % (r, r + 3)


def vr(b, n=1, a=False):
    p = "a" if a else "v"
    return "%s%d" % (p, b) if n == 1 else "%s[%d:%d]" % (p, b, b + n - 1)


class K:
    def __init__(self, diag=False):
        self.l = []
        self.vm = []
        self.lg = []
        self.diag = diag
        self.nstamp = 0

    def e(self, s):
        self.l.append("    " + s)

    def lab(self, s):
        self.l.append(s + ":")

    def c(self, s):
        self.l.append("    ; " + s)

    def vmem(self, s, tag):
        self.e(s)
        self.vm.append(tag)

    def ds(self, s, tag):
        self.e(s)
        self.lg.append(tag)

    def _cnt(self, q, tags, cap):
        idx = [i for i, t in enumerate(q) if t in tags]
        if not idx:
            return None
        n = len(q) - 1 - max(idx)
        n = min(n, cap)
        del q[: len(q) - n]
        return n

    def wait(self, vm=(), lg=(), vm0=False, lg0=False):
        p = []
        if vm0:
            self.vm = []
            p.append("vmcnt(0)")
        else:
            n = self._cnt(self.vm, vm, 63)
            if n is not None:
                p.append("vmcnt(%d)" % n)
        if lg0:
            self.lg = []
            p.append("lgkmcnt(0)")
        else:
            n = self._cnt(self.lg, lg, 15)
            if n is not None:
                p.append("lgkmcnt(%d)" % n)
        if p:
            self.e("s_waitcnt " + " ".join(p))

    def stamp(self):
        if not self.diag:
            return
        r = S_STAMP + self.nstamp
        assert r <= 100
        self.nstamp += 1
        self.e("s_memrealtime s[30:31]" if self.diag == 1 else "s_memtime s[30:31]")
        self.wait(lg0=True)
        self.e("s_mov_b32 s%d, s30" % r)

    def dump_stamps(self, kidx):
        if not self.diag:
            return
        self.e("s_lshl_b32 s%d, s2, 2" % S_T0)
        self.e("s_add_u32 s%d, s%d, s%d" % (S_T0, S_T0, S_W))
        self.e("s_lshl_b32 s%d, s%d, 6" % (S_T0, S_T0))
        self.e("s_add_u32 s%d, s%d, %d" % (S_T0, S_T0, WS_DIAG + kidx * 131072))
        self.e("v_mov_b32 v1, 0")
        self.e("s_memtime s[30:31]")
        self.wait(lg0=True)
        self.e("s_sub_u32 s101, s30, s101")
        for i in list(range(self.nstamp)) + [15]:
            self.e("v_mov_b32 v2, s%d" % (S_STAMP + i))
            self.e("buffer_store_dword v2, v1, %s, s%d offen offset:%d" % (srd(SRD_WS), S_T0, 4 * i))
            self.e("s_nop 1")


def prologue(k, endlab):
    k.e("s_cmp_ge_u32 s2, 256")
    k.e("s_cbranch_scc1 %s" % endlab)
    k.e("s_load_dwordx16 s[4:19], s[0:1], 0")
    k.e("s_load_dwordx8 s[20:27], s[0:1], 64")
    k.e("s_load_dwordx2 s[28:29], s[0:1], 96")
    if k.diag:
        k.e("%s s[%d:%d]" % ("s_memrealtime" if k.diag == 1 else "s_memtime", S_STAMP, S_STAMP + 1))
        k.e("s_memtime s[100:101]")
        k.nstamp = 1
    k.e("v_lshrrev_b32 v1, 6, v0")
    k.e("v_and_b32 v0, 63, v0")
    k.e("s_and_b32 s%d, s2, 3" % S_HG)
    k.e("v_readfirstlane_b32 s%d, v1" % S_W)
    k.e("s_nop 0")
    k.e("s_lshr_b32 s%d, s%d, 2" % (S_T3, S_W))
    k.e("s_and_b32 s%d, s%d, 3" % (S_W, S_W))
    k.e("s_bfe_u32 s%d, s2, 0x10002" % S_BR)
    k.e("s_bfe_u32 s%d, s2, 0x30003" % S_LO)
    k.e("s_bfe_u32 s%d, s2, 0x20006" % S_TG)
    k.e("s_lshl_b32 s%d, s%d, 3" % (S_HEAD, S_HG))
    k.e("s_add_u32 s%d, s%d, s%d" % (S_HEAD, S_HEAD, S_LO))
    k.e("s_lshl_b32 s%d, s%d, 2" % (S_B, S_TG))
    k.e("s_add_u32 s%d, s%d, s%d" % (S_B, S_B, S_W))
    k.e("s_lshl_b32 s%d, s%d, 12" % (S_MW, S_W))
    k.e("s_add_u32 s%d, s%d, 16384" % (S_MX, S_MW))
    k.e("s_lshl_b32 s%d, s%d, 13" % (S_M8, S_W))


def build_srds(k, which):
    k.e("s_waitcnt lgkmcnt(0)")
    if k.diag:
        k.e("s_mov_b32 s101, s100")
    k.stamp()
    k.e("s_cmp_eq_u32 s%d, 0" % S_BR)
    src = {"X": (4, 14), "K": (6, 16), "V": (8, 18), "WQ": (10, 20), "WO": (12, 22)}
    reg = {"X": SRD_X, "K": SRD_K, "V": SRD_V, "WQ": SRD_WQ, "WO": SRD_WO}
    size = {"X": (1 << 19,) * 2, "K": (1 << 20, 1 << 22), "V": (1 << 20, 1 << 22), "WQ": (1 << 22,) * 2, "WO": (1 << 22,) * 2}
    for n in which:
        if n in src:
            a, b = src[n]
            r = reg[n]
            k.e("s_cselect_b64 s[%d:%d], s[%d:%d], s[%d:%d]" % (r, r + 1, a, a + 1, b, b + 1))
            if size[n][0] == size[n][1]:
                k.e("s_mov_b32 s%d, 0x%x" % (r + 2, size[n][0]))
            else:
                k.e("s_mov_b32 s%d, 0x%x" % (r + 3, size[n][0]))
                k.e("s_cselect_b32 s%d, s%d, 0x%x" % (r + 2, r + 3, size[n][1]))
            k.e("s_mov_b32 s%d, 0x20000" % (r + 3))
        else:
            r, p, sz = {"WS": (SRD_WS, 28, WS_BYTES), "OUT": (SRD_OUT, 24, 1 << 20), "DBG": (SRD_DBG, 26, 256)}[n]
            k.e("s_mov_b64 s[%d:%d], s[%d:%d]" % (r, r + 1, p, p + 1))
            k.e("s_mov_b32 s%d, 0x%x" % (r + 2, sz))
            k.e("s_mov_b32 s%d, 0x20000" % (r + 3))


V_DWQ, V_DX, V_DK, V_DV, V_DWO = 4, 8, 12, 16, 20
V_RA, V_RB = 24, 28
V_L16 = 17
V_T = 32
V_FA = 40
V_FB = 72
V_ACC = 80
V_QB = 144
V_S = 176
V_KF = 192
V_PB = 224


def p1_dma_addrs(k):
    t = V_T
    k.e("v_lshrrev_b32 v%d, 4, v0" % t)
    k.e("v_and_b32 v%d, 15, v0" % (t + 1))
    k.e("v_lshlrev_b32 v%d, 2, v%d" % (t + 2, t))
    k.e("v_xor_b32 v%d, v%d, v%d" % (t + 2, t + 2, t + 1))
    k.e("v_lshlrev_b32 v%d, 4, v%d" % (t + 2, t + 2))
    k.e("v_lshl_add_u32 v%d, v%d, 13, v%d" % (V_DWQ, t, t + 2))
    k.e("s_lshl_b32 s%d, s%d, 17" % (S_T0, S_W))
    k.e("v_add_u32 v%d, s%d, v%d" % (V_DWQ, S_T0, V_DWQ))
    for i in range(1, 4):
        k.e("v_add_u32 v%d, %d, v%d" % (V_DWQ + i, i * (32768 - 1024), V_DWQ))
    k.e("v_lshl_add_u32 v%d, v%d, 8, v%d" % (V_DV, t, t + 2))
    k.e("v_xor_b32 v%d, v%d, v%d" % (t + 2, t, t + 1))
    k.e("v_lshlrev_b32 v%d, 4, v%d" % (t + 2, t + 2))
    k.e("v_lshl_add_u32 v%d, v%d, 8, v%d" % (V_DK, t, t + 2))
    for i in range(1, 4):
        k.e("v_xor_b32 v%d, %d, v%d" % (V_DK + i, i << 6, V_DK))
    k.e("v_lshrrev_b32 v%d, 3, v0" % t)
    k.e("v_and_b32 v%d, 7, v0" % (t + 1))
    k.e("v_lshrrev_b32 v%d, 1, v%d" % (t + 2, t))
    k.e("v_xor_b32 v%d, v%d, v%d" % (t + 2, t + 2, t + 1))
    k.e("v_lshlrev_b32 v%d, 4, v%d" % (t + 2, t + 2))
    k.e("v_lshl_add_u32 v%d, v%d, 10, v%d" % (V_DX, t, t + 2))
    k.e("v_xor_b32 v%d, 64, v%d" % (V_DX + 1, V_DX))
    k.e("v_add_u32 v%d, %d, v%d" % (V_DX + 2, 2 * 7168, V_DX))
    k.e("v_add_u32 v%d, %d, v%d" % (V_DX + 3, 3 * 7168, V_DX + 1))
    k.e("v_add_u32 v%d, %d, v%d" % (V_DX + 1, 7168, V_DX + 1))
    k.e("s_lshl_b32 s%d, s%d, 8" % (S_OWQ, S_HEAD))
    k.e("s_lshl_b32 s%d, s%d, 15" % (S_OX, S_B))
    k.e("s_lshr_b32 s%d, s%d, 2" % (S_T0, S_HEAD))
    k.e("s_lshl_b32 s%d, s%d, 3" % (S_T1, S_B))
    k.e("s_add_u32 s%d, s%d, s%d" % (S_T0, S_T0, S_T1))
    k.e("s_lshl_b32 s%d, s%d, 5" % (S_T1, S_B))
    k.e("s_add_u32 s%d, s%d, s%d" % (S_T1, S_T1, S_HEAD))
    k.e("s_cmp_eq_u32 s%d, 0" % S_BR)
    k.e("s_cselect_b32 s%d, s%d, s%d" % (S_OKV, S_T0, S_T1))
    k.e("s_lshl_b32 s%d, s%d, 13" % (S_OKV, S_OKV))


def p2_dma_addrs(k):
    t = V_T
    k.e("v_lshrrev_b32 v%d, 3, v0" % t)
    k.e("v_and_b32 v%d, 7, v0" % (t + 1))
    k.e("v_lshlrev_b32 v%d, 1, v%d" % (t + 2, t))
    k.e("v_and_b32 v%d, 4, v%d" % (t + 2, t + 2))
    k.e("v_xor_b32 v%d, v%d, v%d" % (t + 2, t + 2, t + 1))
    k.e("v_lshlrev_b32 v%d, 4, v%d" % (t + 2, t + 2))
    k.e("v_lshl_add_u32 v%d, v%d, 10, v%d" % (V_DWO, t, t + 2))
    k.e("s_lshl_b32 s%d, s%d, 16" % (S_T0, S_W))
    k.e("v_add_u32 v%d, s%d, v%d" % (V_DWO, S_T0, V_DWO))
    for i in range(1, 4):
        k.e("v_add_u32 v%d, %d, v%d" % (V_DWO + i, i * 7168, V_DWO))
    k.e("s_lshl_b32 s%d, s%d, 20" % (S_OWO, S_HG))
    k.e("s_lshl_b32 s%d, s%d, 7" % (S_T0, S_LO))
    k.e("s_add_u32 s%d, s%d, s%d" % (S_OWO, S_OWO, S_T0))


def slot_of(st, nslot):
    if nslot == 5:
        return st % 5
    if nslot == 4:
        return st % 4 if st < 8 else {8: 4, 9: 0, 10: 1, 11: 2, 12: 3, 13: 4}[st]
    return st % 3 if st < 8 else {8: 3, 9: 4, 10: 2, 11: 0, 12: 1, 13: 3}[st]


def dma_stage(k, st, nslot, pol=""):
    base = slot_of(st, nslot) * SLOT
    tag = "st%d" % st
    ops = []

    def grp(m_sreg, m_add, sr, voffs, soff, adv, wrap=0):
        def first():
            k.e("s_add_u32 m0, s%d, %d" % (m_sreg, base + m_add))
            k.e("s_nop 0")
            k.vmem("buffer_load_dwordx4 v%d, %s, s%d offen%s lds" % (voffs[0], srd(sr), soff, pol), tag)
        ops.append(first)
        for i in range(1, 4):
            def nxt(i=i):
                k.vmem("buffer_load_dwordx4 v%d, %s, s%d offen offset:%d%s lds" % (voffs[i], srd(sr), soff, i * 1024, pol), tag)
                if i == 3 and adv:
                    k.e("s_add_u32 s%d, s%d, %d" % (soff, soff, adv))
                    if wrap:
                        k.e("s_bitset0_b32 s%d, %d" % (soff, wrap))
            ops.append(nxt)

    if st < 8:
        grp(S_MW, 0, SRD_WQ, [V_DWQ + i for i in range(4)], S_OWQ, 64 * 8192, 22)
        grp(S_MX, 0, SRD_X, [V_DX + i for i in range(4)], S_OX, 128, 10)
    elif st == 8:
        grp(S_M8, 0, SRD_K, [V_DK + i for i in range(4)], S_OKV, 4096)
        grp(S_M8, 4096, SRD_K, [V_DK + i for i in range(4)], S_OKV, -4096 & 0xffffffff)
    elif st == 9:
        grp(S_M8, 0, SRD_V, [V_DV] * 4, S_OV, 4096)
        grp(S_M8, 4096, SRD_V, [V_DV] * 4, S_OV, 0)
    else:
        grp(S_M8, 0, SRD_WO, [V_DWO + i for i in range(4)], S_OWO, 4 * 8192)
        grp(S_M8, 4096, SRD_WO, [V_DWO + i for i in range(4)], S_OWO, 256 * 1024 - 4 * 8192)
    return ops


def tr_lane_terms(k, t):
    k.e("v_lshrrev_b32 v%d, 5, v0" % t)
    k.e("v_bfe_u32 v%d, v0, 2, 2" % (t + 1))
    k.e("v_bfe_u32 v%d, v0, 4, 1" % (t + 2))
    k.e("v_and_b32 v%d, 3, v0" % (t + 3))


def pi_term(k, dst, t):
    k.e("v_and_b32 v%d, 1, v0" % dst)
    k.e("v_lshlrev_b32 v%d, 4, v%d" % (dst, dst))
    k.e("v_and_b32 v%d, 2, v0" % (t + 4))
    k.e("v_lshl_add_u32 v%d, v%d, 2, v%d" % (dst, t + 4, dst))
    k.e("v_lshl_add_u32 v%d, v%d, 5, v%d" % (dst, t + 2, dst))


def p1_read_addrs(k):
    t = V_T
    tr_lane_terms(k, t)
    pi_term(k, V_RA, t)
    k.e("v_lshl_add_u32 v%d, v%d, 3, v%d" % (t + 4, t, t + 1))
    k.e("v_lshl_add_u32 v%d, v%d, 8, v%d" % (V_RA, t + 4, V_RA))
    k.e("v_lshl_add_u32 v%d, v%d, 6, v%d" % (V_RA, t + 1, V_RA))
    for dt in range(1, 4):
        k.e("v_xor_b32 v%d, %d, v%d" % (V_RA + dt, dt << 6, V_RA))
    k.e("v_and_b32 v%d, 31, v0" % (t + 4))
    k.e("v_bfe_u32 v%d, v0, 1, 3" % (t + 5))
    k.e("v_xor_b32 v%d, v%d, v%d" % (t + 5, t + 5, t))
    k.e("v_lshlrev_b32 v%d, 4, v%d" % (t + 5, t + 5))
    k.e("v_lshl_add_u32 v%d, v%d, 7, v%d" % (V_RB, t + 4, t + 5))
    k.e("v_add_u32 v%d, s%d, v%d" % (V_RB, S_MX, V_RB))
    for s in range(1, 4):
        k.e("v_xor_b32 v%d, %d, v%d" % (V_RB + s, s << 5, V_RB))


def mfma(k, d, a, b, first, aa=False, ba=False):
    k.e("v_mfma_f32_32x32x16_bf16 %s, %s, %s, %s" % (vr(d, 16), vr(a, 4, aa), vr(b, 4, ba), "0" if first else vr(d, 16)))


def p1_reads(k, g, nslot):
    st, s = g // 4, g % 4
    fa, fb = V_FA + 16 * (g & 1), V_FB + 4 * (g & 1)
    ops = [lambda: k.ds("ds_read_b128 %s, v%d" % (vr(fb, 4), V_RB + s), "b%d" % g)]
    for dt in range(4):
        for e in range(2):
            ops.append(lambda dt=dt, e=e: k.ds("ds_read_b64_tr_b16 %s, v%d offset:%d" % (vr(fa + 4 * dt + 2 * e, 2), V_RA + dt, s * 4096 + e * 1024), "a%d_%d" % (g, dt)))
    return ops


def adv_read_addrs(k, regs, st_from, st_to, nslot):
    d = (slot_of(st_to, nslot) - slot_of(st_from, nslot)) * SLOT
    return [lambda r=r: k.e("v_add_u32 v%d, 0x%x, v%d" % (r, d & 0xffffffff, r)) for r in regs]


def phase1(k, nslot, last_stage, pol=""):
    p1_dma_addrs(k)
    build_srds(k, ["WQ", "X", "K", "V", "WS"] + (["WO", "OUT", "DBG"] if last_stage >= 10 else []))
    for st in range(nslot):
        for op in dma_stage(k, st, nslot, pol):
            op()
    p1_read_addrs(k)
    if last_stage >= 10:
        p2_dma_addrs(k)
    k.e("v_lshlrev_b32 v%d, 4, v0" % V_L16)
    k.wait(vm=("st0",))
    k.e("s_barrier")
    k.stamp()
    for op in p1_reads(k, 0, nslot):
        op()
    for g in range(32):
        st, s = g // 4, g % 4
        fa, fb = V_FA + 16 * (g & 1), V_FB + 4 * (g & 1)
        pre, fill = [], []
        if s == 3:
            k.wait(vm=("st%d" % (st + 1),), lg0=True)
            k.e("s_barrier")
            k.stamp()
            if st < 7:
                pre += adv_read_addrs(k, list(range(V_RB, V_RB + 4)) + list(range(V_RA, V_RA + 4)), st, st + 1, nslot)
            if st + nslot <= last_stage:
                fill += dma_stage(k, st + nslot, nslot, pol)
        rd = p1_reads(k, g + 1, nslot) if g < 31 else []
        if s == 3 and st < 7:
            seq = [pre[0], rd[0], pre[4], rd[1], rd[2], pre[5], rd[3], rd[4], pre[6], rd[5], rd[6], pre[7], rd[7], rd[8]] + pre[1:4]
            split = [5, 3, 3, 6]
        else:
            seq = rd
            split = [4, 3, 2, 0]
        pos = 0
        for dt in range(4):
            k.wait(lg=("b%d" % g, "a%d_%d" % (g, dt)))
            mfma(k, V_ACC + 16 * dt, fa + 4 * dt, fb, g == 0)
            for op in seq[pos:pos + split[dt]]:
                op()
            pos += split[dt]
            for op in fill[2 * dt:2 * dt + 2]:
                op()


def attention(k, nslot, last_stage, pol="", opol=""):
    t = V_T
    kb, vb = (8 % nslot) * SLOT, (9 % nslot) * SLOT
    k.e("v_lshrrev_b32 v%d, 5, v0" % t)
    k.e("v_and_b32 v%d, 15, v0" % (t + 1))
    k.e("v_xor_b32 v%d, v%d, v%d" % (t + 1, t + 1, t))
    k.e("v_lshlrev_b32 v%d, 4, v%d" % (t + 1, t + 1))
    k.e("v_and_b32 v%d, 31, v0" % (t + 2))
    k.e("v_lshl_add_u32 v%d, v%d, 8, v%d" % (t + 1, t + 2, t + 1))
    k.e("s_add_u32 s%d, s%d, %d" % (S_T0, S_M8, kb))
    k.e("v_add_u32 v%d, s%d, v%d" % (t + 1, S_T0, t + 1))
    k.wait(vm=("st8",))
    for i in range(8):
        if i:
            k.e("v_xor_b32 v%d, %d, v%d" % (t + 2, i << 5, t + 1))
        k.ds("ds_read_b128 %s, v%d" % (vr(V_KF + 4 * i, 4), t + 2 if i else t + 1), "k%d" % i)
    tr_lane_terms(k, t)
    k.e("v_lshlrev_b32 v%d, 3, v%d" % (V_RA, t + 3))
    k.e("v_lshl_add_u32 v%d, v%d, 5, v%d" % (V_RA, t + 2, V_RA))
    k.e("v_lshl_add_u32 v%d, v%d, 2, v%d" % (t + 4, t, t + 1))
    k.e("v_lshl_add_u32 v%d, v%d, 8, v%d" % (V_RA, t + 4, V_RA))
    k.e("v_lshl_add_u32 v%d, v%d, 6, v%d" % (V_RA, t + 1, V_RA))
    k.e("s_add_u32 s%d, s%d, %d" % (S_T0, S_M8, vb))
    k.e("v_add_u32 v%d, s%d, v%d" % (V_RA, S_T0, V_RA))
    for dt in range(1, 4):
        k.e("v_xor_b32 v%d, %d, v%d" % (V_RA + dt, dt << 6, V_RA))
    k.e("s_mov_b32 s%d, 0x3e0293ee" % S_C)
    for i in range(8):
        for j in range(4):
            k.e("v_cvt_pk_bf16_f32 v%d, v%d, v%d" % (V_QB + 4 * i + j, V_ACC + 8 * i + 2 * j, V_ACC + 8 * i + 2 * j + 1))
        if i >= 1:
            k.wait(lg=("k%d" % (i - 1),))
            mfma(k, V_S, V_KF + 4 * (i - 1), V_QB + 4 * (i - 1), i == 1)
    k.wait(lg=("k7",), vm=("st9",))
    k.e("s_nop 0")
    mfma(k, V_S, V_KF + 28, V_QB + 28, False)
    for dt in range(4):
        for u in range(2):
            for e in range(2):
                k.ds("ds_read_b64_tr_b16 %s, v%d offset:%d" % (vr(V_FA + 8 * dt + 4 * u + 2 * e, 2), V_RA + dt, (16 * u + 8 * e) * 256), "v%d" % dt)
    m, m2 = t, t + 1
    k.e("v_max3_f32 v%d, v%d, v%d, v%d" % (m, V_S, V_S + 1, V_S + 2))
    k.e("v_max3_f32 v%d, v%d, v%d, v%d" % (m2, V_S + 3, V_S + 4, V_S + 5))
    for i in range(6, 14, 4):
        k.e("v_max3_f32 v%d, v%d, v%d, v%d" % (m, m, V_S + i, V_S + i + 1))
        k.e("v_max3_f32 v%d, v%d, v%d, v%d" % (m2, m2, V_S + i + 2, V_S + i + 3))
    k.e("v_max3_f32 v%d, v%d, v%d, v%d" % (m, m, V_S + 14, V_S + 15))
    k.e("v_max_f32 v%d, v%d, v%d" % (m, m, m2))
    k.e("v_mov_b32 v%d, v%d" % (m2, m))
    k.e("s_nop 1")
    k.e("v_permlane32_swap_b32 v%d, v%d" % (m, m2))
    k.e("v_max_f32 v%d, v%d, v%d" % (m, m, m2))
    k.e("v_mul_f32 v%d, s%d, v%d" % (m, S_C, m))
    for i in range(16):
        k.e("v_fma_f32 v%d, v%d, s%d, -v%d" % (V_S + i, V_S + i, S_C, m))
    for i in range(16):
        k.e("v_exp_f32 v%d, v%d" % (V_S + i, V_S + i))
    k.e("v_add_f32 v%d, v%d, v%d" % (m, V_S, V_S + 1))
    k.e("v_add_f32 v%d, v%d, v%d" % (m2, V_S + 2, V_S + 3))
    for i in range(4, 16, 2):
        k.e("v_add_f32 v%d, v%d, v%d" % (m, m, V_S + i))
        k.e("v_add_f32 v%d, v%d, v%d" % (m2, m2, V_S + i + 1))
    k.e("v_add_f32 v%d, v%d, v%d" % (m, m, m2))
    k.e("v_mov_b32 v%d, v%d" % (m2, m))
    k.e("s_nop 1")
    k.e("v_permlane32_swap_b32 v%d, v%d" % (m, m2))
    k.e("v_add_f32 v%d, v%d, v%d" % (m, m, m2))
    k.e("v_rcp_f32 v%d, v%d" % (m, m))
    k.e("s_nop 0")
    for i in range(16):
        k.e("v_mul_f32 v%d, v%d, v%d" % (V_S + i, V_S + i, m))
    for j in range(8):
        k.e("v_cvt_pk_bf16_f32 v%d, v%d, v%d" % (V_PB + j, V_S + 2 * j, V_S + 2 * j + 1))
    k.e("s_lshl_b32 s%d, s%d, 4" % (S_T0, S_BR))
    k.e("s_add_u32 s%d, s%d, s%d" % (S_T0, S_T0, S_B))
    k.e("s_lshl_b32 s%d, s%d, 5" % (S_T0, S_T0))
    k.e("s_add_u32 s%d, s%d, s%d" % (S_T1, S_T0, S_HEAD))
    k.e("s_lshl_b32 s%d, s%d, 13" % (S_OO, S_T1))
    k.e("s_add_u32 s%d, s%d, 4096" % (S_T2, S_OO))
    for dt in range(4):
        k.wait(lg=("v%d" % dt,))
        mfma(k, V_ACC + 16 * dt, V_FA + 8 * dt, V_PB, True)
        mfma(k, V_ACC + 16 * dt, V_FA + 8 * dt + 4, V_PB + 4, False)
    k.e("s_nop 5")
    for i in range(8):
        if i == 6:
            k.e("s_nop 1")
        for j in range(4):
            k.e("v_cvt_pk_bf16_f32 v%d, v%d, v%d" % (V_QB + 4 * i + j, V_ACC + 8 * i + 2 * j, V_ACC + 8 * i + 2 * j + 1))
        k.vmem("buffer_store_dwordx4 %s, v%d, %s, s%d offen offset:%d%s" % (vr(V_QB + 4 * i, 4), V_L16, srd(SRD_WS), S_OO if i < 4 else S_T2, (i & 3) * 1024, opol), "ost")


def p2_read_addrs(k, first_stage, nslot):
    t = V_T
    tr_lane_terms(k, t)
    pi_term(k, V_RA, t)
    k.e("v_lshl_add_u32 v%d, v%d, 2, v%d" % (t + 4, t, t + 1))
    k.e("v_lshl_add_u32 v%d, v%d, 7, v%d" % (V_RA, t + 4, V_RA))
    k.e("v_lshrrev_b32 v%d, 1, v%d" % (t + 4, t + 1))
    k.e("v_lshl_add_u32 v%d, v%d, 6, v%d" % (V_RA, t + 4, V_RA))
    b = (first_stage % nslot) * SLOT
    if b:
        k.e("v_add_u32 v%d, 0x%x, v%d" % (V_RA, b, V_RA))
    k.e("v_xor_b32 v%d, 64, v%d" % (V_RA + 1, V_RA))


def o_loads(k, lo, hi, opol):
    for ks in range(lo, hi):
        k.vmem("buffer_load_dwordx4 %s, v%d, %s, s%d offen offset:%d%s" % (vr(4 * ks, 4, True), V_L16, srd(SRD_WS), S_OO, (ks & 3) * 1024, opol), "o%d" % ks)
        if ks & 3 == 3:
            k.e("s_add_u32 s%d, s%d, 4096" % (S_OO, S_OO))


def o_load_base(k):
    k.e("s_lshl_b32 s%d, s%d, 4" % (S_T0, S_BR))
    k.e("s_add_u32 s%d, s%d, s%d" % (S_T0, S_T0, S_B))
    k.e("s_lshl_b32 s%d, s%d, 2" % (S_T0, S_T0))
    k.e("s_add_u32 s%d, s%d, s%d" % (S_T0, S_T0, S_HG))
    k.e("s_lshl_b32 s%d, s%d, 16" % (S_OO, S_T0))


def phase2_compute(k, nslot, all_landed):
    NSET = 4

    def reads(ks):
        fa = V_FA + 8 * (ks % NSET)
        for nt in range(2):
            for e in range(2):
                k.ds("ds_read_b64_tr_b16 %s, v%d offset:%d" % (vr(fa + 4 * nt + 2 * e, 2), V_RA + nt, ((ks % 16) * 16 + 8 * e) * 128), "w%d" % ks)

    def enter(ks):
        if ks % 16 == 0:
            st = 10 + ks // 16
            if ks:
                for op in adv_read_addrs(k, [V_RA, V_RA + 1], st - 1, st, nslot):
                    op()
            if not all_landed:
                k.wait(vm=("st%d" % st,))
                k.e("s_barrier")
                k.stamp()
    for ks in range(NSET - 1):
        enter(ks)
        reads(ks)
    for ks in range(64):
        k.wait(vm=("o%d" % ks,), lg=("w%d" % ks,))
        fa = V_FA + 8 * (ks % NSET)
        mfma(k, V_ACC, fa, 4 * ks, ks == 0, ba=True)
        mfma(k, V_ACC + 16, fa + 4, 4 * ks, ks == 0, ba=True)
        n = ks + NSET - 1
        if n < 64:
            enter(n)
            reads(n)


def part_base(k, j_sreg, hg_sreg):
    k.e("s_lshl_b32 s%d, s%d, 2" % (S_T0, S_BR))
    k.e("s_add_u32 s%d, s%d, s%d" % (S_T0, S_T0, S_TG))
    k.e("s_lshl_b32 s%d, s%d, 3" % (S_T0, S_T0))
    k.e("s_add_u32 s%d, s%d, s%d" % (S_T0, S_T0, S_LO))
    k.e("s_lshl_b32 s%d, s%d, 2" % (S_T0, S_T0))
    k.e("s_add_u32 s%d, s%d, s%d" % (S_T0, S_T0, j_sreg))
    k.e("s_lshl_b32 s%d, s%d, 2" % (S_T0, S_T0))
    if hg_sreg is not None:
        k.e("s_add_u32 s%d, s%d, s%d" % (S_T0, S_T0, hg_sreg))
    k.e("s_lshl_b32 s%d, s%d, 13" % (S_T0, S_T0))
    k.e("s_add_u32 s%d, s%d, 0x%x" % (S_OP, S_T0, WS_P))


def part_store(k, opol):
    part_base(k, S_W, S_HG)
    k.e("s_add_u32 s%d, s%d, 4096" % (S_T2, S_OP))
    k.e("s_nop 7")
    for i in range(8):
        k.vmem("buffer_store_dwordx4 %s, v%d, %s, s%d offen offset:%d%s" % (vr(V_ACC + 4 * i, 4), V_L16, srd(SRD_WS), S_OP if i < 4 else S_T2, (i & 3) * 1024, opol), "pst")


def reduce_store(k, opol):
    part_base(k, S_HG, None)
    k.e("s_lshl_b32 s%d, s%d, 11" % (S_T0, S_W))
    k.e("s_add_u32 s%d, s%d, s%d" % (S_OP, S_OP, S_T0))
    for q in range(4):
        for i in range(2):
            k.vmem("buffer_load_dwordx4 %s, v%d, %s, s%d offen offset:%d%s" % (vr(V_KF + 8 * q + 4 * i, 4), V_L16, srd(SRD_WS), S_OP, i * 1024, opol), "p%d" % q)
        if q < 3:
            k.e("s_add_u32 s%d, s%d, 8192" % (S_OP, S_OP))
    t = V_T
    k.e("v_and_b32 v%d, 31, v0" % t)
    k.e("v_lshrrev_b32 v%d, 5, v0" % (t + 1))
    k.e("v_lshlrev_b32 v%d, 11, v%d" % (t, t))
    k.e("v_lshl_add_u32 v%d, v%d, 4, v%d" % (t, t + 1, t))
    k.e("s_lshl_b32 s%d, s%d, 2" % (S_T0, S_TG))
    k.e("s_add_u32 s%d, s%d, s%d" % (S_T0, S_T0, S_HG))
    k.e("s_lshl_b32 s%d, s%d, 16" % (S_T0, S_T0))
    k.e("s_lshl_b32 s%d, s%d, 10" % (S_T1, S_BR))
    k.e("s_add_u32 s%d, s%d, s%d" % (S_T0, S_T0, S_T1))
    k.e("s_lshl_b32 s%d, s%d, 7" % (S_T1, S_LO))
    k.e("s_add_u32 s%d, s%d, s%d" % (S_T0, S_T0, S_T1))
    k.e("s_lshl_b32 s%d, s%d, 5" % (S_T1, S_W))
    k.e("s_add_u32 s%d, s%d, s%d" % (S_T0, S_T0, S_T1))
    k.wait(vm=("p1",))
    for i in range(8):
        k.e("v_add_f32 v%d, v%d, v%d" % (V_KF + i, V_KF + i, V_KF + 8 + i))
    k.wait(vm=("p3",))
    for i in range(8):
        k.e("v_add_f32 v%d, v%d, v%d" % (V_KF + 16 + i, V_KF + 16 + i, V_KF + 24 + i))
    for i in range(8):
        k.e("v_add_f32 v%d, v%d, v%d" % (V_KF + i, V_KF + i, V_KF + 16 + i))
    for j in range(4):
        k.e("v_cvt_pk_bf16_f32 v%d, v%d, v%d" % (V_PB + j, V_KF + 2 * j, V_KF + 2 * j + 1))
    k.vmem("buffer_store_dwordx4 %s, v%d, %s, s%d offen" % (vr(V_PB, 4), t, srd(SRD_OUT), S_T0), "out")


def kernel_text(name, k, nv=256, acc=256):
    return ("\n.globl %s\n.p2align 8\n.type %s,@function\n%s:\n" % (name, name, name)) + "\n".join(k.l) + "\n", \
        (".p2align 6\n.amdhsa_kernel %s\n  .amdhsa_next_free_vgpr %d\n  .amdhsa_next_free_sgpr 102\n  .amdhsa_accum_offset %d\n"
         "  .amdhsa_group_segment_fixed_size 0\n  .amdhsa_kernarg_size 104\n  .amdhsa_user_sgpr_count 2\n"
         "  .amdhsa_user_sgpr_kernarg_segment_ptr 1\n  .amdhsa_system_sgpr_workgroup_id_x 1\n.end_amdhsa_kernel\n" % (name, nv, acc))


def finish(launches, kernels):
    s = HDR
    for l in launches:
        s += l + "\n"
    s += '.amdgcn_target "amdgcn-amd-amdhsa--gfx950"\n.text\n'
    s += "".join(t for t, _ in kernels)
    s += '.section .rodata,"a"\n'
    s += "".join(d for _, d in kernels)
    return s


def gen_three(diag=False, extra_empty=0):
    ks = []
    k = K(diag)
    prologue(k, "L1_end")
    phase1(k, 5, 9)
    k.stamp()
    attention(k, 5, 9)
    k.stamp()
    k.dump_stamps(0)
    k.lab("L1_end")
    k.e("s_endpgm")
    ks.append(kernel_text("p1_kernel", k))
    k = K(diag)
    prologue(k, "L2_end")
    p2_dma_addrs(k)
    k.e("v_lshlrev_b32 v%d, 4, v0" % V_L16)
    o_load_base(k)
    build_srds(k, ["WO", "WS"])
    for q in range(4):
        for op in dma_stage(k, 10 + q, 5):
            op()
        o_loads(k, 16 * q, 16 * q + 16 if q < 3 else 56, "")
    p2_read_addrs(k, 10, 5)
    k.wait(vm=("st10", "go"))
    o_loads(k, 56, 64, "")
    k.stamp()
    phase2_compute(k, 5, False)
    k.stamp()
    part_store(k, "")
    k.dump_stamps(1)
    k.lab("L2_end")
    k.e("s_endpgm")
    ks.append(kernel_text("p2_kernel", k, 512, 256))
    k = K(diag)
    prologue(k, "L3_end")
    k.e("v_lshlrev_b32 v%d, 4, v0" % V_L16)
    build_srds(k, ["WS", "OUT"])
    reduce_store(k, "")
    k.stamp()
    k.dump_stamps(2)
    k.lab("L3_end")
    k.e("s_endpgm")
    ks.append(kernel_text("p3_kernel", k))
    L = ["; @launch kernel=p1_kernel grid=(256,1,1) block=(256,1,1) lds=163840",
         "; @launch kernel=p2_kernel grid=(256,1,1) block=(256,1,1) lds=163840",
         "; @launch kernel=p3_kernel grid=(256,1,1) block=(256,1,1) lds=0"]
    if extra_empty:
        k = K()
        k.e("s_endpgm")
        ks.append(kernel_text("nop_kernel", k, 8, 8))
        L += ["; @launch kernel=nop_kernel grid=(256,1,1) block=(256,1,1) lds=0"] * extra_empty
    return finish(L, ks)


WS_F = 16 << 20
V_KA, V_VA, V_WA = 18, 19, 240
V_FL1, V_FL2, V_PL1, V_PL2, V_GO, V_ONE, V_OUT = 244, 245, 246, 247, 248, 249, 250
V_GOA, V_GOD = 251, 252
V_ANN, V_GOP = 253, 254
S_ANN4, S_K11, S_FAST, S_CL, S_OB = 5, 6, 7, 4, 6
V_AC2, V_PL = 176, 112
S_NB, S_KQ, S_OWO2, S_GO, S_SPIN, S_OI = 85, 3, 78, 30, 31, 79


def one_addrs(k, ns):
    t = V_T
    k.e("s_and_b32 s%d, s%d, 3" % (S_NB, S_LO))
    k.e("s_lshr_b32 s%d, s%d, 2" % (S_KQ, S_HEAD))
    k.e("v_lshrrev_b32 v%d, 4, v0" % t)
    k.e("v_and_b32 v%d, 15, v0" % (t + 1))
    k.e("v_lshlrev_b32 v%d, 2, v%d" % (t + 2, t))
    k.e("v_xor_b32 v%d, v%d, v%d" % (t + 2, t + 2, t + 1))
    k.e("v_lshlrev_b32 v%d, 4, v%d" % (t + 2, t + 2))
    k.e("v_lshl_add_u32 v%d, v%d, 10, v%d" % (V_DWO, t, t + 2))
    k.e("s_lshl_b32 s%d, s%d, 15" % (S_T0, S_W))
    k.e("v_add_u32 v%d, s%d, v%d" % (V_DWO, S_T0, V_DWO))
    for i in range(1, 4):
        k.e("v_add_u32 v%d, %d, v%d" % (V_DWO + i, i * 3072, V_DWO))
    k.e("v_lshrrev_b32 v%d, 5, v0" % t)
    k.e("v_and_b32 v%d, 15, v0" % (t + 1))
    k.e("v_xor_b32 v%d, v%d, v%d" % (t + 1, t + 1, t))
    k.e("v_lshlrev_b32 v%d, 4, v%d" % (t + 1, t + 1))
    k.e("v_and_b32 v%d, 31, v0" % (t + 2))
    k.e("v_lshl_add_u32 v%d, v%d, 8, v%d" % (V_KA, t + 2, t + 1))
    k.e("s_add_u32 s%d, s%d, %d" % (S_T0, S_M8, slot_of(8, ns) * SLOT))
    k.e("v_add_u32 v%d, s%d, v%d" % (V_KA, S_T0, V_KA))
    k.e("v_lshlrev_b32 v%d, 11, v%d" % (V_OUT, t + 2))
    k.e("v_lshl_add_u32 v%d, v%d, 4, v%d" % (V_OUT, t, V_OUT))
    tr_lane_terms(k, t)
    k.e("v_lshl_add_u32 v%d, v%d, 2, v%d" % (t + 5, t, t + 1))
    k.e("v_lshlrev_b32 v%d, 8, v%d" % (t + 5, t + 5))
    k.e("v_lshl_add_u32 v%d, v%d, 6, v%d" % (t + 5, t + 1, t + 5))
    k.e("v_lshl_add_u32 v%d, v%d, 3, v%d" % (V_VA, t + 3, t + 5))
    k.e("v_lshl_add_u32 v%d, v%d, 5, v%d" % (V_VA, t + 2, V_VA))
    k.e("s_add_u32 s%d, s%d, %d" % (S_T0, S_M8, slot_of(9, ns) * SLOT))
    k.e("v_add_u32 v%d, s%d, v%d" % (V_VA, S_T0, V_VA))
    pi_term(k, V_WA, t)
    k.e("v_add_u32 v%d, v%d, v%d" % (V_WA, V_WA, t + 5))
    for nt in range(1, 4):
        k.e("v_xor_b32 v%d, %d, v%d" % (V_WA + nt, nt << 6, V_WA))
    k.e("s_and_b32 s%d, s2, 0xe7" % S_T0)
    k.e("s_lshl_b32 s%d, s%d, 8" % (S_T0, S_T0))
    k.e("s_lshl_b32 s%d, s%d, 4" % (S_T1, S_W))
    k.e("s_add_u32 s%d, s%d, s%d" % (S_T0, S_T0, S_T1))
    k.e("s_lshl_b32 s%d, s%d, 2" % (S_T2, S_NB))
    k.e("s_add_u32 s%d, s%d, s%d" % (S_T0, S_T0, S_T2))
    k.e("v_and_b32 v%d, 3, v0" % t)
    k.e("v_lshlrev_b32 v%d, 11, v%d" % (V_FL1, t))
    k.e("v_add_u32 v%d, s%d, v%d" % (V_FL1, S_T0, V_FL1))
    k.e("s_lshl_b32 s%d, s2, 8" % S_T0)
    k.e("s_add_u32 s%d, s%d, s%d" % (S_T1, S_T0, S_T1))
    k.e("v_lshlrev_b32 v%d, 2, v%d" % (V_PL1, t))
    k.e("v_add_u32 v%d, s%d, v%d" % (V_PL1, S_T1, V_PL1))
    k.e("v_and_b32 v%d, 7, v0" % t)
    k.e("v_lshlrev_b32 v%d, 2, v%d" % (V_PL2, t))
    k.e("s_add_u32 s%d, s%d, 128" % (S_T1, S_T0))
    k.e("v_add_u32 v%d, s%d, v%d" % (V_PL2, S_T1, V_PL2))
    k.e("s_and_b32 s%d, s2, 0xdc" % S_T0)
    k.e("s_or_b32 s%d, s%d, s%d" % (S_T0, S_T0, S_W))
    k.e("s_lshl_b32 s%d, s%d, 8" % (S_T0, S_T0))
    k.e("s_lshl_b32 s%d, s%d, 2" % (S_T1, S_KQ))
    k.e("s_add_u32 s%d, s%d, s%d" % (S_T0, S_T0, S_T1))
    k.e("s_add_u32 s%d, s%d, 128" % (S_T0, S_T0))
    k.e("v_and_b32 v%d, 1, v0" % t)
    k.e("v_lshlrev_b32 v%d, 13, v%d" % (V_FL2, t))
    k.e("v_add_u32 v%d, s%d, v%d" % (V_FL2, S_T0, V_FL2))
    k.e("v_mov_b32 v%d, 1" % V_ONE)
    k.e("s_lshl_b32 s%d, s%d, 1" % (S_GO, S_TG))
    k.e("s_add_u32 s%d, s%d, s%d" % (S_GO, S_GO, S_BR))
    k.e("s_lshl_b32 s%d, s%d, 5" % (S_GO, S_GO))
    k.e("v_and_b32 v%d, 7, v0" % t)
    k.e("v_lshl_add_u32 v%d, v%d, 2, s%d" % (V_GOP, t, S_GO))
    k.e("s_lshl2_add_u32 s%d, s%d, s%d" % (S_GO, S_KQ, S_GO))
    k.e("v_mov_b32 v%d, s%d" % (V_GOA, S_GO))


S_J = 14


def head_order(k, jrot):
    k.e("s_cmp_eq_u32 s%d, 3" % S_TG)
    k.e("s_cselect_b32 s%d, 0, s%d" % (S_T0, S_TG))
    if not jrot:
        k.e("s_mov_b32 s%d, 0" % S_T0)
    for j in range(1, 4):
        k.e("s_add_u32 s%d, s%d, %d" % (S_T1, S_T0, j))
        k.e("s_cmp_gt_u32 s%d, 3" % S_T1)
        k.e("s_cselect_b32 s%d, 3, 0" % S_J)
        k.e("s_sub_u32 s%d, s%d, s%d" % (S_T1, S_T1, S_J))
        k.e("s_add_u32 s%d, s%d, s%d" % (S_T1, S_T1, S_NB))
        k.e("s_and_b32 s%d, s%d, 3" % (S_J + j, S_T1))


def wo_stage(k, st, pol, nslot):
    j = st - 10
    base = slot_of(st, nslot) * SLOT
    tag = "st%d" % st
    ops = []
    for g in range(2):
        for i in range(4):
            def op(g=g, i=i):
                if i == 0:
                    if g == 0:
                        k.e("s_lshl2_add_u32 s%d, s%d, s%d" % (S_T3, S_KQ, S_J + j if j else S_NB))
                        k.e("s_lshl_b32 s%d, s%d, 9" % (S_T3, S_T3))
                        k.e("s_add_u32 s%d, s%d, s%d" % (S_T3, S_T3, S_NB))
                        k.e("s_lshl_b32 s%d, s%d, 8" % (S_OWO2, S_T3))
                    else:
                        k.e("s_add_u32 s%d, s%d, 16384" % (S_OWO2, S_OWO2))
                    k.e("s_add_u32 m0, s%d, %d" % (S_M8, base + 4096 * g))
                    k.e("s_nop 0")
                k.vmem("buffer_load_dwordx4 v%d, %s, s%d offen offset:%d%s lds" % (V_DWO + i, srd(SRD_WO), S_OWO2, i * 1024, pol), tag)
            ops.append(op)
    return ops


def spin(k, name, addr, sr, soff, expect, cmp="ne"):
    k.e("s_mov_b32 s%d, 0x40000" % S_SPIN)
    k.lab(name)
    k.e("buffer_load_dword v%d, v%d, %s, %s offen sc1" % (V_GO, addr, srd(sr), soff))
    k.e("s_sub_u32 s%d, s%d, 1" % (S_SPIN, S_SPIN))
    k.e("s_cbranch_scc1 %s_x" % name)
    k.wait(vm0=True)
    k.e("v_cmp_%s_u32 vcc, %s, v%d" % (cmp, expect, V_GO))
    k.e("s_cbranch_vccnz %s" % name)
    k.lab(name + "_x")


SCHED = {
    5: {"i": "0a 0b 1a 1b 2a 2b 3a 3b", "p": "4a 4b", 0: "5a 5b", 1: "6a 6b", 2: "7a 7b", 3: "8a 8b", 4: "9a 9b", 5: "10a 10b", 6: "11a 11b", 7: "12a 12b"},
    30: {"i": "0a 0b 1a 1b 2a 2b", "p": "8a", 0: "3a 3b 8b", 1: "4a 4b", 2: "5a 5b", 3: "6a 6b", 4: "7a 7b 9a", 5: "9b 10a 10b", 6: "11a 11b", 7: "12a 12b"},
    31: {"i": "0a 0b 1a 1b", "p": "2a 2b 8a", 0: "3a 3b 8b", 1: "4a 4b 9a", 2: "5a 5b 9b", 3: "6a 6b", 4: "7a 7b", 5: "10a 10b", 6: "11a 11b", 7: "12a 12b"},
    32: {"i": "0a 0b 1a 1b 8a 2a 2b 8b", "p": "9a 9b", 0: "3a 3b", 1: "4a 4b", 2: "5a 5b", 3: "6a 6b", 4: "7a 7b", 5: "10a 10b", 6: "11a 11b", 7: "12a 12b"},
    34: {"i": "0a 0b 1a 1b 2a 2b", "p": "8a 8b", 0: "3a 3b", 1: "4a 4b 9a", 2: "5a 5b 9b", 3: "6a 6b", 4: "7a 7b", 5: "10a 10b", 6: "11a 11b", 7: "12a 12b"},
    40: {"i": "0a 0b 1a 1b 2a 2b", "p": "", 0: "3a 3b", 1: "4a 4b", 2: "5a 5b", 3: "6a 6b", 4: "7a 7b", 5: "", 6: "", 7: ""},
    41: {"i": "0a 0b 1a 1b 2a 2b 3a 3b", "p": "", 0: "4a 4b", 1: "5a 5b", 2: "6a 6b", 3: "7a 7b", 4: "", 5: "", 6: "", 7: ""},
    42: {"i": "0a 0b 1a 1b 2a 2b", "p": "3a 3b", 0: "4a 4b", 1: "5a 5b", 2: "6a 6b", 3: "7a 7b", 4: "", 5: "", 6: "", 7: ""},
    33: {"i": "0a 0b 1a 1b 2a 2b", "p": "8a 8b", 0: "3a 3b 9a", 1: "4a 4b 9b", 2: "5a 5b", 3: "6a 6b", 4: "7a 7b", 5: "10a 10b", 6: "11a 11b", 7: "12a 12b"},
}


def gen_one(diag=0, sched=40, nt=0, pad=0, fast=1, rot=0, fk=4, pk=6, oup=3, o2=14, sent=0, ann=0, cw="p", hk=0, hv=2, nm=24, split2=1, jrot=1, bk=2, hs="11223456", wb=0, wbm=0xf8, osc=0):
    k = K(diag)
    pol = " nt" if nt else ""
    t = V_T
    NS = {5: 5, 41: 4, 42: 4}.get(sched, 3)
    made = {}

    def stage(st):
        return dma_stage(k, st, NS, pol if st >= 8 else "") if st < 10 else wo_stage(k, st, "", NS)

    def window(w):
        ops = []
        for g in SCHED[sched][w].split():
            st = int(g[:-1])
            if st not in made:
                made[st] = stage(st)
            ops += made[st][:4] if g[-1] == "a" else made[st][4:]
        return ops
    prologue(k, "L_end")
    if pad:
        k.e("s_memrealtime s[98:99]")
    p1_dma_addrs(k)
    k.e("s_mov_b32 s%d, s%d" % (S_OV, S_OKV))
    if rot:
        if rot == 1:
            k.e("s_lshl1_add_u32 s%d, s%d, s%d" % (S_T0, S_TG, S_LO))
            k.e("s_and_b32 s%d, s%d, 7" % (S_T0, S_T0))
        elif rot == 2:
            k.e("s_lshl_b32 s%d, s%d, 1" % (S_T0, S_TG))
        elif rot == 3:
            k.e("s_lshl_b32 s%d, s%d, 2" % (S_T0, S_TG))
            k.e("s_and_b32 s%d, s%d, 4" % (S_T0, S_T0))
        k.e("s_lshl_b32 s%d, s%d, 19" % (S_T1, S_T0))
        k.e("s_add_u32 s%d, s%d, s%d" % (S_OWQ, S_OWQ, S_T1))
        k.e("s_lshl_b32 s%d, s%d, 7" % (S_T1, S_T0))
        k.e("s_add_u32 s%d, s%d, s%d" % (S_OX, S_OX, S_T1))
    p1_read_addrs(k)
    one_addrs(k, NS)
    if slot_of(10, NS):
        for x in range(4):
            k.e("v_add_u32 v%d, 0x%x, v%d" % (V_WA + x, slot_of(10, NS) * SLOT, V_WA + x))
    k.e("v_lshlrev_b32 v%d, 4, v0" % V_L16)
    k.e("v_lshlrev_b32 v1, 2, v0")
    k.e("v_mov_b32 v2, 0")
    k.e("s_lshl_b32 s%d, s2, 8" % S_T2)
    k.e("s_add_u32 s%d, s%d, 0x%x" % (S_T2, S_T2, WS_F))
    hlp = sched >= 40
    if hlp:
        k.e("s_cmp_eq_u32 s%d, 1" % S_T3)
        k.e("s_cbranch_scc1 L_helper")
    build_srds(k, ["WQ", "X"])
    ini = window("i")
    for op in ini[:8]:
        op()
    sv, k.diag = k.diag, 0
    n0 = len(k.l)
    build_srds(k, ["WS", "OUT", "DBG"] if hlp else ["WS", "K", "V", "WO", "OUT", "DBG"])
    del k.l[n0]
    k.diag = sv
    if not hlp:
        k.vmem("buffer_store_dword v2, v1, %s, s%d offen sc1" % (srd(SRD_WS), S_T2), "zero")
    for op in ini[8:]:
        op()
    k.e("s_mov_b32 s%d, 0x%x" % (S_OI, WS_F))
    k.e("s_getreg_b32 s%d, hwreg(HW_REG_XCC_ID, 0, 3)" % S_ANN4)
    k.e("s_lshl_b32 s%d, s%d, 2" % (S_ANN4, S_ANN4))
    k.e("s_lshl_b32 s%d, 1, s%d" % (S_ANN4, S_ANN4))
    k.e("v_mov_b32 v%d, s%d" % (V_ANN, S_ANN4))
    k.e("s_lshl_b32 s%d, s%d, 2" % (S_ANN4, S_ANN4))
    k.e("s_mov_b32 s%d, 0x11111111" % S_K11)
    head_order(k, jrot)
    k.e("s_lshl2_add_u32 s%d, s%d, s%d" % (S_T0, S_BR, S_TG))
    k.e("s_lshl2_add_u32 s%d, s%d, s%d" % (S_T0, S_T0, S_NB))
    k.e("s_lshl2_add_u32 s%d, s%d, s%d" % (S_T1, S_T0, S_W))
    k.e("s_lshl_b32 s%d, s%d, 6" % (S_T1, S_T1))
    k.e("s_add_u32 s%d, s%d, s%d" % (S_T1, S_T1, S_KQ))
    k.e("s_lshl_b32 s%d, s%d, 10" % (S_T1, S_T1))
    k.e("s_add_u32 s%d, s%d, 0x%x" % (S_OP, S_T1, WS_P))
    k.e("s_mov_b32 s%d, s%d" % (S_CL, S_OP))
    for x in range(4):
        k.e("v_mov_b32 v%d, -1" % (V_S + x))

    def clr():
        k.vmem("buffer_store_dwordx4 %s, v%d, %s, s%d offen sc1" % (vr(V_S, 4), V_L16, srd(SRD_WS), S_CL), "zero")
        k.e("s_add_u32 s%d, s%d, 8192" % (S_CL, S_CL))
    clears = [clr] * 8 if sent else []
    if cw == "i":
        for op in clears:
            op()
    k.wait(vm=("st0",))
    k.e("s_barrier")
    k.stamp()
    for op in p1_reads(k, 0, NS):
        op()
    pend = window("p") + (clears if cw == "p" else [])
    gaps = 12
    for g in range(32):
        st, s = g // 4, g % 4
        fa, fb = V_FA + 16 * (g & 1), V_FB + 4 * (g & 1)
        pre = []
        if s == 3:
            assert not pend
            k.wait(vm=("st%d" % (st + 1), "zero" if st == ann else ""), lg0=True)
            k.e("s_barrier")
            if st in (1, 4, 7):
                k.stamp()
            if st == ann and not hlp:
                k.e("s_cmp_lg_u32 s%d, 0" % S_W)
                k.e("s_cbranch_scc1 L_noann")
                k.e("s_mov_b64 exec, 1")
                k.e("buffer_atomic_add v%d, v%d, %s, 0 offen sc1" % (V_ANN, V_GOA, srd(SRD_DBG)))
                k.e("s_mov_b64 exec, -1")
                k.lab("L_noann")
            if st == 6:
                k.vmem("buffer_load_dword v%d, v%d, %s, 0 offen sc1" % (V_GOD, V_GOP, srd(SRD_DBG)), "go")
                k.vmem("buffer_load_dword v%d, v%d, %s, s%d offen sc1" % (V_GO, V_PL1, srd(SRD_WS), S_OI), "warm")
            if st < 7:
                pre = adv_read_addrs(k, list(range(V_RB, V_RB + 4)) + list(range(V_RA, V_RA + 4)), st, st + 1, NS)
            pend = window(st) + (clears if cw == st else [])
            gaps = 16
        if g < 31:
            rd = p1_reads(k, g + 1, NS)
        else:
            rd = []
            for i in range(8):
                def kr(i=i):
                    if i:
                        k.e("v_xor_b32 v%d, %d, v%d" % (t + (i & 1), i << 5, V_KA))
                    k.ds("ds_read_b128 %s, v%d" % (vr(V_KF + 4 * i, 4), t + (i & 1) if i else V_KA), "k%d" % i)
                rd.append(kr)
        if s == 3 and st < 7:
            seq = [pre[0], rd[0], pre[4], rd[1], rd[2], pre[5], rd[3], rd[4], pre[6], rd[5], rd[6], pre[7], rd[7], rd[8]] + pre[1:4]
            split = [5, 3, 3, 6]
        elif g == 31:
            seq, split = rd, [2, 2, 2, 2]
        else:
            seq = rd
            split = [4, 3, 2, 0]
        pos = 0
        for dt in range(4):
            k.wait(lg=("b%d" % g, "a%d_%d" % (g, dt)))
            mfma(k, V_ACC + 16 * dt, fa + 4 * dt, fb, g == 0)
            for op in seq[pos:pos + split[dt]]:
                op()
            pos += split[dt]
            n = -(-len(pend) // gaps) if (g == 31 or len(pend) * 2 > gaps or gaps % 2 == 0) else 0
            for _ in range(n):
                pend.pop(0)()
            gaps -= 1
    k.e("s_mov_b32 s%d, 0x3e0293ee" % S_C)
    for dt in range(1, 4):
        k.e("v_xor_b32 v%d, %d, v%d" % (V_RA + dt, dt << 6, V_VA))
    for i in range(8):
        if i == 6:
            k.e("s_nop 1")
        for j in range(4):
            k.e("v_cvt_pk_bf16_f32 v%d, v%d, v%d" % (V_QB + 4 * i + j, V_ACC + 8 * i + 2 * j, V_ACC + 8 * i + 2 * j + 1))
        if i >= 1:
            k.wait(lg=("k%d" % (i - 1),))
            mfma(k, V_S, V_KF + 4 * (i - 1), V_QB + 4 * (i - 1), i == 1)
        if pend:
            pend.pop(0)()
    k.wait(lg=("k7",), vm=("st9",))
    k.e("s_nop 0")
    mfma(k, V_S, V_KF + 28, V_QB + 28, False)
    def vreads():
        for dt in range(4):
            for u in range(2):
                for e in range(2):
                    k.ds("ds_read_b64_tr_b16 %s, v%d offset:%d" % (vr(V_FA + 8 * dt + 4 * u + 2 * e, 2), V_RA + dt if dt else V_VA, (16 * u + 8 * e) * 256), "v%d" % dt)
    if NS != 4 and bk != 2:
        if hlp and bk:
            k.e("s_barrier")
        vreads()
    else:
        k.e("s_nop 7")
        k.e("s_nop 3")
    if not hlp:
        pend += stage(13)
    m, m2 = t, t + 1

    def dm():
        if pend:
            pend.pop(0)()
    dm()
    k.e("v_max3_f32 v%d, v%d, v%d, v%d" % (m, V_S, V_S + 1, V_S + 2))
    k.e("v_max3_f32 v%d, v%d, v%d, v%d" % (m2, V_S + 3, V_S + 4, V_S + 5))
    for i in range(6, 14, 4):
        k.e("v_max3_f32 v%d, v%d, v%d, v%d" % (m, m, V_S + i, V_S + i + 1))
        k.e("v_max3_f32 v%d, v%d, v%d, v%d" % (m2, m2, V_S + i + 2, V_S + i + 3))
    k.e("v_max3_f32 v%d, v%d, v%d, v%d" % (m, m, V_S + 14, V_S + 15))
    k.e("v_max_f32 v%d, v%d, v%d" % (m, m, m2))
    k.e("v_mov_b32 v%d, v%d" % (m2, m))
    dm()
    k.e("s_nop 1")
    k.e("v_permlane32_swap_b32 v%d, v%d" % (m, m2))
    k.e("v_max_f32 v%d, v%d, v%d" % (m, m, m2))
    k.e("v_mul_f32 v%d, s%d, v%d" % (m, S_C, m))
    for i in range(16):
        k.e("v_fma_f32 v%d, v%d, s%d, -v%d" % (V_S + i, V_S + i, S_C, m))
    for i in range(16):
        k.e("v_exp_f32 v%d, v%d" % (V_S + i, V_S + i))
        if i & 1:
            dm()
    if NS == 4 or bk == 2:
        k.e("s_barrier")
        vreads()
    k.e("v_add_f32 v%d, v%d, v%d" % (m, V_S, V_S + 1))
    k.e("v_add_f32 v%d, v%d, v%d" % (m2, V_S + 2, V_S + 3))
    for i in range(4, 16, 2):
        k.e("v_add_f32 v%d, v%d, v%d" % (m, m, V_S + i))
        k.e("v_add_f32 v%d, v%d, v%d" % (m2, m2, V_S + i + 1))
    k.e("v_add_f32 v%d, v%d, v%d" % (m, m, m2))
    k.e("v_mov_b32 v%d, v%d" % (m2, m))
    while pend:
        dm()
    k.e("s_nop 1")
    k.e("v_permlane32_swap_b32 v%d, v%d" % (m, m2))
    k.e("v_add_f32 v%d, v%d, v%d" % (m, m, m2))
    k.e("v_rcp_f32 v%d, v%d" % (m, m))
    k.e("s_lshl_b32 s%d, s%d, 4" % (S_T0, S_BR))
    k.e("s_add_u32 s%d, s%d, s%d" % (S_T0, S_T0, S_B))
    k.e("s_lshl_b32 s%d, s%d, 5" % (S_T0, S_T0))
    k.e("s_add_u32 s%d, s%d, s%d" % (S_T1, S_T0, S_HEAD))
    k.e("s_lshl_b32 s%d, s%d, 13" % (S_OX, S_T1))
    k.e("s_add_u32 s%d, s%d, 4096" % (S_T2, S_OX))
    for i in range(16):
        k.e("v_mul_f32 v%d, v%d, v%d" % (V_S + i, V_S + i, m))
    for j in range(8):
        k.e("v_cvt_pk_bf16_f32 v%d, v%d, v%d" % (V_PB + j, V_S + 2 * j, V_S + 2 * j + 1))
    k.wait(vm=("st10", "go"))
    k.e("s_mov_b32 s%d, 0x40000" % S_SPIN)
    k.lab("L_go")
    k.e("v_mul_lo_u32 v%d, v%d, s%d" % (t, V_GOD, S_K11))
    k.e("v_lshrrev_b32 v%d, 28, v%d" % (t, t))
    k.e("v_cmp_gt_u32 vcc, 4, v%d" % t)
    k.e("s_cbranch_vccz L_go_x")
    k.e("buffer_load_dword v%d, v%d, %s, 0 offen sc1" % (V_GOD, V_GOP, srd(SRD_DBG)))
    k.e("s_sub_u32 s%d, s%d, 1" % (S_SPIN, S_SPIN))
    k.e("s_waitcnt vmcnt(0)")
    k.e("s_cbranch_scc0 L_go")
    k.lab("L_go_x")
    k.e("v_readlane_b32 s%d, v%d, s%d" % (S_FAST, V_GOD, S_KQ))
    k.e("s_barrier")
    k.stamp()
    k.e("s_cmp_eq_u32 s%d, s%d" % (S_FAST, S_ANN4 if fast else S_K11))
    G = (32 - nm) // 4

    def wreads(ks):
        fa = V_FA + 16 * (ks & 1)
        if ks >= nm:
            nt, hf = divmod(ks - nm, G)
            d = (slot_of(10 + (nm + 4 * hf) // 8, NS) - slot_of(10 + nm // 8, NS)) * SLOT
            assert 0 <= d <= SLOT or (d == 2 * SLOT)
            ra = V_WA + nt if d < 2 * SLOT else V_RA + nt
            return [lambda j=j, e=e: k.ds("ds_read_b64_tr_b16 %s, v%d offset:%d" % (vr(fa + 4 * j + 2 * e, 2), ra, (d & SLOT) + (4 * (hf & 1) + j) * 4096 + e * 2048), "w%d_%d" % (ks, j))
                    for j in range(4) for e in range(2)]
        return [lambda nt=nt, e=e: k.ds("ds_read_b64_tr_b16 %s, v%d offset:%d" % (vr(fa + 4 * nt + 2 * e, 2), V_WA + nt, (ks % 8) * 4096 + e * 2048), "w%d_%d" % (ks, nt))
                for nt in range(4) for e in range(2)]

    def ocvt(i, sc):
        def f():
            for j in range(4):
                k.e("v_cvt_pk_bf16_f32 v%d, v%d, v%d" % (V_QB + 4 * i + j, V_ACC + 8 * i + 2 * j, V_ACC + 8 * i + 2 * j + 1))
            k.vmem("buffer_store_dwordx4 %s, v%d, %s, s%d offen offset:%d%s" % (vr(V_QB + 4 * i, 4), V_L16, srd(SRD_WS), S_OX if i < 4 else S_T2, (i & 3) * 1024, sc), "ost")
        return f

    def pcvt(pc):
        def f():
            for j in range(4):
                k.e("v_cvt_pk_bf16_f32 v%d, v%d, v%d" % (V_ACC + 4 * pc + j, V_AC2 + 8 * pc + 2 * j, V_AC2 + 8 * pc + 2 * j + 1))
            k.vmem("buffer_store_dwordx4 %s, v%d, %s, s%d offen sc1" % (vr(V_ACC + 4 * pc, 4), V_L16, srd(SRD_WS), S_OP), "pst%d" % (pc >> 2))
            if pc < 7:
                k.e("s_add_u32 s%d, s%d, 8192" % (S_OP, S_OP))
        return f

    def p2step(ks, extra=None):
        extra = extra or {}
        fa = V_FA + 16 * (ks & 1)
        rd = []
        if ks < 31:
            rd = wreads(ks + 1)
            if ks % 8 == 7 and ks < nm:
                adv = adv_read_addrs(k, list(range(V_WA, V_WA + 4)), 10 + ks // 8, 11 + ks // 8, NS)
                rd = [adv[0], rd[0], rd[1], adv[1], rd[2], rd[3], adv[2], rd[4], rd[5], adv[3], rd[6], rd[7]]
        n = len(rd) // 4
        for j in range(4):
            kk, nt = (ks, j) if ks < nm else (nm + 4 * ((ks - nm) % G) + j, (ks - nm) // G)
            k.wait(lg=("w%d_%d" % (ks, j),), vm=("o%d" % kk,))
            if ks < 8:
                mfma(k, V_AC2 + 16 * nt, fa + 4 * j, V_QB + 4 * ks, ks == 0)
            else:
                mfma(k, V_AC2 + 16 * nt, fa + 4 * j, V_ACC + 4 * (kk - 8), False)
            lo, hi = ([0, 3, 6, 8, 8] if n == 2 else [0, 3, 6, 9, 12])[j:j + 2]
            for op in rd[lo:hi]:
                op()
            for op in extra.get(j, ()):
                op()

    def pv_and_publish(sc):
        for dt in range(4):
            k.wait(lg=("v%d" % dt,))
            mfma(k, V_ACC + 16 * dt, V_FA + 8 * dt, V_PB, True)
            if dt == 3:
                ocvt(1, sc)()
            mfma(k, V_ACC + 16 * dt, V_FA + 8 * dt + 4, V_PB + 4, False)
            if dt == 2:
                ocvt(0, sc)()
                for op in wreads(0):
                    op()
        ocvt(2, sc)()
        p2step(0, {0: [ocvt(3, sc)], 2: [ocvt(4, sc)]})
        p2step(1, {0: [ocvt(5, sc)], 2: [ocvt(6, sc)]})
        p2step(2, {0: [ocvt(7, sc)]})
        for ks in range(3, fk):
            p2step(ks)
        k.wait(vm0=True)
        k.e("s_mov_b64 exec, 15")
        k.e("buffer_store_dword v%d, v%d, %s, s%d offen%s" % (V_ONE, V_FL1, srd(SRD_WS), S_OI, sc))
        k.e("s_mov_b64 exec, -1")
    k.e("s_cbranch_scc1 L_ofast")
    sv = list(k.vm), list(k.lg)
    pv_and_publish(" sc1")
    k.e("s_branch L_odone")
    k.lab("L_ofast")
    k.vm, k.lg = sv
    pv_and_publish("")
    k.lab("L_odone")
    assert pk <= 7
    if not hlp:
        k.e("s_barrier")
    k.stamp()
    k.e("s_and_b32 s%d, s%d, 0x%x" % (S_OX, S_OX, 0xffffffff ^ (3 << 13)))
    for j in range(1, 4):
        k.e("s_lshl_b32 s%d, s%d, 13" % (S_T0, S_J + j))
        k.e("s_add_u32 s%d, s%d, s%d" % (S_OB + 2 * j, S_T0, S_OX))
        k.e("s_add_u32 s%d, s%d, 4096" % (S_OB + 2 * j + 1, S_OB + 2 * j))
    for ks in range(fk, pk):
        p2step(ks, {0: [lambda: k.vmem("buffer_load_dword v%d, v%d, %s, s%d offen sc1" % (V_GO, V_PL1, srd(SRD_WS), S_OI), "poll")]} if ks == pk - 1 else None)
    if pk > fk:
        k.wait(vm0=True)
        k.e("v_cmp_ne_u32 vcc, 1, v%d" % V_GO)
        k.e("s_cbranch_vccz L_s1_x")
    spin(k, "L_s1", V_PL1, SRD_WS, "s%d" % S_OI, "1")
    k.stamp()
    old = [lambda ks=ks: k.vmem("buffer_load_dwordx4 %s, v%d, %s, s%d offen offset:%d sc1" % (vr(V_ACC + 4 * (ks - 8), 4), V_L16, srd(SRD_WS), S_OB + 2 * (ks // 8) + ((ks >> 2) & 1), (ks & 3) * 1024), "o%d" % ks)
           for ks in range(8, 32)]
    for _ in range(oup):
        old.pop(0)()
    k.e("s_lshl2_add_u32 s%d, s%d, s%d" % (S_T0, S_BR, S_TG))
    k.e("s_lshl2_add_u32 s%d, s%d, s%d" % (S_T0, S_T0, S_NB))
    k.e("s_lshl_b32 s%d, s%d, 3" % (S_T0, S_T0))
    k.e("s_add_u32 s%d, s%d, s%d" % (S_T0, S_T0, S_KQ))
    k.e("s_lshl2_add_u32 s%d, s%d, s%d" % (S_T0, S_T0, S_W))
    k.e("s_lshl_b32 s%d, s%d, 13" % (S_T0, S_T0))
    k.e("s_add_u32 s%d, s%d, 0x%x" % (S_OWQ, S_T0, WS_P))
    k.e("s_add_u32 s%d, s%d, 4096" % (S_OKV, S_OWQ))
    k.e("s_lshr_b32 s%d, s%d, 1" % (S_T0, S_KQ))
    k.e("s_lshl2_add_u32 s%d, s%d, s%d" % (S_T0, S_TG, S_T0))
    k.e("s_lshl_b32 s%d, s%d, 6" % (S_T0, S_T0))
    k.e("s_add_u32 s%d, s%d, s%d" % (S_T0, S_T0, S_BR))
    k.e("s_lshl2_add_u32 s%d, s%d, s%d" % (S_T0, S_T0, S_NB))
    k.e("s_and_b32 s%d, s%d, 1" % (S_T1, S_KQ))
    k.e("s_lshl1_add_u32 s%d, s%d, s%d" % (S_T0, S_T0, S_T1))
    k.e("s_lshl2_add_u32 s%d, s%d, s%d" % (S_T0, S_T0, S_W))
    k.e("s_lshl_b32 s%d, s%d, 5" % (S_T3, S_T0))
    k.e("s_mov_b32 s%d, 0x3f80" % S_T0)
    k.e("s_mov_b32 s%d, 0x3f800000" % S_T1)
    for ks in range(pk, 32):
        ex = {}
        if old:
            ex[0] = [old.pop(0)]
        if old and ks < o2:
            ex[2] = [old.pop(0)]
        if ks >= nm + G and (ks - nm) % G == 0:
            assert not old
            ex = {1: [pcvt(2 * ((ks - nm) // G) - 2)], 3: [pcvt(2 * ((ks - nm) // G) - 1)]}
        if ks == nm and nm == 16:
            ex.setdefault(1, []).extend(lambda x=x: k.e("v_add_u32 v%d, 0x%x, v%d" % (V_RA + x, 2 * SLOT, V_WA + x)) for x in range(4))
        assert ks >= 8 or len(old) >= 8
        if hlp and ks in (7, 15, 23 if nm == 24 else 17):
            k.e("s_barrier")
        p2step(ks, ex)
        if ks == 8:
            k.stamp()
    k.stamp()
    k.e("s_nop 7")
    k.e("s_nop 7")
    pcvt(6)()
    pcvt(7)()

    def pload(q):
        k.vmem("buffer_load_dwordx4 %s, v%d, %s, s%d offen offset:%d sc1" % (vr(V_PL + 4 * q, 4), V_L16, srd(SRD_WS), S_OWQ if q < 4 else S_OKV, (q & 3) * 1024), "p%d" % q)
    if not sent:
        if split2:
            k.wait(vm=("pst0",))
            k.e("s_mov_b64 exec, 1")
            k.vmem("buffer_store_dword v%d, v%d, %s, s%d offen sc1" % (V_ONE, V_FL2, srd(SRD_WS), S_OI), "fl")
        k.wait(vm=("pst1",))
        k.e("s_mov_b64 exec, %d" % (2 if split2 else 3))
        k.e("buffer_store_dword v%d, v%d, %s, s%d offen sc1" % (V_ONE, V_FL2, srd(SRD_WS), S_OI))
        k.e("s_mov_b64 exec, -1")
        k.stamp()
        spin(k, "L_s2", V_PL2, SRD_WS, "s%d" % S_OI, "1")
        k.stamp()
        for q in range(8):
            pload(q)
    else:
        k.stamp()
        for q in range(8):
            pload(q)
        k.e("s_mov_b32 s%d, 0x40000" % S_SPIN)
        k.lab("L_s2")
        k.wait(vm0=True)
        k.e("s_mov_b32 s%d, 0" % S_FAST)
        for q in range(8):
            r = V_PL + 4 * q
            k.e("v_max3_u32 v%d, v%d, v%d, v%d" % (t, r, r + 1, r + 2))
            k.e("v_max_u32 v%d, v%d, v%d" % (t, t, r + 3))
            k.e("v_cmp_eq_u32 vcc, -1, v%d" % t)
            k.e("s_cbranch_vccz L_s2_%d" % q)
            pload(q)
            k.e("s_mov_b32 s%d, 1" % S_FAST)
            k.lab("L_s2_%d" % q)
        k.e("s_sub_u32 s%d, s%d, s%d" % (S_SPIN, S_SPIN, S_FAST))
        k.e("s_cbranch_scc1 L_s2_x")
        k.e("s_cmp_eq_u32 s%d, 1" % S_FAST)
        k.e("s_cbranch_scc1 L_s2")
        k.lab("L_s2_x")
        k.wait(vm0=True)
        k.stamp()
    for q in range(8):
        k.wait(vm=("p%d" % q,))
        for j in range(4):
            if q == 0:
                k.e("v_lshlrev_b32 v%d, 16, v%d" % (V_FA + 2 * j, V_PL + j))
                k.e("v_and_b32 v%d, 0xffff0000, v%d" % (V_FA + 2 * j + 1, V_PL + j))
            else:
                k.e("v_dot2_f32_bf16 v%d, v%d, s%d, v%d" % (V_FA + 2 * j, V_PL + 4 * q + j, S_T0, V_FA + 2 * j))
                k.e("v_dot2_f32_bf16 v%d, v%d, s%d, v%d" % (V_FA + 2 * j + 1, V_PL + 4 * q + j, S_T1, V_FA + 2 * j + 1))
    k.e("s_nop 2")
    for j in range(4):
        k.e("v_cvt_pk_bf16_f32 v%d, v%d, v%d" % (V_QB + j, V_FA + 2 * j, V_FA + 2 * j + 1))
    k.vmem("buffer_store_dwordx4 %s, v%d, %s, s%d offen" % (vr(V_QB, 4), V_OUT, srd(SRD_OUT), S_T3) + ("", " sc1", " nt", " sc0 sc1")[osc], "out")
    k.stamp()
    k.dump_stamps(0)
    if pad:
        k.lab("L_pad")
        k.e("s_memrealtime s[96:97]")
        k.e("s_waitcnt lgkmcnt(0)")
        k.e("s_sub_u32 s96, s96, s98")
        k.e("s_cmp_lt_u32 s96, %d" % (pad * 100))
        k.e("s_cbranch_scc1 L_pad")
    k.lab("L_end")
    k.e("s_endpgm")
    if hlp:
        k.lab("L_helper")
        k.diag, k.vm, k.lg = 0, [], []
        build_srds(k, ["WS", "K", "V", "WO", "DBG"])
        k.e("s_getreg_b32 s%d, hwreg(HW_REG_XCC_ID, 0, 3)" % S_ANN4)
        k.e("s_lshl_b32 s%d, s%d, 2" % (S_ANN4, S_ANN4))
        k.e("s_lshl_b32 s%d, 1, s%d" % (S_ANN4, S_ANN4))
        k.e("v_mov_b32 v%d, s%d" % (V_ANN, S_ANN4))
        k.e("s_cmp_lg_u32 s%d, 0" % S_W)
        k.e("s_cbranch_scc1 L_noann")
        k.e("buffer_store_dword v2, v1, %s, s%d offen sc1" % (srd(SRD_WS), S_T2))
        k.e("s_waitcnt vmcnt(0)")
        k.e("s_mov_b64 exec, 1")
        k.e("buffer_atomic_add v%d, v%d, %s, 0 offen sc1" % (V_ANN, V_GOA, srd(SRD_DBG)))
        k.e("s_mov_b64 exec, -1")
        k.lab("L_noann")
        head_order(k, jrot)
        K8, V9 = stage(8), stage(9)
        if NS == 4:
            at = {5: V9, 6: stage(10), 7: stage(11), 8: stage(12), 9: stage(13)}
            need = {8: ("st8",), 9: ("st9",), 10: ("st10",), 11: ("st11",), 12: ("st12",), 13: ("st13",)}
            at[hk - 1] = at.get(hk - 1, []) + K8[:4]
            at[hv - 1] = at.get(hv - 1, []) + K8[4:]
        else:
            at = {6: stage(10), 7: stage(11), 8: stage(12), 9: stage(13)}
            need = {8: ("st8", "st9"), 9: ("st10",), 10: ("st11",), 11: ("st12",), 12: ("st13",)}
            if bk:
                need = {8: ("st8", "st9"), 10: ("st10",), 11: ("st11",), 12: ("st12",), 13: ("st13",)}
            if bk == 2:
                need.update({8: ("st8",), 9: ("st9",)})
            kv = K8 + V9
            for i, c in enumerate(hs):
                at[int(c) - 1] = [op for op in at.get(int(c) - 1, []) if op in kv] + kv[2 * i:2 * i + 2] + [op for op in at.get(int(c) - 1, []) if op not in kv]
        for b in range(-1, max(need) + 1):
            if b >= 0:
                k.wait(vm=need.get(b, ()))
                k.e("s_barrier")
            for op in at.get(b, ()):
                op()
            if wb and b == wb:
                k.e("s_and_b32 s%d, s2, 0x%x" % (S_T2, wbm))
                k.e("s_or_b32 s%d, s%d, s%d" % (S_T2, S_T2, S_W))
                k.e("s_cmp_eq_u32 s%d, 0" % S_T2)
                k.e("s_cbranch_scc1 L_wb")
        k.e("s_endpgm")
        if wb:
            k.lab("L_wb")
            k.e("s_waitcnt vmcnt(0)")
            k.e("buffer_wbl2 sc1")
            for b in range(wb + 1, max(need) + 1):
                k.e("s_barrier")
            k.e("s_waitcnt vmcnt(0)")
            k.e("s_endpgm")
    kt = kernel_text(NAME + "_kernel", k, 256, 256)
    return finish(["; @launch grid=(256,1,1) block=(%d,1,1) lds=163840" % (512 if hlp else 256)], [kt])


if __name__ == "__main__":
    mode, out = sys.argv[1], sys.argv[2]
    kw = dict(a.split("=") for a in sys.argv[3:])
    kw = {a: int(b) if b.isdigit() and a != "hs" else b for a, b in kw.items()}
    open(out, "w").write(globals()["gen_" + mode](**kw))
```

```python
import sys

NAME = "concat_heads__gqa_block_cached__mha_block_cached__near_ridge"
HDR = open("cdna_kernels/%s.s.ref" % NAME).read().split("; Override launch")[0]

WS_O = 0
WS_P = 8 << 20
WS_DIAG = 24 << 20
WS_BYTES = 32 << 20

S_WG = 2
SRD_X, SRD_WQ, SRD_K, SRD_V, SRD_WO, SRD_WS, SRD_OUT, SRD_DBG = 32, 36, 40, 44, 48, 52, 56, 60
S_BR, S_HG, S_LO, S_TG, S_W, S_B, S_HEAD = 64, 65, 66, 67, 68, 69, 70
S_T0, S_T1, S_T2, S_T3 = 71, 72, 73, 74
S_OWQ, S_OX, S_OKV, S_OWO, S_OO, S_OP = 75, 76, 77, 78, 79, 80
S_MW, S_MX, S_M8 = 81, 82, 83
S_C = 84
S_OV = 84
S_STAMP = 86
SLOT = 32768


def srd(r):
    return "s[%d:%d]" % (r, r + 3)


def vr(b, n=1, a=False):
    p = "a" if a else "v"
    return "%s%d" % (p, b) if n == 1 else "%s[%d:%d]" % (p, b, b + n - 1)


class K:
    def __init__(self, diag=False):
        self.l = []
        self.vm = []
        self.lg = []
        self.diag = diag
        self.nstamp = 0

    def e(self, s):
        self.l.append("    " + s)

    def lab(self, s):
        self.l.append(s + ":")

    def c(self, s):
        self.l.append("    ; " + s)

    def vmem(self, s, tag):
        self.e(s)
        self.vm.append(tag)

    def ds(self, s, tag):
        self.e(s)
        self.lg.append(tag)

    def _cnt(self, q, tags, cap):
        idx = [i for i, t in enumerate(q) if t in tags]
        if not idx:
            return None
        n = len(q) - 1 - max(idx)
        n = min(n, cap)
        del q[: len(q) - n]
        return n

    def wait(self, vm=(), lg=(), vm0=False, lg0=False):
        p = []
        if vm0:
            self.vm = []
            p.append("vmcnt(0)")
        else:
            n = self._cnt(self.vm, vm, 63)
            if n is not None:
                p.append("vmcnt(%d)" % n)
        if lg0:
            self.lg = []
            p.append("lgkmcnt(0)")
        else:
            n = self._cnt(self.lg, lg, 15)
            if n is not None:
                p.append("lgkmcnt(%d)" % n)
        if p:
            self.e("s_waitcnt " + " ".join(p))

    def stamp(self):
        if not self.diag:
            return
        r = S_STAMP + self.nstamp
        assert r <= 100
        self.nstamp += 1
        self.e("s_memrealtime s[30:31]" if self.diag == 1 else "s_memtime s[30:31]")
        self.wait(lg0=True)
        self.e("s_mov_b32 s%d, s30" % r)

    def dump_stamps(self, kidx):
        if not self.diag:
            return
        self.e("s_lshl_b32 s%d, s2, 2" % S_T0)
        self.e("s_add_u32 s%d, s%d, s%d" % (S_T0, S_T0, S_W))
        self.e("s_lshl_b32 s%d, s%d, 6" % (S_T0, S_T0))
        self.e("s_add_u32 s%d, s%d, %d" % (S_T0, S_T0, WS_DIAG + kidx * 131072))
        self.e("v_mov_b32 v1, 0")
        self.e("s_memtime s[30:31]")
        self.wait(lg0=True)
        self.e("s_sub_u32 s101, s30, s101")
        for i in list(range(self.nstamp)) + [15]:
            self.e("v_mov_b32 v2, s%d" % (S_STAMP + i))
            self.e("buffer_store_dword v2, v1, %s, s%d offen offset:%d" % (srd(SRD_WS), S_T0, 4 * i))
            self.e("s_nop 1")


def prologue(k, endlab):
    k.e("s_cmp_ge_u32 s2, 256")
    k.e("s_cbranch_scc1 %s" % endlab)
    k.e("s_load_dwordx16 s[4:19], s[0:1], 0")
    k.e("s_load_dwordx8 s[20:27], s[0:1], 64")
    k.e("s_load_dwordx2 s[28:29], s[0:1], 96")
    if k.diag:
        k.e("%s s[%d:%d]" % ("s_memrealtime" if k.diag == 1 else "s_memtime", S_STAMP, S_STAMP + 1))
        k.e("s_memtime s[100:101]")
        k.nstamp = 1
    k.e("v_lshrrev_b32 v1, 6, v0")
    k.e("v_and_b32 v0, 63, v0")
    k.e("s_and_b32 s%d, s2, 3" % S_HG)
    k.e("v_readfirstlane_b32 s%d, v1" % S_W)
    k.e("s_nop 0")
    k.e("s_lshr_b32 s%d, s%d, 2" % (S_T3, S_W))
    k.e("s_and_b32 s%d, s%d, 3" % (S_W, S_W))
    k.e("s_bfe_u32 s%d, s2, 0x10002" % S_BR)
    k.e("s_bfe_u32 s%d, s2, 0x30003" % S_LO)
    k.e("s_bfe_u32 s%d, s2, 0x20006" % S_TG)
    k.e("s_lshl_b32 s%d, s%d, 3" % (S_HEAD, S_HG))
    k.e("s_add_u32 s%d, s%d, s%d" % (S_HEAD, S_HEAD, S_LO))
    k.e("s_lshl_b32 s%d, s%d, 2" % (S_B, S_TG))
    k.e("s_add_u32 s%d, s%d, s%d" % (S_B, S_B, S_W))
    k.e("s_lshl_b32 s%d, s%d, 12" % (S_MW, S_W))
    k.e("s_add_u32 s%d, s%d, 16384" % (S_MX, S_MW))
    k.e("s_lshl_b32 s%d, s%d, 13" % (S_M8, S_W))


def build_srds(k, which):
    k.e("s_waitcnt lgkmcnt(0)")
    if k.diag:
        k.e("s_mov_b32 s101, s100")
    k.stamp()
    k.e("s_cmp_eq_u32 s%d, 0" % S_BR)
    src = {"X": (4, 14), "K": (6, 16), "V": (8, 18), "WQ": (10, 20), "WO": (12, 22)}
    reg = {"X": SRD_X, "K": SRD_K, "V": SRD_V, "WQ": SRD_WQ, "WO": SRD_WO}
    size = {"X": (1 << 19,) * 2, "K": (1 << 20, 1 << 22), "V": (1 << 20, 1 << 22), "WQ": (1 << 22,) * 2, "WO": (1 << 22,) * 2}
    for n in which:
        if n in src:
            a, b = src[n]
            r = reg[n]
            k.e("s_cselect_b64 s[%d:%d], s[%d:%d], s[%d:%d]" % (r, r + 1, a, a + 1, b, b + 1))
            if size[n][0] == size[n][1]:
                k.e("s_mov_b32 s%d, 0x%x" % (r + 2, size[n][0]))
            else:
                k.e("s_mov_b32 s%d, 0x%x" % (r + 3, size[n][0]))
                k.e("s_cselect_b32 s%d, s%d, 0x%x" % (r + 2, r + 3, size[n][1]))
            k.e("s_mov_b32 s%d, 0x20000" % (r + 3))
        else:
            r, p, sz = {"WS": (SRD_WS, 28, WS_BYTES), "OUT": (SRD_OUT, 24, 1 << 20), "DBG": (SRD_DBG, 26, 256)}[n]
            k.e("s_mov_b64 s[%d:%d], s[%d:%d]" % (r, r + 1, p, p + 1))
            k.e("s_mov_b32 s%d, 0x%x" % (r + 2, sz))
            k.e("s_mov_b32 s%d, 0x20000" % (r + 3))


V_DWQ, V_DX, V_DK, V_DV, V_DWO = 4, 8, 12, 16, 20
V_RA, V_RB = 24, 28
V_L16 = 17
V_T = 32
V_FA = 40
V_FB = 72
V_ACC = 80
V_QB = 144
V_S = 176
V_KF = 192
V_PB = 224


def p1_dma_addrs(k):
    t = V_T
    k.e("v_lshrrev_b32 v%d, 4, v0" % t)
    k.e("v_and_b32 v%d, 15, v0" % (t + 1))
    k.e("v_lshlrev_b32 v%d, 2, v%d" % (t + 2, t))
    k.e("v_xor_b32 v%d, v%d, v%d" % (t + 2, t + 2, t + 1))
    k.e("v_lshlrev_b32 v%d, 4, v%d" % (t + 2, t + 2))
    k.e("v_lshl_add_u32 v%d, v%d, 13, v%d" % (V_DWQ, t, t + 2))
    k.e("s_lshl_b32 s%d, s%d, 17" % (S_T0, S_W))
    k.e("v_add_u32 v%d, s%d, v%d" % (V_DWQ, S_T0, V_DWQ))
    for i in range(1, 4):
        k.e("v_add_u32 v%d, %d, v%d" % (V_DWQ + i, i * (32768 - 1024), V_DWQ))
    k.e("v_lshl_add_u32 v%d, v%d, 8, v%d" % (V_DV, t, t + 2))
    k.e("v_xor_b32 v%d, v%d, v%d" % (t + 2, t, t + 1))
    k.e("v_lshlrev_b32 v%d, 4, v%d" % (t + 2, t + 2))
    k.e("v_lshl_add_u32 v%d, v%d, 8, v%d" % (V_DK, t, t + 2))
    for i in range(1, 4):
        k.e("v_xor_b32 v%d, %d, v%d" % (V_DK + i, i << 6, V_DK))
    k.e("v_lshrrev_b32 v%d, 3, v0" % t)
    k.e("v_and_b32 v%d, 7, v0" % (t + 1))
    k.e("v_lshrrev_b32 v%d, 1, v%d" % (t + 2, t))
    k.e("v_xor_b32 v%d, v%d, v%d" % (t + 2, t + 2, t + 1))
    k.e("v_lshlrev_b32 v%d, 4, v%d" % (t + 2, t + 2))
    k.e("v_lshl_add_u32 v%d, v%d, 10, v%d" % (V_DX, t, t + 2))
    k.e("v_xor_b32 v%d, 64, v%d" % (V_DX + 1, V_DX))
    k.e("v_add_u32 v%d, %d, v%d" % (V_DX + 2, 2 * 7168, V_DX))
    k.e("v_add_u32 v%d, %d, v%d" % (V_DX + 3, 3 * 7168, V_DX + 1))
    k.e("v_add_u32 v%d, %d, v%d" % (V_DX + 1, 7168, V_DX + 1))
    k.e("s_lshl_b32 s%d, s%d, 8" % (S_OWQ, S_HEAD))
    k.e("s_lshl_b32 s%d, s%d, 15" % (S_OX, S_B))
    k.e("s_lshr_b32 s%d, s%d, 2" % (S_T0, S_HEAD))
    k.e("s_lshl_b32 s%d, s%d, 3" % (S_T1, S_B))
    k.e("s_add_u32 s%d, s%d, s%d" % (S_T0, S_T0, S_T1))
    k.e("s_lshl_b32 s%d, s%d, 5" % (S_T1, S_B))
    k.e("s_add_u32 s%d, s%d, s%d" % (S_T1, S_T1, S_HEAD))
    k.e("s_cmp_eq_u32 s%d, 0" % S_BR)
    k.e("s_cselect_b32 s%d, s%d, s%d" % (S_OKV, S_T0, S_T1))
    k.e("s_lshl_b32 s%d, s%d, 13" % (S_OKV, S_OKV))


def p2_dma_addrs(k):
    t = V_T
    k.e("v_lshrrev_b32 v%d, 3, v0" % t)
    k.e("v_and_b32 v%d, 7, v0" % (t + 1))
    k.e("v_lshlrev_b32 v%d, 1, v%d" % (t + 2, t))
    k.e("v_and_b32 v%d, 4, v%d" % (t + 2, t + 2))
    k.e("v_xor_b32 v%d, v%d, v%d" % (t + 2, t + 2, t + 1))
    k.e("v_lshlrev_b32 v%d, 4, v%d" % (t + 2, t + 2))
    k.e("v_lshl_add_u32 v%d, v%d, 10, v%d" % (V_DWO, t, t + 2))
    k.e("s_lshl_b32 s%d, s%d, 16" % (S_T0, S_W))
    k.e("v_add_u32 v%d, s%d, v%d" % (V_DWO, S_T0, V_DWO))
    for i in range(1, 4):
        k.e("v_add_u32 v%d, %d, v%d" % (V_DWO + i, i * 7168, V_DWO))
    k.e("s_lshl_b32 s%d, s%d, 20" % (S_OWO, S_HG))
    k.e("s_lshl_b32 s%d, s%d, 7" % (S_T0, S_LO))
    k.e("s_add_u32 s%d, s%d, s%d" % (S_OWO, S_OWO, S_T0))


def slot_of(st, nslot):
    if nslot == 5:
        return st % 5
    if nslot == 4:
        return st % 4 if st < 8 else {8: 4, 9: 0, 10: 1, 11: 2, 12: 3, 13: 4}[st]
    return st % 3 if st < 8 else {8: 3, 9: 4, 10: 2, 11: 0, 12: 1, 13: 3}[st]


def dma_stage(k, st, nslot, pol=""):
    base = slot_of(st, nslot) * SLOT
    tag = "st%d" % st
    ops = []

    def grp(m_sreg, m_add, sr, voffs, soff, adv, wrap=0):
        def first():
            k.e("s_add_u32 m0, s%d, %d" % (m_sreg, base + m_add))
            k.e("s_nop 0")
            k.vmem("buffer_load_dwordx4 v%d, %s, s%d offen%s lds" % (voffs[0], srd(sr), soff, pol), tag)
        ops.append(first)
        for i in range(1, 4):
            def nxt(i=i):
                k.vmem("buffer_load_dwordx4 v%d, %s, s%d offen offset:%d%s lds" % (voffs[i], srd(sr), soff, i * 1024, pol), tag)
                if i == 3 and adv:
                    k.e("s_add_u32 s%d, s%d, %d" % (soff, soff, adv))
                    if wrap:
                        k.e("s_bitset0_b32 s%d, %d" % (soff, wrap))
            ops.append(nxt)

    if st < 8:
        grp(S_MW, 0, SRD_WQ, [V_DWQ + i for i in range(4)], S_OWQ, 64 * 8192, 22)
        grp(S_MX, 0, SRD_X, [V_DX + i for i in range(4)], S_OX, 128, 10)
    elif st == 8:
        grp(S_M8, 0, SRD_K, [V_DK + i for i in range(4)], S_OKV, 4096)
        grp(S_M8, 4096, SRD_K, [V_DK + i for i in range(4)], S_OKV, -4096 & 0xffffffff)
    elif st == 9:
        grp(S_M8, 0, SRD_V, [V_DV] * 4, S_OV, 4096)
        grp(S_M8, 4096, SRD_V, [V_DV] * 4, S_OV, 0)
    else:
        grp(S_M8, 0, SRD_WO, [V_DWO + i for i in range(4)], S_OWO, 4 * 8192)
        grp(S_M8, 4096, SRD_WO, [V_DWO + i for i in range(4)], S_OWO, 256 * 1024 - 4 * 8192)
    return ops


def tr_lane_terms(k, t):
    k.e("v_lshrrev_b32 v%d, 5, v0" % t)
    k.e("v_bfe_u32 v%d, v0, 2, 2" % (t + 1))
    k.e("v_bfe_u32 v%d, v0, 4, 1" % (t + 2))
    k.e("v_and_b32 v%d, 3, v0" % (t + 3))


def pi_term(k, dst, t):
    k.e("v_and_b32 v%d, 1, v0" % dst)
    k.e("v_lshlrev_b32 v%d, 4, v%d" % (dst, dst))
    k.e("v_and_b32 v%d, 2, v0" % (t + 4))
    k.e("v_lshl_add_u32 v%d, v%d, 2, v%d" % (dst, t + 4, dst))
    k.e("v_lshl_add_u32 v%d, v%d, 5, v%d" % (dst, t + 2, dst))


def p1_read_addrs(k):
    t = V_T
    tr_lane_terms(k, t)
    pi_term(k, V_RA, t)
    k.e("v_lshl_add_u32 v%d, v%d, 3, v%d" % (t + 4, t, t + 1))
    k.e("v_lshl_add_u32 v%d, v%d, 8, v%d" % (V_RA, t + 4, V_RA))
    k.e("v_lshl_add_u32 v%d, v%d, 6, v%d" % (V_RA, t + 1, V_RA))
    for dt in range(1, 4):
        k.e("v_xor_b32 v%d, %d, v%d" % (V_RA + dt, dt << 6, V_RA))
    k.e("v_and_b32 v%d, 31, v0" % (t + 4))
    k.e("v_bfe_u32 v%d, v0, 1, 3" % (t + 5))
    k.e("v_xor_b32 v%d, v%d, v%d" % (t + 5, t + 5, t))
    k.e("v_lshlrev_b32 v%d, 4, v%d" % (t + 5, t + 5))
    k.e("v_lshl_add_u32 v%d, v%d, 7, v%d" % (V_RB, t + 4, t + 5))
    k.e("v_add_u32 v%d, s%d, v%d" % (V_RB, S_MX, V_RB))
    for s in range(1, 4):
        k.e("v_xor_b32 v%d, %d, v%d" % (V_RB + s, s << 5, V_RB))


def mfma(k, d, a, b, first, aa=False, ba=False):
    k.e("v_mfma_f32_32x32x16_bf16 %s, %s, %s, %s" % (vr(d, 16), vr(a, 4, aa), vr(b, 4, ba), "0" if first else vr(d, 16)))


def p1_reads(k, g, nslot):
    st, s = g // 4, g % 4
    fa, fb = V_FA + 16 * (g & 1), V_FB + 4 * (g & 1)
    ops = [lambda: k.ds("ds_read_b128 %s, v%d" % (vr(fb, 4), V_RB + s), "b%d" % g)]
    for dt in range(4):
        for e in range(2):
            ops.append(lambda dt=dt, e=e: k.ds("ds_read_b64_tr_b16 %s, v%d offset:%d" % (vr(fa + 4 * dt + 2 * e, 2), V_RA + dt, s * 4096 + e * 1024), "a%d_%d" % (g, dt)))
    return ops


def adv_read_addrs(k, regs, st_from, st_to, nslot):
    d = (slot_of(st_to, nslot) - slot_of(st_from, nslot)) * SLOT
    return [lambda r=r: k.e("v_add_u32 v%d, 0x%x, v%d" % (r, d & 0xffffffff, r)) for r in regs]


def phase1(k, nslot, last_stage, pol=""):
    p1_dma_addrs(k)
    build_srds(k, ["WQ", "X", "K", "V", "WS"] + (["WO", "OUT", "DBG"] if last_stage >= 10 else []))
    for st in range(nslot):
        for op in dma_stage(k, st, nslot, pol):
            op()
    p1_read_addrs(k)
    if last_stage >= 10:
        p2_dma_addrs(k)
    k.e("v_lshlrev_b32 v%d, 4, v0" % V_L16)
    k.wait(vm=("st0",))
    k.e("s_barrier")
    k.stamp()
    for op in p1_reads(k, 0, nslot):
        op()
    for g in range(32):
        st, s = g // 4, g % 4
        fa, fb = V_FA + 16 * (g & 1), V_FB + 4 * (g & 1)
        pre, fill = [], []
        if s == 3:
            k.wait(vm=("st%d" % (st + 1),), lg0=True)
            k.e("s_barrier")
            k.stamp()
            if st < 7:
                pre += adv_read_addrs(k, list(range(V_RB, V_RB + 4)) + list(range(V_RA, V_RA + 4)), st, st + 1, nslot)
            if st + nslot <= last_stage:
                fill += dma_stage(k, st + nslot, nslot, pol)
        rd = p1_reads(k, g + 1, nslot) if g < 31 else []
        if s == 3 and st < 7:
            seq = [pre[0], rd[0], pre[4], rd[1], rd[2], pre[5], rd[3], rd[4], pre[6], rd[5], rd[6], pre[7], rd[7], rd[8]] + pre[1:4]
            split = [5, 3, 3, 6]
        else:
            seq = rd
            split = [4, 3, 2, 0]
        pos = 0
        for dt in range(4):
            k.wait(lg=("b%d" % g, "a%d_%d" % (g, dt)))
            mfma(k, V_ACC + 16 * dt, fa + 4 * dt, fb, g == 0)
            for op in seq[pos:pos + split[dt]]:
                op()
            pos += split[dt]
            for op in fill[2 * dt:2 * dt + 2]:
                op()


def attention(k, nslot, last_stage, pol="", opol=""):
    t = V_T
    kb, vb = (8 % nslot) * SLOT, (9 % nslot) * SLOT
    k.e("v_lshrrev_b32 v%d, 5, v0" % t)
    k.e("v_and_b32 v%d, 15, v0" % (t + 1))
    k.e("v_xor_b32 v%d, v%d, v%d" % (t + 1, t + 1, t))
    k.e("v_lshlrev_b32 v%d, 4, v%d" % (t + 1, t + 1))
    k.e("v_and_b32 v%d, 31, v0" % (t + 2))
    k.e("v_lshl_add_u32 v%d, v%d, 8, v%d" % (t + 1, t + 2, t + 1))
    k.e("s_add_u32 s%d, s%d, %d" % (S_T0, S_M8, kb))
    k.e("v_add_u32 v%d, s%d, v%d" % (t + 1, S_T0, t + 1))
    k.wait(vm=("st8",))
    for i in range(8):
        if i:
            k.e("v_xor_b32 v%d, %d, v%d" % (t + 2, i << 5, t + 1))
        k.ds("ds_read_b128 %s, v%d" % (vr(V_KF + 4 * i, 4), t + 2 if i else t + 1), "k%d" % i)
    tr_lane_terms(k, t)
    k.e("v_lshlrev_b32 v%d, 3, v%d" % (V_RA, t + 3))
    k.e("v_lshl_add_u32 v%d, v%d, 5, v%d" % (V_RA, t + 2, V_RA))
    k.e("v_lshl_add_u32 v%d, v%d, 2, v%d" % (t + 4, t, t + 1))
    k.e("v_lshl_add_u32 v%d, v%d, 8, v%d" % (V_RA, t + 4, V_RA))
    k.e("v_lshl_add_u32 v%d, v%d, 6, v%d" % (V_RA, t + 1, V_RA))
    k.e("s_add_u32 s%d, s%d, %d" % (S_T0, S_M8, vb))
    k.e("v_add_u32 v%d, s%d, v%d" % (V_RA, S_T0, V_RA))
    for dt in range(1, 4):
        k.e("v_xor_b32 v%d, %d, v%d" % (V_RA + dt, dt << 6, V_RA))
    k.e("s_mov_b32 s%d, 0x3e0293ee" % S_C)
    for i in range(8):
        for j in range(4):
            k.e("v_cvt_pk_bf16_f32 v%d, v%d, v%d" % (V_QB + 4 * i + j, V_ACC + 8 * i + 2 * j, V_ACC + 8 * i + 2 * j + 1))
        if i >= 1:
            k.wait(lg=("k%d" % (i - 1),))
            mfma(k, V_S, V_KF + 4 * (i - 1), V_QB + 4 * (i - 1), i == 1)
    k.wait(lg=("k7",), vm=("st9",))
    k.e("s_nop 0")
    mfma(k, V_S, V_KF + 28, V_QB + 28, False)
    for dt in range(4):
        for u in range(2):
            for e in range(2):
                k.ds("ds_read_b64_tr_b16 %s, v%d offset:%d" % (vr(V_FA + 8 * dt + 4 * u + 2 * e, 2), V_RA + dt, (16 * u + 8 * e) * 256), "v%d" % dt)
    m, m2 = t, t + 1
    k.e("v_max3_f32 v%d, v%d, v%d, v%d" % (m, V_S, V_S + 1, V_S + 2))
    k.e("v_max3_f32 v%d, v%d, v%d, v%d" % (m2, V_S + 3, V_S + 4, V_S + 5))
    for i in range(6, 14, 4):
        k.e("v_max3_f32 v%d, v%d, v%d, v%d" % (m, m, V_S + i, V_S + i + 1))
        k.e("v_max3_f32 v%d, v%d, v%d, v%d" % (m2, m2, V_S + i + 2, V_S + i + 3))
    k.e("v_max3_f32 v%d, v%d, v%d, v%d" % (m, m, V_S + 14, V_S + 15))
    k.e("v_max_f32 v%d, v%d, v%d" % (m, m, m2))
    k.e("v_mov_b32 v%d, v%d" % (m2, m))
    k.e("s_nop 1")
    k.e("v_permlane32_swap_b32 v%d, v%d" % (m, m2))
    k.e("v_max_f32 v%d, v%d, v%d" % (m, m, m2))
    k.e("v_mul_f32 v%d, s%d, v%d" % (m, S_C, m))
    for i in range(16):
        k.e("v_fma_f32 v%d, v%d, s%d, -v%d" % (V_S + i, V_S + i, S_C, m))
    for i in range(16):
        k.e("v_exp_f32 v%d, v%d" % (V_S + i, V_S + i))
    k.e("v_add_f32 v%d, v%d, v%d" % (m, V_S, V_S + 1))
    k.e("v_add_f32 v%d, v%d, v%d" % (m2, V_S + 2, V_S + 3))
    for i in range(4, 16, 2):
        k.e("v_add_f32 v%d, v%d, v%d" % (m, m, V_S + i))
        k.e("v_add_f32 v%d, v%d, v%d" % (m2, m2, V_S + i + 1))
    k.e("v_add_f32 v%d, v%d, v%d" % (m, m, m2))
    k.e("v_mov_b32 v%d, v%d" % (m2, m))
    k.e("s_nop 1")
    k.e("v_permlane32_swap_b32 v%d, v%d" % (m, m2))
    k.e("v_add_f32 v%d, v%d, v%d" % (m, m, m2))
    k.e("v_rcp_f32 v%d, v%d" % (m, m))
    k.e("s_nop 0")
    for i in range(16):
        k.e("v_mul_f32 v%d, v%d, v%d" % (V_S + i, V_S + i, m))
    for j in range(8):
        k.e("v_cvt_pk_bf16_f32 v%d, v%d, v%d" % (V_PB + j, V_S + 2 * j, V_S + 2 * j + 1))
    k.e("s_lshl_b32 s%d, s%d, 4" % (S_T0, S_BR))
    k.e("s_add_u32 s%d, s%d, s%d" % (S_T0, S_T0, S_B))
    k.e("s_lshl_b32 s%d, s%d, 5" % (S_T0, S_T0))
    k.e("s_add_u32 s%d, s%d, s%d" % (S_T1, S_T0, S_HEAD))
    k.e("s_lshl_b32 s%d, s%d, 13" % (S_OO, S_T1))
    k.e("s_add_u32 s%d, s%d, 4096" % (S_T2, S_OO))
    for dt in range(4):
        k.wait(lg=("v%d" % dt,))
        mfma(k, V_ACC + 16 * dt, V_FA + 8 * dt, V_PB, True)
        mfma(k, V_ACC + 16 * dt, V_FA + 8 * dt + 4, V_PB + 4, False)
    k.e("s_nop 5")
    for i in range(8):
        if i == 6:
            k.e("s_nop 1")
        for j in range(4):
            k.e("v_cvt_pk_bf16_f32 v%d, v%d, v%d" % (V_QB + 4 * i + j, V_ACC + 8 * i + 2 * j, V_ACC + 8 * i + 2 * j + 1))
        k.vmem("buffer_store_dwordx4 %s, v%d, %s, s%d offen offset:%d%s" % (vr(V_QB + 4 * i, 4), V_L16, srd(SRD_WS), S_OO if i < 4 else S_T2, (i & 3) * 1024, opol), "ost")


def p2_read_addrs(k, first_stage, nslot):
    t = V_T
    tr_lane_terms(k, t)
    pi_term(k, V_RA, t)
    k.e("v_lshl_add_u32 v%d, v%d, 2, v%d" % (t + 4, t, t + 1))
    k.e("v_lshl_add_u32 v%d, v%d, 7, v%d" % (V_RA, t + 4, V_RA))
    k.e("v_lshrrev_b32 v%d, 1, v%d" % (t + 4, t + 1))
    k.e("v_lshl_add_u32 v%d, v%d, 6, v%d" % (V_RA, t + 4, V_RA))
    b = (first_stage % nslot) * SLOT
    if b:
        k.e("v_add_u32 v%d, 0x%x, v%d" % (V_RA, b, V_RA))
    k.e("v_xor_b32 v%d, 64, v%d" % (V_RA + 1, V_RA))


def o_loads(k, lo, hi, opol):
    for ks in range(lo, hi):
        k.vmem("buffer_load_dwordx4 %s, v%d, %s, s%d offen offset:%d%s" % (vr(4 * ks, 4, True), V_L16, srd(SRD_WS), S_OO, (ks & 3) * 1024, opol), "o%d" % ks)
        if ks & 3 == 3:
            k.e("s_add_u32 s%d, s%d, 4096" % (S_OO, S_OO))


def o_load_base(k):
    k.e("s_lshl_b32 s%d, s%d, 4" % (S_T0, S_BR))
    k.e("s_add_u32 s%d, s%d, s%d" % (S_T0, S_T0, S_B))
    k.e("s_lshl_b32 s%d, s%d, 2" % (S_T0, S_T0))
    k.e("s_add_u32 s%d, s%d, s%d" % (S_T0, S_T0, S_HG))
    k.e("s_lshl_b32 s%d, s%d, 16" % (S_OO, S_T0))


def phase2_compute(k, nslot, all_landed):
    NSET = 4

    def reads(ks):
        fa = V_FA + 8 * (ks % NSET)
        for nt in range(2):
            for e in range(2):
                k.ds("ds_read_b64_tr_b16 %s, v%d offset:%d" % (vr(fa + 4 * nt + 2 * e, 2), V_RA + nt, ((ks % 16) * 16 + 8 * e) * 128), "w%d" % ks)

    def enter(ks):
        if ks % 16 == 0:
            st = 10 + ks // 16
            if ks:
                for op in adv_read_addrs(k, [V_RA, V_RA + 1], st - 1, st, nslot):
                    op()
            if not all_landed:
                k.wait(vm=("st%d" % st,))
                k.e("s_barrier")
                k.stamp()
    for ks in range(NSET - 1):
        enter(ks)
        reads(ks)
    for ks in range(64):
        k.wait(vm=("o%d" % ks,), lg=("w%d" % ks,))
        fa = V_FA + 8 * (ks % NSET)
        mfma(k, V_ACC, fa, 4 * ks, ks == 0, ba=True)
        mfma(k, V_ACC + 16, fa + 4, 4 * ks, ks == 0, ba=True)
        n = ks + NSET - 1
        if n < 64:
            enter(n)
            reads(n)


def part_base(k, j_sreg, hg_sreg):
    k.e("s_lshl_b32 s%d, s%d, 2" % (S_T0, S_BR))
    k.e("s_add_u32 s%d, s%d, s%d" % (S_T0, S_T0, S_TG))
    k.e("s_lshl_b32 s%d, s%d, 3" % (S_T0, S_T0))
    k.e("s_add_u32 s%d, s%d, s%d" % (S_T0, S_T0, S_LO))
    k.e("s_lshl_b32 s%d, s%d, 2" % (S_T0, S_T0))
    k.e("s_add_u32 s%d, s%d, s%d" % (S_T0, S_T0, j_sreg))
    k.e("s_lshl_b32 s%d, s%d, 2" % (S_T0, S_T0))
    if hg_sreg is not None:
        k.e("s_add_u32 s%d, s%d, s%d" % (S_T0, S_T0, hg_sreg))
    k.e("s_lshl_b32 s%d, s%d, 13" % (S_T0, S_T0))
    k.e("s_add_u32 s%d, s%d, 0x%x" % (S_OP, S_T0, WS_P))


def part_store(k, opol):
    part_base(k, S_W, S_HG)
    k.e("s_add_u32 s%d, s%d, 4096" % (S_T2, S_OP))
    k.e("s_nop 7")
    for i in range(8):
        k.vmem("buffer_store_dwordx4 %s, v%d, %s, s%d offen offset:%d%s" % (vr(V_ACC + 4 * i, 4), V_L16, srd(SRD_WS), S_OP if i < 4 else S_T2, (i & 3) * 1024, opol), "pst")


def reduce_store(k, opol):
    part_base(k, S_HG, None)
    k.e("s_lshl_b32 s%d, s%d, 11" % (S_T0, S_W))
    k.e("s_add_u32 s%d, s%d, s%d" % (S_OP, S_OP, S_T0))
    for q in range(4):
        for i in range(2):
            k.vmem("buffer_load_dwordx4 %s, v%d, %s, s%d offen offset:%d%s" % (vr(V_KF + 8 * q + 4 * i, 4), V_L16, srd(SRD_WS), S_OP, i * 1024, opol), "p%d" % q)
        if q < 3:
            k.e("s_add_u32 s%d, s%d, 8192" % (S_OP, S_OP))
    t = V_T
    k.e("v_and_b32 v%d, 31, v0" % t)
    k.e("v_lshrrev_b32 v%d, 5, v0" % (t + 1))
    k.e("v_lshlrev_b32 v%d, 11, v%d" % (t, t))
    k.e("v_lshl_add_u32 v%d, v%d, 4, v%d" % (t, t + 1, t))
    k.e("s_lshl_b32 s%d, s%d, 2" % (S_T0, S_TG))
    k.e("s_add_u32 s%d, s%d, s%d" % (S_T0, S_T0, S_HG))
    k.e("s_lshl_b32 s%d, s%d, 16" % (S_T0, S_T0))
    k.e("s_lshl_b32 s%d, s%d, 10" % (S_T1, S_BR))
    k.e("s_add_u32 s%d, s%d, s%d" % (S_T0, S_T0, S_T1))
    k.e("s_lshl_b32 s%d, s%d, 7" % (S_T1, S_LO))
    k.e("s_add_u32 s%d, s%d, s%d" % (S_T0, S_T0, S_T1))
    k.e("s_lshl_b32 s%d, s%d, 5" % (S_T1, S_W))
    k.e("s_add_u32 s%d, s%d, s%d" % (S_T0, S_T0, S_T1))
    k.wait(vm=("p1",))
    for i in range(8):
        k.e("v_add_f32 v%d, v%d, v%d" % (V_KF + i, V_KF + i, V_KF + 8 + i))
    k.wait(vm=("p3",))
    for i in range(8):
        k.e("v_add_f32 v%d, v%d, v%d" % (V_KF + 16 + i, V_KF + 16 + i, V_KF + 24 + i))
    for i in range(8):
        k.e("v_add_f32 v%d, v%d, v%d" % (V_KF + i, V_KF + i, V_KF + 16 + i))
    for j in range(4):
        k.e("v_cvt_pk_bf16_f32 v%d, v%d, v%d" % (V_PB + j, V_KF + 2 * j, V_KF + 2 * j + 1))
    k.vmem("buffer_store_dwordx4 %s, v%d, %s, s%d offen" % (vr(V_PB, 4), t, srd(SRD_OUT), S_T0), "out")


def kernel_text(name, k, nv=256, acc=256):
    return ("\n.globl %s\n.p2align 8\n.type %s,@function\n%s:\n" % (name, name, name)) + "\n".join(k.l) + "\n", \
        (".p2align 6\n.amdhsa_kernel %s\n  .amdhsa_next_free_vgpr %d\n  .amdhsa_next_free_sgpr 102\n  .amdhsa_accum_offset %d\n"
         "  .amdhsa_group_segment_fixed_size 0\n  .amdhsa_kernarg_size 104\n  .amdhsa_user_sgpr_count 2\n"
         "  .amdhsa_user_sgpr_kernarg_segment_ptr 1\n  .amdhsa_system_sgpr_workgroup_id_x 1\n.end_amdhsa_kernel\n" % (name, nv, acc))


def finish(launches, kernels):
    s = HDR
    for l in launches:
        s += l + "\n"
    s += '.amdgcn_target "amdgcn-amd-amdhsa--gfx950"\n.text\n'
    s += "".join(t for t, _ in kernels)
    s += '.section .rodata,"a"\n'
    s += "".join(d for _, d in kernels)
    return s


def gen_three(diag=False, extra_empty=0):
    ks = []
    k = K(diag)
    prologue(k, "L1_end")
    phase1(k, 5, 9)
    k.stamp()
    attention(k, 5, 9)
    k.stamp()
    k.dump_stamps(0)
    k.lab("L1_end")
    k.e("s_endpgm")
    ks.append(kernel_text("p1_kernel", k))
    k = K(diag)
    prologue(k, "L2_end")
    p2_dma_addrs(k)
    k.e("v_lshlrev_b32 v%d, 4, v0" % V_L16)
    o_load_base(k)
    build_srds(k, ["WO", "WS"])
    for q in range(4):
        for op in dma_stage(k, 10 + q, 5):
            op()
        o_loads(k, 16 * q, 16 * q + 16 if q < 3 else 56, "")
    p2_read_addrs(k, 10, 5)
    k.wait(vm=("st10", "go"))
    o_loads(k, 56, 64, "")
    k.stamp()
    phase2_compute(k, 5, False)
    k.stamp()
    part_store(k, "")
    k.dump_stamps(1)
    k.lab("L2_end")
    k.e("s_endpgm")
    ks.append(kernel_text("p2_kernel", k, 512, 256))
    k = K(diag)
    prologue(k, "L3_end")
    k.e("v_lshlrev_b32 v%d, 4, v0" % V_L16)
    build_srds(k, ["WS", "OUT"])
    reduce_store(k, "")
    k.stamp()
    k.dump_stamps(2)
    k.lab("L3_end")
    k.e("s_endpgm")
    ks.append(kernel_text("p3_kernel", k))
    L = ["; @launch kernel=p1_kernel grid=(256,1,1) block=(256,1,1) lds=163840",
         "; @launch kernel=p2_kernel grid=(256,1,1) block=(256,1,1) lds=163840",
         "; @launch kernel=p3_kernel grid=(256,1,1) block=(256,1,1) lds=0"]
    if extra_empty:
        k = K()
        k.e("s_endpgm")
        ks.append(kernel_text("nop_kernel", k, 8, 8))
        L += ["; @launch kernel=nop_kernel grid=(256,1,1) block=(256,1,1) lds=0"] * extra_empty
    return finish(L, ks)


WS_F = 16 << 20
V_KA, V_VA, V_WA = 18, 19, 240
V_FL1, V_FL2, V_PL1, V_PL2, V_GO, V_ONE, V_OUT = 244, 245, 246, 247, 248, 249, 250
V_GOA, V_GOD = 251, 252
V_ANN, V_GOP = 253, 254
S_ANN4, S_K11, S_FAST, S_CL, S_OB = 5, 6, 7, 4, 6
V_AC2, V_PL = 176, 112
S_NB, S_KQ, S_OWO2, S_GO, S_SPIN, S_OI = 85, 3, 78, 30, 31, 79


def one_addrs(k, ns):
    t = V_T
    k.e("s_and_b32 s%d, s%d, 3" % (S_NB, S_LO))
    k.e("s_lshr_b32 s%d, s%d, 2" % (S_KQ, S_HEAD))
    k.e("v_lshrrev_b32 v%d, 4, v0" % t)
    k.e("v_and_b32 v%d, 15, v0" % (t + 1))
    k.e("v_lshlrev_b32 v%d, 2, v%d" % (t + 2, t))
    k.e("v_xor_b32 v%d, v%d, v%d" % (t + 2, t + 2, t + 1))
    k.e("v_lshlrev_b32 v%d, 4, v%d" % (t + 2, t + 2))
    k.e("v_lshl_add_u32 v%d, v%d, 10, v%d" % (V_DWO, t, t + 2))
    k.e("s_lshl_b32 s%d, s%d, 15" % (S_T0, S_W))
    k.e("v_add_u32 v%d, s%d, v%d" % (V_DWO, S_T0, V_DWO))
    for i in range(1, 4):
        k.e("v_add_u32 v%d, %d, v%d" % (V_DWO + i, i * 3072, V_DWO))
    k.e("v_lshrrev_b32 v%d, 5, v0" % t)
    k.e("v_and_b32 v%d, 15, v0" % (t + 1))
    k.e("v_xor_b32 v%d, v%d, v%d" % (t + 1, t + 1, t))
    k.e("v_lshlrev_b32 v%d, 4, v%d" % (t + 1, t + 1))
    k.e("v_and_b32 v%d, 31, v0" % (t + 2))
    k.e("v_lshl_add_u32 v%d, v%d, 8, v%d" % (V_KA, t + 2, t + 1))
    k.e("s_add_u32 s%d, s%d, %d" % (S_T0, S_M8, slot_of(8, ns) * SLOT))
    k.e("v_add_u32 v%d, s%d, v%d" % (V_KA, S_T0, V_KA))
    k.e("v_lshlrev_b32 v%d, 11, v%d" % (V_OUT, t + 2))
    k.e("v_lshl_add_u32 v%d, v%d, 4, v%d" % (V_OUT, t, V_OUT))
    tr_lane_terms(k, t)
    k.e("v_lshl_add_u32 v%d, v%d, 2, v%d" % (t + 5, t, t + 1))
    k.e("v_lshlrev_b32 v%d, 8, v%d" % (t + 5, t + 5))
    k.e("v_lshl_add_u32 v%d, v%d, 6, v%d" % (t + 5, t + 1, t + 5))
    k.e("v_lshl_add_u32 v%d, v%d, 3, v%d" % (V_VA, t + 3, t + 5))
    k.e("v_lshl_add_u32 v%d, v%d, 5, v%d" % (V_VA, t + 2, V_VA))
    k.e("s_add_u32 s%d, s%d, %d" % (S_T0, S_M8, slot_of(9, ns) * SLOT))
    k.e("v_add_u32 v%d, s%d, v%d" % (V_VA, S_T0, V_VA))
    pi_term(k, V_WA, t)
    k.e("v_add_u32 v%d, v%d, v%d" % (V_WA, V_WA, t + 5))
    for nt in range(1, 4):
        k.e("v_xor_b32 v%d, %d, v%d" % (V_WA + nt, nt << 6, V_WA))
    k.e("s_and_b32 s%d, s2, 0xe7" % S_T0)
    k.e("s_lshl_b32 s%d, s%d, 8" % (S_T0, S_T0))
    k.e("s_lshl_b32 s%d, s%d, 4" % (S_T1, S_W))
    k.e("s_add_u32 s%d, s%d, s%d" % (S_T0, S_T0, S_T1))
    k.e("s_lshl_b32 s%d, s%d, 2" % (S_T2, S_NB))
    k.e("s_add_u32 s%d, s%d, s%d" % (S_T0, S_T0, S_T2))
    k.e("v_and_b32 v%d, 3, v0" % t)
    k.e("v_lshlrev_b32 v%d, 11, v%d" % (V_FL1, t))
    k.e("v_add_u32 v%d, s%d, v%d" % (V_FL1, S_T0, V_FL1))
    k.e("s_lshl_b32 s%d, s2, 8" % S_T0)
    k.e("s_add_u32 s%d, s%d, s%d" % (S_T1, S_T0, S_T1))
    k.e("v_lshlrev_b32 v%d, 2, v%d" % (V_PL1, t))
    k.e("v_add_u32 v%d, s%d, v%d" % (V_PL1, S_T1, V_PL1))
    k.e("v_and_b32 v%d, 7, v0" % t)
    k.e("v_lshlrev_b32 v%d, 2, v%d" % (V_PL2, t))
    k.e("s_add_u32 s%d, s%d, 128" % (S_T1, S_T0))
    k.e("v_add_u32 v%d, s%d, v%d" % (V_PL2, S_T1, V_PL2))
    k.e("s_and_b32 s%d, s2, 0xdc" % S_T0)
    k.e("s_or_b32 s%d, s%d, s%d" % (S_T0, S_T0, S_W))
    k.e("s_lshl_b32 s%d, s%d, 8" % (S_T0, S_T0))
    k.e("s_lshl_b32 s%d, s%d, 2" % (S_T1, S_KQ))
    k.e("s_add_u32 s%d, s%d, s%d" % (S_T0, S_T0, S_T1))
    k.e("s_add_u32 s%d, s%d, 128" % (S_T0, S_T0))
    k.e("v_and_b32 v%d, 1, v0" % t)
    k.e("v_lshlrev_b32 v%d, 13, v%d" % (V_FL2, t))
    k.e("v_add_u32 v%d, s%d, v%d" % (V_FL2, S_T0, V_FL2))
    k.e("v_mov_b32 v%d, 1" % V_ONE)
    k.e("s_lshl_b32 s%d, s%d, 1" % (S_GO, S_TG))
    k.e("s_add_u32 s%d, s%d, s%d" % (S_GO, S_GO, S_BR))
    k.e("s_lshl_b32 s%d, s%d, 5" % (S_GO, S_GO))
    k.e("v_and_b32 v%d, 7, v0" % t)
    k.e("v_lshl_add_u32 v%d, v%d, 2, s%d" % (V_GOP, t, S_GO))
    k.e("s_lshl2_add_u32 s%d, s%d, s%d" % (S_GO, S_KQ, S_GO))
    k.e("v_mov_b32 v%d, s%d" % (V_GOA, S_GO))


S_J = 14


def head_order(k, jrot):
    k.e("s_cmp_eq_u32 s%d, 3" % S_TG)
    k.e("s_cselect_b32 s%d, 0, s%d" % (S_T0, S_TG))
    if not jrot:
        k.e("s_mov_b32 s%d, 0" % S_T0)
    for j in range(1, 4):
        k.e("s_add_u32 s%d, s%d, %d" % (S_T1, S_T0, j))
        k.e("s_cmp_gt_u32 s%d, 3" % S_T1)
        k.e("s_cselect_b32 s%d, 3, 0" % S_J)
        k.e("s_sub_u32 s%d, s%d, s%d" % (S_T1, S_T1, S_J))
        k.e("s_add_u32 s%d, s%d, s%d" % (S_T1, S_T1, S_NB))
        k.e("s_and_b32 s%d, s%d, 3" % (S_J + j, S_T1))


def wo_stage(k, st, pol, nslot):
    j = st - 10
    base = slot_of(st, nslot) * SLOT
    tag = "st%d" % st
    ops = []
    for g in range(2):
        for i in range(4):
            def op(g=g, i=i):
                if i == 0:
                    if g == 0:
                        k.e("s_lshl2_add_u32 s%d, s%d, s%d" % (S_T3, S_KQ, S_J + j if j else S_NB))
                        k.e("s_lshl_b32 s%d, s%d, 9" % (S_T3, S_T3))
                        k.e("s_add_u32 s%d, s%d, s%d" % (S_T3, S_T3, S_NB))
                        k.e("s_lshl_b32 s%d, s%d, 8" % (S_OWO2, S_T3))
                    else:
                        k.e("s_add_u32 s%d, s%d, 16384" % (S_OWO2, S_OWO2))
                    k.e("s_add_u32 m0, s%d, %d" % (S_M8, base + 4096 * g))
                    k.e("s_nop 0")
                k.vmem("buffer_load_dwordx4 v%d, %s, s%d offen offset:%d%s lds" % (V_DWO + i, srd(SRD_WO), S_OWO2, i * 1024, pol), tag)
            ops.append(op)
    return ops


def spin(k, name, addr, sr, soff, expect, cmp="ne"):
    k.e("s_mov_b32 s%d, 0x40000" % S_SPIN)
    k.lab(name)
    k.e("buffer_load_dword v%d, v%d, %s, %s offen sc1" % (V_GO, addr, srd(sr), soff))
    k.e("s_sub_u32 s%d, s%d, 1" % (S_SPIN, S_SPIN))
    k.e("s_cbranch_scc1 %s_x" % name)
    k.wait(vm0=True)
    k.e("v_cmp_%s_u32 vcc, %s, v%d" % (cmp, expect, V_GO))
    k.e("s_cbranch_vccnz %s" % name)
    k.lab(name + "_x")


SCHED = {
    5: {"i": "0a 0b 1a 1b 2a 2b 3a 3b", "p": "4a 4b", 0: "5a 5b", 1: "6a 6b", 2: "7a 7b", 3: "8a 8b", 4: "9a 9b", 5: "10a 10b", 6: "11a 11b", 7: "12a 12b"},
    30: {"i": "0a 0b 1a 1b 2a 2b", "p": "8a", 0: "3a 3b 8b", 1: "4a 4b", 2: "5a 5b", 3: "6a 6b", 4: "7a 7b 9a", 5: "9b 10a 10b", 6: "11a 11b", 7: "12a 12b"},
    31: {"i": "0a 0b 1a 1b", "p": "2a 2b 8a", 0: "3a 3b 8b", 1: "4a 4b 9a", 2: "5a 5b 9b", 3: "6a 6b", 4: "7a 7b", 5: "10a 10b", 6: "11a 11b", 7: "12a 12b"},
    32: {"i": "0a 0b 1a 1b 8a 2a 2b 8b", "p": "9a 9b", 0: "3a 3b", 1: "4a 4b", 2: "5a 5b", 3: "6a 6b", 4: "7a 7b", 5: "10a 10b", 6: "11a 11b", 7: "12a 12b"},
    34: {"i": "0a 0b 1a 1b 2a 2b", "p": "8a 8b", 0: "3a 3b", 1: "4a 4b 9a", 2: "5a 5b 9b", 3: "6a 6b", 4: "7a 7b", 5: "10a 10b", 6: "11a 11b", 7: "12a 12b"},
    40: {"i": "0a 0b 1a 1b 2a 2b", "p": "", 0: "3a 3b", 1: "4a 4b", 2: "5a 5b", 3: "6a 6b", 4: "7a 7b", 5: "", 6: "", 7: ""},
    41: {"i": "0a 0b 1a 1b 2a 2b 3a 3b", "p": "", 0: "4a 4b", 1: "5a 5b", 2: "6a 6b", 3: "7a 7b", 4: "", 5: "", 6: "", 7: ""},
    42: {"i": "0a 0b 1a 1b 2a 2b", "p": "3a 3b", 0: "4a 4b", 1: "5a 5b", 2: "6a 6b", 3: "7a 7b", 4: "", 5: "", 6: "", 7: ""},
    33: {"i": "0a 0b 1a 1b 2a 2b", "p": "8a 8b", 0: "3a 3b 9a", 1: "4a 4b 9b", 2: "5a 5b", 3: "6a 6b", 4: "7a 7b", 5: "10a 10b", 6: "11a 11b", 7: "12a 12b"},
}


def gen_one(diag=0, sched=40, nt=0, pad=0, fast=1, rot=0, fk=4, pk=6, oup=3, o2=14, sent=0, ann=0, cw="p", hk=0, hv=2, nm=24, split2=1, jrot=1, bk=2, hs="22335566", wb=0, wbm=0xf8, osc=0, pf=0, ab=2):
    k = K(diag)
    pol = " nt" if nt else ""
    t = V_T
    NS = {5: 5, 41: 4, 42: 4}.get(sched, 3)
    made = {}

    def stage(st):
        return dma_stage(k, st, NS, pol if st >= 8 else "") if st < 10 else wo_stage(k, st, "", NS)

    def window(w):
        ops = []
        for g in SCHED[sched][w].split():
            st = int(g[:-1])
            if st not in made:
                made[st] = stage(st)
            ops += made[st][:4] if g[-1] == "a" else made[st][4:]
        return ops
    prologue(k, "L_end")
    if pad:
        k.e("s_memrealtime s[98:99]")
    p1_dma_addrs(k)
    k.e("s_mov_b32 s%d, s%d" % (S_OV, S_OKV))
    if rot:
        if rot == 1:
            k.e("s_lshl1_add_u32 s%d, s%d, s%d" % (S_T0, S_TG, S_LO))
            k.e("s_and_b32 s%d, s%d, 7" % (S_T0, S_T0))
        elif rot == 2:
            k.e("s_lshl_b32 s%d, s%d, 1" % (S_T0, S_TG))
        elif rot == 3:
            k.e("s_lshl_b32 s%d, s%d, 2" % (S_T0, S_TG))
            k.e("s_and_b32 s%d, s%d, 4" % (S_T0, S_T0))
        k.e("s_lshl_b32 s%d, s%d, 19" % (S_T1, S_T0))
        k.e("s_add_u32 s%d, s%d, s%d" % (S_OWQ, S_OWQ, S_T1))
        k.e("s_lshl_b32 s%d, s%d, 7" % (S_T1, S_T0))
        k.e("s_add_u32 s%d, s%d, s%d" % (S_OX, S_OX, S_T1))
    p1_read_addrs(k)
    one_addrs(k, NS)
    if slot_of(10, NS):
        for x in range(4):
            k.e("v_add_u32 v%d, 0x%x, v%d" % (V_WA + x, slot_of(10, NS) * SLOT, V_WA + x))
    k.e("v_lshlrev_b32 v%d, 4, v0" % V_L16)
    k.e("v_lshlrev_b32 v1, 2, v0")
    k.e("v_mov_b32 v2, 0")
    k.e("s_lshl_b32 s%d, s2, 8" % S_T2)
    k.e("s_add_u32 s%d, s%d, 0x%x" % (S_T2, S_T2, WS_F))
    hlp = sched >= 40
    if hlp:
        k.e("s_cmp_eq_u32 s%d, 1" % S_T3)
        k.e("s_cbranch_scc1 L_helper")
    build_srds(k, ["WQ", "X"])
    ini = window("i")
    for op in ini[:8]:
        op()
    sv, k.diag = k.diag, 0
    n0 = len(k.l)
    build_srds(k, ["WS", "OUT", "DBG"] if hlp else ["WS", "K", "V", "WO", "OUT", "DBG"])
    del k.l[n0]
    k.diag = sv
    if not hlp:
        k.vmem("buffer_store_dword v2, v1, %s, s%d offen sc1" % (srd(SRD_WS), S_T2), "zero")
    for op in ini[8:]:
        op()
    k.e("s_mov_b32 s%d, 0x%x" % (S_OI, WS_F))
    k.e("s_getreg_b32 s%d, hwreg(HW_REG_XCC_ID, 0, 3)" % S_ANN4)
    k.e("s_lshl_b32 s%d, s%d, 2" % (S_ANN4, S_ANN4))
    k.e("s_lshl_b32 s%d, 1, s%d" % (S_ANN4, S_ANN4))
    k.e("v_mov_b32 v%d, s%d" % (V_ANN, S_ANN4))
    k.e("s_lshl_b32 s%d, s%d, 2" % (S_ANN4, S_ANN4))
    k.e("s_mov_b32 s%d, 0x11111111" % S_K11)
    head_order(k, jrot)
    k.e("s_lshl2_add_u32 s%d, s%d, s%d" % (S_T0, S_BR, S_TG))
    k.e("s_lshl2_add_u32 s%d, s%d, s%d" % (S_T0, S_T0, S_NB))
    k.e("s_lshl2_add_u32 s%d, s%d, s%d" % (S_T1, S_T0, S_W))
    k.e("s_lshl_b32 s%d, s%d, 6" % (S_T1, S_T1))
    k.e("s_add_u32 s%d, s%d, s%d" % (S_T1, S_T1, S_KQ))
    k.e("s_lshl_b32 s%d, s%d, 10" % (S_T1, S_T1))
    k.e("s_add_u32 s%d, s%d, 0x%x" % (S_OP, S_T1, WS_P))
    k.e("s_mov_b32 s%d, s%d" % (S_CL, S_OP))
    for x in range(4):
        k.e("v_mov_b32 v%d, -1" % (V_S + x))

    def clr():
        k.vmem("buffer_store_dwordx4 %s, v%d, %s, s%d offen sc1" % (vr(V_S, 4), V_L16, srd(SRD_WS), S_CL), "zero")
        k.e("s_add_u32 s%d, s%d, 8192" % (S_CL, S_CL))
    clears = [clr] * 8 if sent else []
    if cw == "i":
        for op in clears:
            op()
    k.wait(vm=("st0",))
    k.e("s_barrier")
    k.stamp()
    for op in p1_reads(k, 0, NS):
        op()
    pend = window("p") + (clears if cw == "p" else [])
    gaps = 12
    for g in range(32):
        st, s = g // 4, g % 4
        fa, fb = V_FA + 16 * (g & 1), V_FB + 4 * (g & 1)
        pre = []
        if s == 3:
            assert not pend
            k.wait(vm=("st%d" % (st + 1), "zero" if st == ann else ""), lg0=True)
            k.e("s_barrier")
            if st in (1, 4, 7):
                k.stamp()
            if st == ann and not hlp:
                k.e("s_cmp_lg_u32 s%d, 0" % S_W)
                k.e("s_cbranch_scc1 L_noann")
                k.e("s_mov_b64 exec, 1")
                k.e("buffer_atomic_add v%d, v%d, %s, 0 offen sc1" % (V_ANN, V_GOA, srd(SRD_DBG)))
                k.e("s_mov_b64 exec, -1")
                k.lab("L_noann")
            if st == 6:
                k.vmem("buffer_load_dword v%d, v%d, %s, 0 offen sc1" % (V_GOD, V_GOP, srd(SRD_DBG)), "go")
                k.vmem("buffer_load_dword v%d, v%d, %s, s%d offen sc1" % (V_GO, V_PL1, srd(SRD_WS), S_OI), "warm")
            if st < 7:
                pre = adv_read_addrs(k, list(range(V_RB, V_RB + 4)) + list(range(V_RA, V_RA + 4)), st, st + 1, NS)
            pend = window(st) + (clears if cw == st else [])
            gaps = 16
        if g < 31:
            rd = p1_reads(k, g + 1, NS)
        else:
            rd = []
            for i in range(8):
                def kr(i=i):
                    if i:
                        k.e("v_xor_b32 v%d, %d, v%d" % (t + (i & 1), i << 5, V_KA))
                    k.ds("ds_read_b128 %s, v%d" % (vr(V_KF + 4 * i, 4), t + (i & 1) if i else V_KA), "k%d" % i)
                rd.append(kr)
        if s == 3 and st < 7:
            seq = [pre[0], rd[0], pre[4], rd[1], rd[2], pre[5], rd[3], rd[4], pre[6], rd[5], rd[6], pre[7], rd[7], rd[8]] + pre[1:4]
            split = [5, 3, 3, 6]
        elif g == 31:
            seq, split = rd, [2, 2, 2, 2]
        else:
            seq = rd
            split = [4, 3, 2, 0]
        pos = 0
        for dt in range(4):
            k.wait(lg=("b%d" % g, "a%d_%d" % (g, dt)))
            mfma(k, V_ACC + 16 * dt, fa + 4 * dt, fb, g == 0)
            for op in seq[pos:pos + split[dt]]:
                op()
            pos += split[dt]
            n = -(-len(pend) // gaps) if (g == 31 or len(pend) * 2 > gaps or gaps % 2 == 0) else 0
            for _ in range(n):
                pend.pop(0)()
            gaps -= 1
    k.e("s_mov_b32 s%d, 0x3e0293ee" % S_C)
    for dt in range(1, 4):
        k.e("v_xor_b32 v%d, %d, v%d" % (V_RA + dt, dt << 6, V_VA))
    for i in range(8):
        if i == 6:
            k.e("s_nop 1")
        for j in range(4):
            k.e("v_cvt_pk_bf16_f32 v%d, v%d, v%d" % (V_QB + 4 * i + j, V_ACC + 8 * i + 2 * j, V_ACC + 8 * i + 2 * j + 1))
        if i >= 1:
            k.wait(lg=("k%d" % (i - 1),))
            mfma(k, V_S, V_KF + 4 * (i - 1), V_QB + 4 * (i - 1), i == 1)
        if pend:
            pend.pop(0)()
    k.wait(lg=("k7",), vm=("st9",))
    k.e("s_nop 0")
    mfma(k, V_S, V_KF + 28, V_QB + 28, False)
    def vreads():
        for dt in range(4):
            for u in range(2):
                for e in range(2):
                    k.ds("ds_read_b64_tr_b16 %s, v%d offset:%d" % (vr(V_FA + 8 * dt + 4 * u + 2 * e, 2), V_RA + dt if dt else V_VA, (16 * u + 8 * e) * 256), "v%d" % dt)
    if NS != 4 and bk != 2:
        if hlp and bk:
            k.e("s_barrier")
        vreads()
    else:
        k.e("s_nop 7")
        k.e("s_nop 3")
    if not hlp:
        pend += stage(13)
    m, m2 = t, t + 1

    def dm():
        if pend:
            pend.pop(0)()
    dm()
    k.e("v_max3_f32 v%d, v%d, v%d, v%d" % (m, V_S, V_S + 1, V_S + 2))
    k.e("v_max3_f32 v%d, v%d, v%d, v%d" % (m2, V_S + 3, V_S + 4, V_S + 5))
    for i in range(6, 14, 4):
        k.e("v_max3_f32 v%d, v%d, v%d, v%d" % (m, m, V_S + i, V_S + i + 1))
        k.e("v_max3_f32 v%d, v%d, v%d, v%d" % (m2, m2, V_S + i + 2, V_S + i + 3))
    k.e("v_max3_f32 v%d, v%d, v%d, v%d" % (m, m, V_S + 14, V_S + 15))
    k.e("v_max_f32 v%d, v%d, v%d" % (m, m, m2))
    k.e("v_mov_b32 v%d, v%d" % (m2, m))
    dm()
    k.e("s_nop 1")
    k.e("v_permlane32_swap_b32 v%d, v%d" % (m, m2))
    k.e("v_max_f32 v%d, v%d, v%d" % (m, m, m2))
    k.e("v_mul_f32 v%d, s%d, v%d" % (m, S_C, m))
    for i in range(16):
        k.e("v_fma_f32 v%d, v%d, s%d, -v%d" % (V_S + i, V_S + i, S_C, m))
    for i in range(16):
        k.e("v_exp_f32 v%d, v%d" % (V_S + i, V_S + i))
        if i & 1:
            dm()
    if NS == 4 or bk == 2:
        k.e("s_barrier")
        vreads()
    k.e("v_add_f32 v%d, v%d, v%d" % (m, V_S, V_S + 1))
    k.e("v_add_f32 v%d, v%d, v%d" % (m2, V_S + 2, V_S + 3))
    for i in range(4, 16, 2):
        k.e("v_add_f32 v%d, v%d, v%d" % (m, m, V_S + i))
        k.e("v_add_f32 v%d, v%d, v%d" % (m2, m2, V_S + i + 1))
    k.e("v_add_f32 v%d, v%d, v%d" % (m, m, m2))
    k.e("v_mov_b32 v%d, v%d" % (m2, m))
    while pend:
        dm()
    k.e("s_nop 1")
    k.e("v_permlane32_swap_b32 v%d, v%d" % (m, m2))
    k.e("v_add_f32 v%d, v%d, v%d" % (m, m, m2))
    k.e("v_rcp_f32 v%d, v%d" % (m, m))
    k.e("s_lshl_b32 s%d, s%d, 4" % (S_T0, S_BR))
    k.e("s_add_u32 s%d, s%d, s%d" % (S_T0, S_T0, S_B))
    k.e("s_lshl_b32 s%d, s%d, 5" % (S_T0, S_T0))
    k.e("s_add_u32 s%d, s%d, s%d" % (S_T1, S_T0, S_HEAD))
    k.e("s_lshl_b32 s%d, s%d, 13" % (S_OX, S_T1))
    k.e("s_add_u32 s%d, s%d, 4096" % (S_T2, S_OX))
    for i in range(16):
        k.e("v_mul_f32 v%d, v%d, v%d" % (V_S + i, V_S + i, m))
    for j in range(8):
        k.e("v_cvt_pk_bf16_f32 v%d, v%d, v%d" % (V_PB + j, V_S + 2 * j, V_S + 2 * j + 1))
    k.wait(vm=("st10", "go"))
    k.e("s_mov_b32 s%d, 0x40000" % S_SPIN)
    k.lab("L_go")
    k.e("v_mul_lo_u32 v%d, v%d, s%d" % (t, V_GOD, S_K11))
    k.e("v_lshrrev_b32 v%d, 28, v%d" % (t, t))
    k.e("v_cmp_gt_u32 vcc, 4, v%d" % t)
    k.e("s_cbranch_vccz L_go_x")
    k.e("buffer_load_dword v%d, v%d, %s, 0 offen sc1" % (V_GOD, V_GOP, srd(SRD_DBG)))
    k.e("s_sub_u32 s%d, s%d, 1" % (S_SPIN, S_SPIN))
    k.e("s_waitcnt vmcnt(0)")
    k.e("s_cbranch_scc0 L_go")
    k.lab("L_go_x")
    k.e("v_readlane_b32 s%d, v%d, s%d" % (S_FAST, V_GOD, S_KQ))
    k.e("s_barrier")
    k.stamp()
    k.e("s_cmp_eq_u32 s%d, s%d" % (S_FAST, S_ANN4 if fast else S_K11))
    G = (32 - nm) // 4

    def wreads(ks):
        fa = V_FA + 16 * (ks & 1)
        if ks >= nm:
            nt, hf = divmod(ks - nm, G)
            d = (slot_of(10 + (nm + 4 * hf) // 8, NS) - slot_of(10 + nm // 8, NS)) * SLOT
            assert 0 <= d <= SLOT or (d == 2 * SLOT)
            ra = V_WA + nt if d < 2 * SLOT else V_RA + nt
            return [lambda j=j, e=e: k.ds("ds_read_b64_tr_b16 %s, v%d offset:%d" % (vr(fa + 4 * j + 2 * e, 2), ra, (d & SLOT) + (4 * (hf & 1) + j) * 4096 + e * 2048), "w%d_%d" % (ks, j))
                    for j in range(4) for e in range(2)]
        return [lambda nt=nt, e=e: k.ds("ds_read_b64_tr_b16 %s, v%d offset:%d" % (vr(fa + 4 * nt + 2 * e, 2), V_WA + nt, (ks % 8) * 4096 + e * 2048), "w%d_%d" % (ks, nt))
                for nt in range(4) for e in range(2)]

    def ocvt(i, sc):
        def f():
            for j in range(4):
                k.e("v_cvt_pk_bf16_f32 v%d, v%d, v%d" % (V_QB + 4 * i + j, V_ACC + 8 * i + 2 * j, V_ACC + 8 * i + 2 * j + 1))
            k.vmem("buffer_store_dwordx4 %s, v%d, %s, s%d offen offset:%d%s" % (vr(V_QB + 4 * i, 4), V_L16, srd(SRD_WS), S_OX if i < 4 else S_T2, (i & 3) * 1024, sc), "ost")
        return f

    def pcvt(pc):
        def f():
            for j in range(4):
                k.e("v_cvt_pk_bf16_f32 v%d, v%d, v%d" % (V_ACC + 4 * pc + j, V_AC2 + 8 * pc + 2 * j, V_AC2 + 8 * pc + 2 * j + 1))
            k.vmem("buffer_store_dwordx4 %s, v%d, %s, s%d offen sc1" % (vr(V_ACC + 4 * pc, 4), V_L16, srd(SRD_WS), S_OP), "pst%d" % (pc >> 2))
            if pc < 7:
                k.e("s_add_u32 s%d, s%d, 8192" % (S_OP, S_OP))
        return f

    def p2step(ks, extra=None):
        extra = extra or {}
        fa = V_FA + 16 * (ks & 1)
        rd = []
        if ks < 31:
            rd = wreads(ks + 1)
            if ks % 8 == 7 and ks < nm:
                adv = adv_read_addrs(k, list(range(V_WA, V_WA + 4)), 10 + ks // 8, 11 + ks // 8, NS)
                rd = [adv[0], rd[0], rd[1], adv[1], rd[2], rd[3], adv[2], rd[4], rd[5], adv[3], rd[6], rd[7]]
        n = len(rd) // 4
        for j in range(4):
            kk, nt = (ks, j) if ks < nm else (nm + 4 * ((ks - nm) % G) + j, (ks - nm) // G)
            k.wait(lg=("w%d_%d" % (ks, j),), vm=("o%d" % kk,))
            if ks < 8:
                mfma(k, V_AC2 + 16 * nt, fa + 4 * j, V_QB + 4 * ks, ks == 0)
            else:
                mfma(k, V_AC2 + 16 * nt, fa + 4 * j, V_ACC + 4 * (kk - 8), False)
            lo, hi = ([0, 3, 6, 8, 8] if n == 2 else [0, 3, 6, 9, 12])[j:j + 2]
            for op in rd[lo:hi]:
                op()
            for op in extra.get(j, ()):
                op()

    def pv_and_publish(sc):
        for dt in range(4):
            k.wait(lg=("v%d" % dt,))
            mfma(k, V_ACC + 16 * dt, V_FA + 8 * dt, V_PB, True)
            if dt == 3:
                ocvt(1, sc)()
            mfma(k, V_ACC + 16 * dt, V_FA + 8 * dt + 4, V_PB + 4, False)
            if dt == 2:
                ocvt(0, sc)()
                for op in wreads(0):
                    op()
        ocvt(2, sc)()
        p2step(0, {0: [ocvt(3, sc)], 2: [ocvt(4, sc)]})
        p2step(1, {0: [ocvt(5, sc)], 2: [ocvt(6, sc)]})
        p2step(2, {0: [ocvt(7, sc)]})
        for ks in range(3, fk):
            p2step(ks)
        k.wait(vm0=True)
        k.e("s_mov_b64 exec, 15")
        k.e("buffer_store_dword v%d, v%d, %s, s%d offen%s" % (V_ONE, V_FL1, srd(SRD_WS), S_OI, sc))
        k.e("s_mov_b64 exec, -1")
    k.e("s_cbranch_scc1 L_ofast")
    sv = list(k.vm), list(k.lg)
    pv_and_publish(" sc1")
    k.e("s_branch L_odone")
    k.lab("L_ofast")
    k.vm, k.lg = sv
    pv_and_publish("")
    k.lab("L_odone")
    assert pk <= 7
    if not hlp:
        k.e("s_barrier")
    k.stamp()
    k.e("s_and_b32 s%d, s%d, 0x%x" % (S_OX, S_OX, 0xffffffff ^ (3 << 13)))
    for j in range(1, 4):
        k.e("s_lshl_b32 s%d, s%d, 13" % (S_T0, S_J + j))
        k.e("s_add_u32 s%d, s%d, s%d" % (S_OB + 2 * j, S_T0, S_OX))
        k.e("s_add_u32 s%d, s%d, 4096" % (S_OB + 2 * j + 1, S_OB + 2 * j))
    for ks in range(fk, pk):
        p2step(ks, {0: [lambda: k.vmem("buffer_load_dword v%d, v%d, %s, s%d offen sc1" % (V_GO, V_PL1, srd(SRD_WS), S_OI), "poll")]} if ks == pk - 1 else None)
    if pk > fk:
        k.wait(vm0=True)
        k.e("v_cmp_ne_u32 vcc, 1, v%d" % V_GO)
        k.e("s_cbranch_vccz L_s1_x")
    spin(k, "L_s1", V_PL1, SRD_WS, "s%d" % S_OI, "1")
    k.stamp()
    old = [lambda ks=ks: k.vmem("buffer_load_dwordx4 %s, v%d, %s, s%d offen offset:%d sc1" % (vr(V_ACC + 4 * (ks - 8), 4), V_L16, srd(SRD_WS), S_OB + 2 * (ks // 8) + ((ks >> 2) & 1), (ks & 3) * 1024), "o%d" % ks)
           for ks in range(8, 32)]
    for _ in range(oup):
        old.pop(0)()
    k.e("s_lshl2_add_u32 s%d, s%d, s%d" % (S_T0, S_BR, S_TG))
    k.e("s_lshl2_add_u32 s%d, s%d, s%d" % (S_T0, S_T0, S_NB))
    k.e("s_lshl_b32 s%d, s%d, 3" % (S_T0, S_T0))
    k.e("s_add_u32 s%d, s%d, s%d" % (S_T0, S_T0, S_KQ))
    k.e("s_lshl2_add_u32 s%d, s%d, s%d" % (S_T0, S_T0, S_W))
    k.e("s_lshl_b32 s%d, s%d, 13" % (S_T0, S_T0))
    k.e("s_add_u32 s%d, s%d, 0x%x" % (S_OWQ, S_T0, WS_P))
    k.e("s_add_u32 s%d, s%d, 4096" % (S_OKV, S_OWQ))
    k.e("s_lshr_b32 s%d, s%d, 1" % (S_T0, S_KQ))
    k.e("s_lshl2_add_u32 s%d, s%d, s%d" % (S_T0, S_TG, S_T0))
    k.e("s_lshl_b32 s%d, s%d, 6" % (S_T0, S_T0))
    k.e("s_add_u32 s%d, s%d, s%d" % (S_T0, S_T0, S_BR))
    k.e("s_lshl2_add_u32 s%d, s%d, s%d" % (S_T0, S_T0, S_NB))
    k.e("s_and_b32 s%d, s%d, 1" % (S_T1, S_KQ))
    k.e("s_lshl1_add_u32 s%d, s%d, s%d" % (S_T0, S_T0, S_T1))
    k.e("s_lshl2_add_u32 s%d, s%d, s%d" % (S_T0, S_T0, S_W))
    k.e("s_lshl_b32 s%d, s%d, 5" % (S_T3, S_T0))
    k.e("s_mov_b32 s%d, 0x3f80" % S_T0)
    k.e("s_mov_b32 s%d, 0x3f800000" % S_T1)
    for ks in range(pk, 32):
        ex = {}
        if old:
            ex[0] = [old.pop(0)]
        if old and ks < o2:
            ex[2] = [old.pop(0)]
        if ks >= nm + G and (ks - nm) % G == 0:
            assert not old
            ex = {1: [pcvt(2 * ((ks - nm) // G) - 2)], 3: [pcvt(2 * ((ks - nm) // G) - 1)]}
        if ks == nm and nm == 16:
            ex.setdefault(1, []).extend(lambda x=x: k.e("v_add_u32 v%d, 0x%x, v%d" % (V_RA + x, 2 * SLOT, V_WA + x)) for x in range(4))
        assert ks >= 8 or len(old) >= 8
        if hlp and ks in (7, 15, 23 if nm == 24 else 17):
            k.e("s_barrier")
        p2step(ks, ex)
        if ks == 8:
            k.stamp()
    k.stamp()
    k.e("s_nop 7")
    k.e("s_nop 7")
    pcvt(6)()
    pcvt(7)()

    def pload(q):
        k.vmem("buffer_load_dwordx4 %s, v%d, %s, s%d offen offset:%d sc1" % (vr(V_PL + 4 * q, 4), V_L16, srd(SRD_WS), S_OWQ if q < 4 else S_OKV, (q & 3) * 1024), "p%d" % q)
    if not sent:
        if split2:
            k.wait(vm=("pst0",))
            k.e("s_mov_b64 exec, 1")
            k.vmem("buffer_store_dword v%d, v%d, %s, s%d offen sc1" % (V_ONE, V_FL2, srd(SRD_WS), S_OI), "fl")
        k.wait(vm=("pst1",))
        k.e("s_mov_b64 exec, %d" % (2 if split2 else 3))
        k.e("buffer_store_dword v%d, v%d, %s, s%d offen sc1" % (V_ONE, V_FL2, srd(SRD_WS), S_OI))
        k.e("s_mov_b64 exec, -1")
        k.stamp()
        spin(k, "L_s2", V_PL2, SRD_WS, "s%d" % S_OI, "1")
        k.stamp()
        for q in range(8):
            pload(q)
    else:
        k.stamp()
        for q in range(8):
            pload(q)
        k.e("s_mov_b32 s%d, 0x40000" % S_SPIN)
        k.lab("L_s2")
        k.wait(vm0=True)
        k.e("s_mov_b32 s%d, 0" % S_FAST)
        for q in range(8):
            r = V_PL + 4 * q
            k.e("v_max3_u32 v%d, v%d, v%d, v%d" % (t, r, r + 1, r + 2))
            k.e("v_max_u32 v%d, v%d, v%d" % (t, t, r + 3))
            k.e("v_cmp_eq_u32 vcc, -1, v%d" % t)
            k.e("s_cbranch_vccz L_s2_%d" % q)
            pload(q)
            k.e("s_mov_b32 s%d, 1" % S_FAST)
            k.lab("L_s2_%d" % q)
        k.e("s_sub_u32 s%d, s%d, s%d" % (S_SPIN, S_SPIN, S_FAST))
        k.e("s_cbranch_scc1 L_s2_x")
        k.e("s_cmp_eq_u32 s%d, 1" % S_FAST)
        k.e("s_cbranch_scc1 L_s2")
        k.lab("L_s2_x")
        k.wait(vm0=True)
        k.stamp()
    for q in range(8):
        k.wait(vm=("p%d" % q,))
        for j in range(4):
            if q == 0:
                k.e("v_lshlrev_b32 v%d, 16, v%d" % (V_FA + 2 * j, V_PL + j))
                k.e("v_and_b32 v%d, 0xffff0000, v%d" % (V_FA + 2 * j + 1, V_PL + j))
            else:
                k.e("v_dot2_f32_bf16 v%d, v%d, s%d, v%d" % (V_FA + 2 * j, V_PL + 4 * q + j, S_T0, V_FA + 2 * j))
                k.e("v_dot2_f32_bf16 v%d, v%d, s%d, v%d" % (V_FA + 2 * j + 1, V_PL + 4 * q + j, S_T1, V_FA + 2 * j + 1))
    k.e("s_nop 2")
    for j in range(4):
        k.e("v_cvt_pk_bf16_f32 v%d, v%d, v%d" % (V_QB + j, V_FA + 2 * j, V_FA + 2 * j + 1))
    k.vmem("buffer_store_dwordx4 %s, v%d, %s, s%d offen" % (vr(V_QB, 4), V_OUT, srd(SRD_OUT), S_T3) + ("", " sc1", " nt", " sc0 sc1")[osc], "out")
    k.stamp()
    k.dump_stamps(0)
    if pad:
        k.lab("L_pad")
        k.e("s_memrealtime s[96:97]")
        k.e("s_waitcnt lgkmcnt(0)")
        k.e("s_sub_u32 s96, s96, s98")
        k.e("s_cmp_lt_u32 s96, %d" % (pad * 100))
        k.e("s_cbranch_scc1 L_pad")
    k.lab("L_end")
    k.e("s_endpgm")
    if hlp:
        k.lab("L_helper")
        k.diag, k.vm, k.lg = 0, [], []
        build_srds(k, ["WS", "K", "V", "WO", "DBG"])
        k.e("s_getreg_b32 s%d, hwreg(HW_REG_XCC_ID, 0, 3)" % S_ANN4)
        k.e("s_lshl_b32 s%d, s%d, 2" % (S_ANN4, S_ANN4))
        k.e("s_lshl_b32 s%d, 1, s%d" % (S_ANN4, S_ANN4))
        k.e("v_mov_b32 v%d, s%d" % (V_ANN, S_ANN4))
        k.e("s_cmp_lg_u32 s%d, 0" % S_W)
        k.e("s_cbranch_scc1 L_noann")
        k.e("buffer_store_dword v2, v1, %s, s%d offen sc1" % (srd(SRD_WS), S_T2))

        def announce():
            k.e("s_waitcnt vmcnt(0)")
            k.e("s_mov_b64 exec, 1")
            k.e("buffer_atomic_add v%d, v%d, %s, 0 offen sc1" % (V_ANN, V_GOA, srd(SRD_DBG)))
            k.e("s_mov_b64 exec, -1")
        if not ab:
            announce()
        k.lab("L_noann")
        if pf:
            if pf == 2:
                k.e("s_cmp_ge_u32 s2, 64")
                k.e("s_cbranch_scc1 L_nopf")
            k.e("s_getpc_b64 s[98:99]")
            k.lab("L_pc")
            k.e("s_sub_u32 s98, s98, L_pc-%s_kernel" % NAME)
            k.e("s_subb_u32 s99, s99, 0")
            k.e("s_lshl_b32 s%d, s%d, 12" % (S_T0, S_W))
            k.e("v_and_b32 v24, 63, v0")
            k.e("v_lshl_add_u32 v24, v24, 6, s%d" % S_T0)
            k.e("v_min_u32 v24, L_pc-%s_kernel, v24" % NAME)
            k.e("v_mov_b32 v25, s99")
            k.e("v_add_co_u32 v24, vcc, s98, v24")
            k.e("v_addc_co_u32 v25, vcc, 0, v25, vcc")
            k.e("global_load_dword v26, v[24:25], off")
            k.lab("L_nopf")
        head_order(k, jrot)
        K8, V9 = stage(8), stage(9)
        if NS == 4:
            at = {5: V9, 6: stage(10), 7: stage(11), 8: stage(12), 9: stage(13)}
            need = {8: ("st8",), 9: ("st9",), 10: ("st10",), 11: ("st11",), 12: ("st12",), 13: ("st13",)}
            at[hk - 1] = at.get(hk - 1, []) + K8[:4]
            at[hv - 1] = at.get(hv - 1, []) + K8[4:]
        else:
            at = {6: stage(10), 7: stage(11), 8: stage(12), 9: stage(13)}
            need = {8: ("st8", "st9"), 9: ("st10",), 10: ("st11",), 11: ("st12",), 12: ("st13",)}
            if bk:
                need = {8: ("st8", "st9"), 10: ("st10",), 11: ("st11",), 12: ("st12",), 13: ("st13",)}
            if bk == 2:
                need.update({8: ("st8",), 9: ("st9",)})
            kv = K8 + V9
            for i, c in enumerate(hs):
                at[int(c) - 1] = [op for op in at.get(int(c) - 1, []) if op in kv] + kv[2 * i:2 * i + 2] + [op for op in at.get(int(c) - 1, []) if op not in kv]
        for b in range(-1, max(need) + 1):
            if b >= 0:
                k.wait(vm=need.get(b, ()))
                k.e("s_barrier")
            if ab and b == ab - 1:
                k.e("s_cmp_lg_u32 s%d, 0" % S_W)
                k.e("s_cbranch_scc1 L_noann2")
                announce()
                k.lab("L_noann2")
            for op in at.get(b, ()):
                op()
            if wb and b == wb:
                k.e("s_and_b32 s%d, s2, 0x%x" % (S_T2, wbm))
                k.e("s_or_b32 s%d, s%d, s%d" % (S_T2, S_T2, S_W))
                k.e("s_cmp_eq_u32 s%d, 0" % S_T2)
                k.e("s_cbranch_scc1 L_wb")
        k.e("s_endpgm")
        if wb:
            k.lab("L_wb")
            k.e("s_waitcnt vmcnt(0)")
            k.e("buffer_wbl2 sc1")
            for b in range(wb + 1, max(need) + 1):
                k.e("s_barrier")
            k.e("s_waitcnt vmcnt(0)")
            k.e("s_endpgm")
    kt = kernel_text(NAME + "_kernel", k, 256, 256)
    return finish(["; @launch grid=(256,1,1) block=(%d,1,1) lds=163840" % (512 if hlp else 256)], [kt])


if __name__ == "__main__":
    mode, out = sys.argv[1], sys.argv[2]
    kw = dict(a.split("=") for a in sys.argv[3:])
    kw = {a: int(b) if b.isdigit() and a != "hs" else b for a, b in kw.items()}
    open(out, "w").write(globals()["gen_" + mode](**kw))
```
